```python
import torch

def _softmax(x, axis=-1):
    return torch.softmax(x, dim=axis)

def _gelu(x):
    return torch.nn.functional.gelu(x, approximate='tanh')

def _silu(x):
    return torch.nn.functional.silu(x)

def _sigmoid(x):
    return torch.sigmoid(x)

def _layernorm(x, axis=-1, eps=1e-05):
    m = x.mean(dim=axis, keepdim=True)
    v = x.var(dim=axis, keepdim=True, unbiased=False)
    return (x - m) / torch.sqrt(v + eps)

def _scatter_add(tgt, idx, src, axis=0):
    return tgt.clone().index_add_(axis, idx, src)

def _segment_sum(src, seg, n):
    out = torch.zeros((n,) + src.shape[1:], dtype=src.dtype)
    return out.index_add_(0, seg, src)

def _pad(x, pw):
    flat = tuple((v for pair in reversed(pw) for v in pair))
    return torch.nn.functional.pad(x, flat)
kernel_name = 'adaLN_cond__mha_block_cached__geglu_ffn__decode'

def setup_inputs():

    _w = lambda a: (lambda t: t.to(torch.bfloat16) if t.is_floating_point() else t)(torch.as_tensor(a))

    def _A_setup():
        B, Sq, D = (2, 1, 576)
        H, Sk, Dh = (32, 4096, 128)
        return {'x': _w((lambda *s: torch.randn(*s, dtype=torch.bfloat16) * 0.1)(B, Sq, D)), 'k_cache': _w((lambda *s: torch.randn(*s, dtype=torch.bfloat16) * 0.8)(B, H, Sk, Dh)), 'v_cache': _w((lambda *s: torch.randn(*s, dtype=torch.bfloat16) * 0.8)(B, H, Sk, Dh)), 'wq': _w((lambda *s: torch.randn(*s, dtype=torch.bfloat16) * 0.8)(D, H * Dh) * D ** (-0.5)), 'wo': _w((lambda *s: torch.randn(*s, dtype=torch.bfloat16) * 0.8)(H * Dh, D) * (H * Dh) ** (-0.5))}
    _A_in = _A_setup()

    def _B_setup():
        B, S, D, F = (2, 1, 576, 4608)
        return {'x': _w((lambda *s: torch.randn(*s, dtype=torch.bfloat16) * 0.1)(B, S, D)), 'w_gate': _w((lambda *s: torch.randn(*s, dtype=torch.bfloat16) * 0.1)(D, F)), 'w_up': _w((lambda *s: torch.randn(*s, dtype=torch.bfloat16) * 0.1)(D, F)), 'w_down': _w((lambda *s: torch.randn(*s, dtype=torch.bfloat16) * 0.1)(F, D))}
    _B_in = _B_setup()
    return {'A_x': _A_in['x'], 'A_k_cache': _A_in['k_cache'], 'A_v_cache': _A_in['v_cache'], 'A_wq': _A_in['wq'], 'A_wo': _A_in['wo'], 'B_x': _B_in['x'], 'B_w_gate': _B_in['w_gate'], 'B_w_up': _B_in['w_up'], 'B_w_down': _B_in['w_down'], 'c': _w((lambda *s: torch.randn(*s, dtype=torch.bfloat16) * 0.4)(2, 576) * 8.0), 'w_mod': _w((lambda *s: torch.randn(*s, dtype=torch.bfloat16) * 0.4)(576, 6 * 576) * 576 ** (-0.5) * 8.0)}

def reference(A_x, A_k_cache, A_v_cache, A_wq, A_wo, B_x, B_w_gate, B_w_up, B_w_down, c, w_mod):

    def _A_ref(x, k_cache, v_cache, wq, wo):
        B, Sq, D = x.shape
        H, Dh = (32, 128)
        q = (lambda x, *d: x.permute(*d))((x @ wq).reshape(B, Sq, H, Dh), 0, 2, 1, 3)
        scores = torch.einsum('bhqd,bhkd->bhqk', q, k_cache) * Dh ** (-0.5)
        p = _softmax(scores, axis=-1)
        o = torch.einsum('bhqk,bhkd->bhqd', p, v_cache)
        return (lambda x, *d: x.permute(*d))(o, 0, 2, 1, 3).reshape(B, Sq, H * Dh) @ wo

    def _B_ref(x, w_gate, w_up, w_down):
        return _gelu(x @ w_gate) * (x @ w_up) @ w_down
    x = A_x
    mod = (_silu(c) @ w_mod).reshape(c.shape[0], 6, 1, -1)
    sa, ca, ga, sb, cb, gb = (mod[:, 0].clone(), mod[:, 1].clone(), mod[:, 2].clone(), mod[:, 3].clone(), mod[:, 4].clone(), mod[:, 5].clone())
    h = _layernorm(x, axis=-1) * (1 + ca) + sa
    x = x + ga * _A_ref(h, A_k_cache, A_v_cache, A_wq, A_wo)
    h = _layernorm(x, axis=-1) * (1 + cb) + sb
    x = x + gb * _B_ref(h, B_w_gate, B_w_up, B_w_down)
    return x
```

```python
import re
TRANS = ("v_exp_f32","v_log_f32","v_rcp_f32","v_rsq_f32","v_sqrt_f32")
def regs(tok):
    tok = tok.strip().lstrip("-")
    if tok.startswith("abs("): tok = tok[4:-1]
    m = re.fullmatch(r"([vs])(\d+)", tok)
    if m: return {(m.group(1), int(m.group(2)))}
    m = re.fullmatch(r"([vs])\[(\d+):(\d+)\]", tok)
    if m: return {(m.group(1), i) for i in range(int(m.group(2)), int(m.group(3))+1)}
    if tok == "vcc_lo": return {("s", 106)}
    if tok == "vcc": return {("s", 106), ("s", 107)}
    if tok == "m0": return {("s", 124)}
    return set()
def parse(ins):
    p = ins.split(None, 1); op = p[0]; rest = p[1] if len(p) > 1 else ""
    ops = [t.strip() for t in re.split(r",(?![^\[]*\])", rest)] if rest else []
    if ops:
        last = ops[-1].split(); mods = " ".join(last[1:]); ops[-1] = last[0] if last else ""
    else: mods = ""
    return op, ops, mods
class Ins:
    def __init__(s, text):
        s.text = text; op, ops, mods = parse(text); s.op = op
        s.valu = op.startswith("v_") and not op.startswith("v_mfma"); s.mfma = op.startswith("v_mfma")
        s.vmem = op.startswith(("buffer_", "global_")); s.ds = op.startswith("ds_"); s.salu = op.startswith("s_")
        s.dpp = "_dpp" in op; s.perm = op.startswith("v_permlane"); s.trans = op in TRANS; s.dot = op.startswith("v_dot2")
        s.rdl = op.startswith(("v_readlane", "v_readfirstlane")); s.lds_dma = s.vmem and " lds" in " "+mods
        R = [regs(o) for o in ops]; s.w = set(); s.r = set(); s.srcC = set(); s.sdata = set()
        if s.valu or s.mfma:
            s.w = set(R[0]);
            for x in R[1:]: s.r |= x
            if s.perm: s.w |= R[1]; s.r |= R[0]
            if op.startswith(("v_fmac", "v_dot2c")) or s.dpp: s.r |= R[0]
            if s.mfma: s.srcC = R[3]; s.ab = R[1] | R[2]
            if op.startswith("v_dot2c"): s.srcC = R[0]; s.ab = R[1] | R[2]
            elif s.dot: s.srcC = R[3]; s.ab = R[1] | R[2]
        elif s.vmem:
            if "load" in op and not s.lds_dma:
                s.w = set(R[0]);
                for x in R[1:]: s.r |= x
            else:
                for x in R: s.r |= x
                if "store" in op and op.endswith(("x3", "x4")): s.sdata = R[0] if op.startswith("buffer") else R[1]
        elif s.ds:
            if "read" in op or "permute" in op:
                s.w = set(R[0])
                for x in R[1:]: s.r |= x
            else:
                for x in R: s.r |= x
        elif s.salu and R and not op.startswith(("s_cmp", "s_cbranch", "s_waitcnt", "s_nop", "s_branch")):
            s.w = set(R[0])
            for x in R[1:]: s.r |= x
        s.states = (int(ops[0]) + 1) if op == "s_nop" else 1
def need(p, c):
    n = 0; V = lambda S: {x for x in S if x[0] == "v"}; S_ = lambda S: {x for x in S if x[0] == "s"}
    if p.valu:
        ov = V(p.w) & c.r
        if ov and (c.dpp or c.perm or c.mfma): n = max(n, 2)
        if ov and c.rdl: n = max(n, 1)
        if ov and p.trans and c.valu and not c.trans: n = max(n, 1)
        if p.dot and V(p.w) & (c.r | c.w):
            if not (c.op == p.op and not (V(p.w) & c.ab)): n = max(n, 3)
        os_ = S_(p.w) & c.r
        if os_ and c.valu: n = max(n, 4 if c.rdl else 2)
        if os_ and c.vmem: n = max(n, 5)
        if os_ and c.salu: n = max(n, 1)
    if p.mfma:
        if c.mfma:
            if p.w & c.ab: n = max(n, 8)
            elif p.w & c.srcC and p.w != c.srcC: n = max(n, 6)
        elif p.w & (c.r | c.w): n = max(n, 8)
        if c.valu and p.srcC & c.w: n = max(n, 3)
    if p.sdata and p.sdata & c.w: n = max(n, 2)
    if p.salu and ("s", 124) in p.w and c.lds_dma: n = max(n, 1)
    return n
class Asm:
    def __init__(s): s.L = []; s.hist = []; s.uid = 0
    def __call__(s, *lines):
        for t in lines:
            for x in t.split("\n"):
                x = x.strip()
                if x: s.emit(x)
    def emit(s, t):
        if t.endswith(":") or t.startswith(";"):
            s.L.append(t); return
        c = Ins(t); pad = 0; d = 0
        for p in reversed(s.hist):
            pad = max(pad, need(p, c) - d); d += p.states
            if d >= 8: break
        if pad > 0:
            s.L.append(f"    s_nop {pad-1}"); s.hist.append(Ins(f"s_nop {pad-1}"))
        s.L.append("    " + t); s.hist.append(c); s.hist = s.hist[-12:]
    def label(s, base): s.uid += 1; return f"{base}_{s.uid}"
    def text(s): return "\n".join(s.L) + "\n"
```

```python
import sys
from asmlib import Asm
KN = "adaLN_cond__mha_block_cached__geglu_ffn__decode_kernel"
QP=0; PEX=0x40000; T1=0xC0000; T3=0x150000; ML=0x1F2000; CB=0x1F6000; SB=0x1F7200; T2=0x1F9000; MODP=0x200000; WSN=0x240000
OOB=0x40000000
OPART=0; RPART=4096; HTAB=6400; QTAB=7040; WTAB=7296; STAT=7424; FL=7488; H2T=7552; GTAB=9856; DUMP=10880; GU=12288; LDSN=86016
F_Q=FL; F_H=FL+4; F_P1=FL+8; F_W=FL+12
def br4(r): return int(f"{r:04b}"[::-1], 2)
def gen(RING=20, DEPTH=2, HDEPTH=1, CATCH=2, TS=False, NT=" nt", NTW=" nt", PPOS=8):
    a = Asm()
    def srd(r, p, n): a(f"s_mov_b32 s{r}, s{p}", f"s_and_b32 s{r+1}, s{p+1}, 0xffff", f"s_mov_b32 s{r+2}, {n}", f"s_mov_b32 s{r+3}, 0x20000")
    P = dict(x=16, K=18, V=20, wq=22, wo=24, wg=28, wu=30, wd=32, c=34, wm=36, out=38, dbg=40, ws=42)
    WS = "s[44:47]"
    def stamp(k):
        if TS: a(f"s_memrealtime s[{72+2*k}:{73+2*k}]")
    def flush_stamps(ks):
        if not TS: return
        a("s_waitcnt lgkmcnt(0)", "s_lshl_b32 s11, s2, 7", "s_add_u32 s11, s11, 0x8000000", "v_mov_b32 v4, s11", "s_mov_b64 exec, 1")
        for k in ks: a(f"v_mov_b32 v6, s{72+2*k}", f"v_mov_b32 v7, s{73+2*k}", f"global_store_dwordx2 v4, v[6:7], s[42:43] offset:{8*k}", "s_waitcnt vmcnt(0)")
        a("s_mov_b64 exec, -1")
    def spin_lds(flag, t="v4"):
        l = a.label("Lsp"); d = a.label("Lspd")
        a(f"{l}:", f"ds_read_b32 {t}, v5 offset:{flag}", "s_waitcnt lgkmcnt(0)", f"v_readfirstlane_b32 s11, {t}", "s_cmp_lg_u32 s11, 0", f"s_cbranch_scc1 {d}",
          "s_sleep 1", "s_sub_u32 s70, s70, 1", "s_cmp_gt_i32 s70, 0", f"s_cbranch_scc1 {l}", f"{d}:")
    def set_flag(flag, t="v4"):
        a("s_waitcnt lgkmcnt(0)", f"v_mov_b32 {t}, 1", f"ds_write_b32 v5, {t} offset:{flag}")
    def poll(loads, rs, t, sleep=0, first=True):
        l = a.label("Lpo"); d = a.label("Lpod"); c = a.label("Lpoc")
        if not first: a(f"s_branch {c}")
        a(f"{l}:"); a(*loads); a("s_waitcnt vmcnt(0)"); a(f"{c}:")
        rs = list(rs); a(f"v_max_u32 {t}, v{rs[0]}, v{rs[1] if len(rs)>1 else rs[0]}"); rs = rs[2:]
        while rs:
            if len(rs) >= 2: a(f"v_max3_u32 {t}, {t}, v{rs[0]}, v{rs[1]}"); rs = rs[2:]
            else: a(f"v_max_u32 {t}, {t}, v{rs[0]}"); rs = rs[1:]
        a(f"v_cmp_eq_u32 vcc, -1, {t}", f"s_cbranch_vccz {d}")
        if sleep: a(f"s_sleep {sleep}")
        a("s_sub_u32 s70, s70, 1", "s_cmp_gt_i32 s70, 0", f"s_cbranch_scc1 {l}", f"{d}:")
    def rne(d, s): a(f"v_cvt_pk_bf16_f32 {d}, {s}, {s}", f"v_and_b32 {d}, 0xffff0000, {d}")
    def rowred(op, rs, steps=(8,4,2,1)):
        for st in steps:
            for r in rs: a(f"{op}_dpp {r}, {r}, {r} row_ror:{st} row_mask:0xf bank_mask:0xf")
    def xrow(op, rs, ts, which=(16,32)):
        for wd in which:
            for r, t in zip(rs, ts): a(f"v_mov_b32 {t}, {r}")
            for r, t in zip(rs, ts): a(f"v_permlane{wd}_swap_b32 {r}, {t}")
            for r, t in zip(rs, ts): a(f"{op} {r}, {r}, {t}")
    def masks():
        a("v_and_b32 v4, 7, v1", "v_and_b32 v6, 1, v1", "v_lshlrev_b32 v6, 4, v6", "v_mov_b32 v7, 0xffff", "v_lshlrev_b32 v6, v6, v7", "v_lshrrev_b32 v4, 1, v4")
        for r in range(4): a(f"v_cmp_eq_u32 vcc, {r}, v4", f"v_cndmask_b32 v{12+r}, 0, v6, vcc")
    def mkA(A, pp):
        for r in range(4): a(f"v_and_b32 v{A+r}, {pp}, v{12+r}")
    def bc2(pp, lo, nlo, hi, nhi):
        a(f"v_mov_b32_dpp {pp}, {lo} row_newbcast:{nlo} row_mask:0xf bank_mask:0x3", f"v_mov_b32_dpp {pp}, {hi} row_newbcast:{nhi} row_mask:0xf bank_mask:0xc")
    def mfma(D, A, B, first): a(f"v_mfma_f32_16x16x32_bf16 v[{D}:{D+3}], v[{A}:{A+3}], v[{B}:{B+3}], " + ("0" if first else f"v[{D}:{D+3}]"))
    a("s_cmp_ge_u32 s2, 256", "s_cbranch_scc1 Lend")
    stamp(0)
    a("s_load_dwordx16 s[16:31], s[0:1], 0", "s_load_dwordx8 s[32:39], s[0:1], 64", "s_load_dwordx4 s[40:43], s[0:1], 96")
    a("v_lshrrev_b32 v2, 6, v0", "v_and_b32 v1, 63, v0", "v_mov_b32 v5, 0", "v_readfirstlane_b32 s4, v2")
    a("s_and_b32 s9, s2, 7", "s_lshr_b32 s8, s2, 3", "s_lshl_b32 s3, s9, 5", "s_or_b32 s3, s3, s8")
    a("s_lshr_b32 s5, s3, 3", "s_bfe_u32 s6, s3, 0x10002", "s_and_b32 s7, s3, 3", "s_mov_b32 s70, 0x100000")
    a("v_and_b32 v2, 15, v1", "v_lshrrev_b32 v3, 4, v1")
    masks()
    a("s_waitcnt lgkmcnt(0)")
    srd(44, P["ws"], WSN)
    a("s_cmp_lt_u32 s4, 8", "s_cbranch_scc1 Lhelper")
    a("s_sub_u32 s4, s4, 8")
    srd(48, P["K"], 0x4000000); srd(52, P["V"], 0x4000000)
    a("s_lshl_b32 s11, s6, 5", "s_add_u32 s11, s11, s5", "s_lshl_b32 s11, s11, 20", "s_lshl_b32 s12, s4, 15", "s_add_u32 s11, s11, s12",
      "s_lshl_b32 s12, s7, 18", "s_add_u32 s12, s12, s11", "s_xor_b32 s13, s7, 1", "s_lshl_b32 s13, s13, 18", "s_add_u32 s13, s13, s11")
    a("v_lshl_add_u32 v6, v1, 4, s12")
    a("v_bfe_u32 v4, v1, 3, 1", "v_lshl_add_u32 v4, v4, 2, v3", "v_lshlrev_b32 v4, 8, v4", "v_and_b32 v7, 7, v1", "v_lshl_add_u32 v4, v7, 4, v4",
      "s_and_b32 s14, s7, 1", "s_lshl_b32 s14, s14, 7", "v_add_u32 v4, s14, v4", "v_add_u32 v7, s12, v4", "v_add_u32 v30, s13, v4")
    a("s_mov_b32 s64, 0xcccccccc", "s_mov_b32 s65, 0xcccccccc", "s_mov_b32 s66, 0xaaaaaaaa", "s_mov_b32 s67, 0xaaaaaaaa")
    a("s_barrier")
    ops = []
    def slot(i): return 32 + 4*(i % RING)
    def issue(i):
        r = slot(i)
        if i < 32: a(f"s_movk_i32 s15, {i*1024}", f"buffer_load_dwordx4 v[{r}:{r+3}], v6, s[48:51], s15 offen{NT}")
        else:
            n = (i-32) % 16; v = "v7" if i < 48 else "v30"
            a(f"s_movk_i32 s15, {n*2048}", f"buffer_load_dwordx4 v[{r}:{r+3}], {v}, s[52:55], s15 offen{NT}")
        ops.append(i)
    done = [0]
    def waitn(n):
        if len(ops) - n > done[0]: done[0] = len(ops) - n; a(f"s_waitcnt vmcnt({n})")
    def wait_for(tag): waitn(len(ops) - 1 - ops.index(tag))
    def procK(i):
        wait_for(i+1); r0 = slot(i); r1 = slot(i+1)
        for k in range(4):
            a(f"v_dot2_f32_bf16 v20, v{r0+k}, v{8+k}, " + ("0" if k == 0 else "v20"), f"v_dot2_f32_bf16 v21, v{r1+k}, v{8+k}, " + ("0" if k == 0 else "v21"))
        j = i % 16; T = 22 + (j >> 1 & 1)
        a(f"v_add_f32_dpp v{T}, v20, v20 row_ror:8 row_mask:0xf bank_mask:0x3", f"v_add_f32_dpp v{T}, v21, v21 row_ror:8 row_mask:0xf bank_mask:0xc")
        if j & 2:
            U = 24 + (j >> 2 & 1)
            a(f"v_add_f32_dpp v{U}, v22, v22 row_half_mirror row_mask:0xf bank_mask:0x5", f"v_add_f32_dpp v{U}, v23, v23 row_half_mirror row_mask:0xf bank_mask:0xa")
            if j & 4:
                W = 26 + (j >> 3 & 1)
                a("v_cndmask_b32 v28, v24, v25, s[64:65]", "v_cndmask_b32 v29, v25, v24, s[64:65]", f"v_add_f32_dpp v{W}, v29, v28 quad_perm:[2,3,0,1] row_mask:0xf bank_mask:0xf")
                if j & 8:
                    a("v_cndmask_b32 v28, v26, v27, s[66:67]", "v_cndmask_b32 v29, v27, v26, s[66:67]", f"v_add_f32_dpp v{16+i//16}, v29, v28 quad_perm:[1,0,3,2] row_mask:0xf bank_mask:0xf")
    def softmax():
        a("v_cvt_pk_bf16_f32 v20, v16, v17", "s_mov_b32 s11, 0x3db504f3", "v_lshlrev_b32 v16, 16, v20", "v_and_b32 v17, 0xffff0000, v20",
          "v_mul_f32 v16, s11, v16", "v_mul_f32 v17, s11, v17", "v_cvt_pk_bf16_f32 v20, v16, v17", "v_lshlrev_b32 v16, 16, v20", "v_and_b32 v17, 0xffff0000, v20",
          "v_max_f32 v22, v16, v17")
        rowred("v_max_f32", ["v22"]); xrow("v_max_f32", ["v22"], ["v21"])
        a("s_mov_b32 s11, 0x3fb8aa3b", "v_sub_f32 v16, v16, v22", "v_sub_f32 v17, v17, v22", "v_mul_f32 v16, s11, v16", "v_mul_f32 v17, s11, v17",
          "v_exp_f32 v16, v16", "v_exp_f32 v17, v17", "v_add_f32 v23, v16, v17", "v_cvt_pk_bf16_f32 v20, v16, v17", "v_min_u32 v20, -2, v20")
        a("s_lshl_b32 s11, s3, 3", "s_add_u32 s11, s11, s4", "s_lshl_b32 s12, s11, 8", f"s_add_u32 s12, s12, {PEX}", "v_lshlrev_b32 v31, 2, v1",
          f"buffer_store_dword v20, v31, {WS}, s12 offen sc1"); ops.append("pst")
        a("s_xor_b32 s13, s12, 0x800")
        a("s_mov_b32 s14, 0x01000100", "v_perm_b32 v16, v20, v20, s14", "s_mov_b32 s14, 0x03020302", "v_perm_b32 v17, v20, v20, s14")
        rowred("v_add_f32", ["v23"]); xrow("v_add_f32", ["v23"], ["v21"])
        a("v_cmp_eq_u32 vcc, 0, v1", f"v_mov_b32 v24, {OOB}", "v_cndmask_b32 v24, v24, v5, vcc", "s_lshl_b32 s11, s11, 3", f"s_add_u32 s11, s11, {ML}",
          f"buffer_store_dwordx2 v[22:23], v24, {WS}, s11 offen sc1"); ops.append("mlst")
    def procV(i):
        n = (i-32) % 16; par = i >= 48; D = 124 if par else 120; A = 112 + 4*(i & 1); u = n >> 3; n1 = n & 7
        src = f"v{(18 if par else 16)+u}"
        if i == 48:
            wait_for("pld")
            poll([f"buffer_load_dword v26, v31, {WS}, s13 offen sc1"], [26], "v27", first=False)
            a("s_mov_b32 s14, 0x01000100", "v_perm_b32 v18, v26, v26, s14", "s_mov_b32 s14, 0x03020302", "v_perm_b32 v19, v26, v26, s14")
        bc2(f"v{20+(i&1)}", src, br4(2*n1), src, br4(2*n1+1)); mkA(A, f"v{20+(i&1)}")
        wait_for(i); mfma(D, A, slot(i), n == 0)
    issued = 0
    for i in range(RING): issue(i); issued += 1; waitn(DEPTH)
    stamp(8)
    spin_lds(F_Q)
    a(f"v_lshlrev_b32 v4, 4, v2", f"ds_read_b128 v[8:11], v4 offset:{QTAB}", "s_waitcnt lgkmcnt(0)")
    proc = 0
    while proc < 64:
        cnt = 0
        while proc < 64 and cnt < CATCH and (proc < issued - DEPTH - (1 if proc < 32 else 0) or issued == 64):
            if proc < 32:
                procK(proc); proc += 2; cnt += 2
                if proc == 32: softmax(); stamp(3)
            else: procV(proc); proc += 1; cnt += 1
        if issued < 64 and issued - proc < RING:
            issue(issued); issued += 1
            if issued == 32 + PPOS + (16 if False else 0) and False: pass
            waitn(DEPTH)
        if "mlst" in ops and "pld" not in ops and proc >= 32 + PPOS:
            a(f"buffer_load_dword v26, v31, {WS}, s13 offen sc1"); ops.append("pld")
    spin_lds(F_W)
    a("s_lshl_b32 s11, s7, 3", "s_add_u32 s11, s11, s4", "s_lshl_b32 s11, s11, 2", "v_mov_b32 v4, s11", "v_xor_b32 v6, 32, v4",
      f"ds_read_b32 v20, v4 offset:{WTAB}", f"ds_read_b32 v21, v6 offset:{WTAB}")
    a("v_lshrrev_b32 v22, 3, v2", "v_lshrrev_b32 v23, 1, v3", "v_cmp_eq_u32 vcc, v22, v23", "v_and_b32 v23, 7, v1", "v_lshlrev_b32 v23, 5, v23", "v_and_b32 v24, 1, v3",
      "v_lshl_add_u32 v23, v24, 4, v23", "v_lshl_add_u32 v23, v22, 8, v23", "s_lshl_b32 s11, s4, 9", f"s_add_u32 s11, s11, {OPART}", "v_add_u32 v23, s11, v23",
      "v_lshlrev_b32 v24, 4, v1", f"v_add_u32 v24, {DUMP}, v24", "v_cndmask_b32 v23, v24, v23, vcc", "s_waitcnt lgkmcnt(0)")
    for r in range(4): a(f"v_mul_f32 v{120+r}, v20, v{120+r}")
    for r in range(4): a(f"v_fmac_f32 v{120+r}, v21, v{124+r}")
    a("ds_write_b128 v23, v[120:123]", "s_waitcnt lgkmcnt(0)")
    stamp(4)
    a("s_barrier")
    if TS:
        a("s_cmp_lg_u32 s4, 0", "s_cbranch_scc1 Lend"); flush_stamps([3, 4, 8])
    a("s_endpgm")
    a("Lhelper:")
    for r in range(104, 112): a(f"v_mov_b32 v{r}, {OOB}")
    a("s_mul_i32 s10, s9, 18", "s_add_u32 s10, s10, s8")
    a("s_mul_i32 s68, s9, 9", "s_add_u32 s68, s68, s8", "s_sub_u32 s68, s68, 18")
    a("s_mov_b32 s69, 0", "s_cmp_lt_u32 s8, 27", "s_cselect_b32 s69, 2, 0", "s_cmp_lt_u32 s8, 18", "s_cselect_b32 s69, 1, s69")
    a("s_cmp_ge_u32 s68, 36", "s_cselect_b32 s71, 1, 0")
    a("s_cmp_eq_u32 s4, 1", "s_cbranch_scc1 Lw1", "s_cmp_eq_u32 s4, 2", "s_cbranch_scc1 Lw2", "s_cmp_eq_u32 s4, 3", "s_cbranch_scc1 Lw3")
    a("v_mov_b32 v6, 0", "v_mov_b32 v7, 0", "v_mov_b32 v8, 0", "v_mov_b32 v9, 0", f"ds_write_b128 v5, v[6:9] offset:{FL}", "s_waitcnt lgkmcnt(0)", "s_barrier", "s_branch Lbulk")
    a("Lw1:")
    srd(48, P["wm"], 576*6912); srd(52, P["c"], 2304); srd(56, P["dbg"], 256); srd(60, P["x"], 2304)
    a("s_mul_i32 s11, s3, 7282", "s_lshr_b32 s11, s11, 16", "s_mul_i32 s12, s11, 9", "s_sub_u32 s12, s3, s12")
    a("s_cmp_lt_u32 s3, 243", "s_cbranch_scc1 Lw1a", "s_barrier", "s_branch Lw1clr", "Lw1a:")
    a("s_lshl_b32 s13, s12, 6", "v_lshl_add_u32 v6, v2, 2, v3", "v_add_u32 v6, s13, v6", "v_lshlrev_b32 v6, 1, v6",
      "buffer_load_ushort v16, v6, s[52:55], 0 offen", "buffer_load_ushort v17, v6, s[52:55], 0 offen offset:1152")
    a("v_add_u32 v6, s13, v3", "v_mul_u32_u24 v6, 6912, v6", "s_lshl_b32 s14, s11, 8", "v_lshl_add_u32 v6, v2, 4, v6", "v_add_u32 v6, s14, v6")
    for n in range(16): a(f"s_mov_b32 s15, {n*4*6912}", f"buffer_load_dwordx4 v[{32+4*n}:{35+4*n}], v6, s[48:51], s15 offen{NTW}")
    a("s_barrier")
    a("s_waitcnt vmcnt(16)")
    for r in (16, 17):
        a(f"v_lshlrev_b32 v{r}, 16, v{r}", f"v_mul_f32 v18, 0xbfb8aa3b, v{r}", "v_exp_f32 v18, v18", "v_add_f32 v18, 1.0, v18", "v_rcp_f32 v18, v18", f"v_mul_f32 v{r}, v{r}, v18", f"v_cvt_pk_bf16_f32 v{r}, v{r}, v{r}")
    for n in range(16):
        bc2(f"v{20+(n&1)}", "v16", n, "v17", n); mkA(112+4*(n&1), f"v{20+(n&1)}"); a(f"s_waitcnt vmcnt({15-n})"); mfma(120, 112+4*(n&1), 32+4*n, n == 0)
    a("v_lshrrev_b32 v6, 1, v3", "v_mul_u32_u24 v6, 13824, v6", "v_and_b32 v7, 1, v3", "v_lshl_add_u32 v6, v7, 4, v6", "v_lshl_add_u32 v6, v2, 5, v6",
      "s_mul_i32 s13, s12, 27648", "s_lshl_b32 s14, s11, 9", "s_add_u32 s13, s13, s14", f"s_add_u32 s13, s13, {MODP}",
      f"buffer_store_dwordx4 v[120:123], v6, {WS}, s13 offen sc1")
    a("Lw1clr:")
    a("v_mov_b32 v8, -1", "v_mov_b32 v9, -1", "v_mov_b32 v10, -1", "v_mov_b32 v11, -1", "v_lshlrev_b32 v6, 4, v1", "s_lshl_b32 s13, s3, 13")
    for n in range(8):
        if n == 4: a("s_add_u32 s13, s13, 4096")
        a(f"buffer_store_dwordx4 v[8:11], v6, {WS}, s13 offen offset:{(n&3)*1024} sc1")
    a("s_and_b32 s13, s3, 3", "s_lshl_b32 s13, s13, 6", "v_mov_b32 v7, 1", "s_waitcnt vmcnt(0)", "s_mov_b64 exec, 1",
      "buffer_atomic_add v7, v5, s[56:59], s13 offen sc1", "s_mov_b64 exec, -1")
    stamp(9)
    a("s_cmp_lg_u32 s69, 2", "s_cbranch_scc1 Lbulk")
    spin_lds(F_P1)
    a("s_mul_i32 s12, s71, 36", "s_sub_u32 s12, s68, s12", "s_lshl_b32 s12, s12, 4")
    a("v_mul_u32_u24 v6, 576, v3", "v_add3_u32 v6, v6, v2, s12", "v_lshlrev_b32 v6, 2, v6", "s_mul_i32 s13, s71, 13824", f"s_add_u32 s13, s13, {MODP+1152*4}")
    for k in range(9): a(f"buffer_load_dword v{32+k}, v6, {WS}, s13 offen sc1", "s_add_u32 s13, s13, 27648")
    a("s_mul_i32 s13, s71, 576", "s_add_u32 s13, s13, s12", "v_add_u32 v7, s13, v2", "v_lshlrev_b32 v8, 1, v7", "buffer_load_ushort v107, v8, s[60:63], 0 offen", "s_waitcnt vmcnt(0)")
    for k in range(1, 9): a(f"v_add_f32 v32, v32, v{32+k}")
    rne("v32", "v32"); a("v_add_f32 v33, 1.0, v32"); rne("v33", "v33")
    a("v_cmp_eq_u32 vcc, 2, v3", "v_cndmask_b32 v32, v32, v33, vcc", f"v_mov_b32 v9, {OOB}", f"v_mov_b32 v10, {CB}", "v_cndmask_b32 v9, v9, v10, vcc",
      "v_cmp_eq_u32 vcc, 1, v3", f"v_mov_b32 v10, {SB}", "v_cndmask_b32 v9, v9, v10, vcc", "v_lshl_add_u32 v9, v7, 2, v9", f"buffer_store_dword v32, v9, {WS}, 0 offen sc1",
      "v_lshlrev_b32 v10, 2, v2", "v_add_u32 v11, 192, v10", "ds_bpermute_b32 v108, v10, v32", "ds_bpermute_b32 v109, v11, v32", "v_lshlrev_b32 v107, 16, v107",
      "v_cmp_gt_u32 vcc, 16, v1", f"v_mov_b32 v9, {OOB}", "v_cndmask_b32 v110, v9, v8, vcc", "v_cndmask_b32 v111, v9, v10, vcc", "s_waitcnt lgkmcnt(0)", "s_branch Lbulk")
    a("Lw2:")
    srd(48, P["wq"], 576*8192)
    a("s_and_b32 s11, s3, 7", "s_mul_i32 s11, s11, 72", "v_add_u32 v6, s11, v3", "v_lshlrev_b32 v6, 13, v6", "s_lshl_b32 s12, s5, 8", "v_lshl_add_u32 v6, v2, 4, v6", "v_add_u32 v6, s12, v6")
    for n in range(18): a(f"s_mov_b32 s15, {n*32768}", f"buffer_load_dwordx4 v[{32+4*n}:{35+4*n}], v6, s[48:51], s15 offen{NTW}")
    a("s_barrier")
    a("v_lshrrev_b32 v6, 3, v2", "v_lshl_add_u32 v6, v6, 2, v3", "v_mul_u32_u24 v6, 80, v6")
    spin_lds(F_H)
    hr = [16, 20, 24, 104, 108]
    for k in range(5): a(f"ds_read_b128 v[{hr[k]}:{hr[k]+3}], v6 offset:{HTAB+16*k}")
    a("s_waitcnt vmcnt(0) lgkmcnt(0)")
    for n in range(18): mkA(112+4*(n&1), f"v{hr[n>>2]+(n&3)}"); mfma(120, 112+4*(n&1), 32+4*n, n == 0)
    a("v_lshrrev_b32 v6, 1, v3", "v_lshlrev_b32 v6, 9, v6", "v_and_b32 v7, 1, v3", "v_lshl_add_u32 v6, v7, 4, v6", "v_lshl_add_u32 v6, v2, 5, v6", "s_lshl_b32 s13, s3, 10",
      f"buffer_store_dwordx4 v[120:123], v6, {WS}, s13 offen sc1")
    a("v_lshrrev_b32 v6, 5, v1", "v_lshlrev_b32 v6, 12, v6", "v_and_b32 v7, 31, v1", "v_lshl_add_u32 v6, v7, 4, v6", "s_lshl_b32 s13, s5, 13", "s_lshl_b32 s14, s6, 9", "s_add_u32 s13, s13, s14")
    poll([f"buffer_load_dwordx4 v[{32+4*t}:{35+4*t}], v6, {WS}, s13 offen offset:{1024*t} sc1" for t in range(4)], range(32, 48), "v8")
    for k in range(4): a(f"v_add_f32 v{32+k}, v{32+k}, v{36+k}", f"v_add_f32 v{40+k}, v{40+k}, v{44+k}")
    for k in range(4): a(f"v_add_f32 v{32+k}, v{32+k}, v{40+k}")
    xrow("v_add_f32", [f"v{32+k}" for k in range(4)], [f"v{36+k}" for k in range(4)], which=(32,))
    a("v_cvt_pk_bf16_f32 v32, v32, v33", "v_cvt_pk_bf16_f32 v33, v34, v35", "v_lshlrev_b32 v7, 3, v7", f"ds_write_b64 v7, v[32:33] offset:{QTAB}")
    set_flag(F_Q); stamp(2)
    a("s_branch Lbulk")
    a("Lw3:")
    srd(48, P["x"], 2304); srd(56, P["dbg"], 256)
    a("v_lshrrev_b32 v6, 5, v1", "v_and_b32 v7, 31, v1", "v_mul_u32_u24 v8, 1152, v6", "v_mul_u32_u24 v9, 36, v7", "v_add_u32 v9, v8, v9",
      "buffer_load_dwordx4 v[32:35], v9, s[48:51], 0 offen", "buffer_load_dwordx4 v[36:39], v9, s[48:51], 0 offen offset:16", "buffer_load_dword v40, v9, s[48:51], 0 offen offset:32")
    a("s_and_b32 s11, s3, 7", "s_mul_i32 s11, s11, 72", "v_lshl_add_u32 v10, v7, 2, s11", "v_lshl_add_u32 v11, v10, 1, v8", "v_cmp_gt_u32 s[12:13], 18, v7", f"v_mov_b32 v9, {OOB}",
      "v_cndmask_b32 v11, v9, v11, s[12:13]", "buffer_load_dwordx2 v[104:105], v11, s[48:51], 0 offen")
    a("s_barrier")
    a("v_mul_u32_u24 v8, 3456, v6", "v_add_lshl_u32 v10, v10, v8, 2", "v_cndmask_b32 v10, v9, v10, s[12:13]")
    a("v_mul_u32_u24 v8, 320, v6", "v_lshl_add_u32 v8, v7, 2, v8", f"v_add_u32 v8, {HTAB}, v8", f"v_mov_b32 v9, {DUMP}", "v_cndmask_b32 v111, v9, v8, s[12:13]")
    a("s_waitcnt vmcnt(1)")
    for k in range(9): a(f"v_lshlrev_b32 v{44+2*k}, 16, v{32+k}", f"v_and_b32 v{45+2*k}, 0xffff0000, v{32+k}")
    a("v_add_f32 v16, v44, v45")
    for k in range(2, 18): a(f"v_add_f32 v16, v16, v{44+k}")
    rowred("v_add_f32", ["v16"]); xrow("v_add_f32", ["v16"], ["v17"], which=(16,))
    a("v_mul_f32 v16, 0x3ae38e39, v16", "v_mov_b32 v17, 0")
    for k in range(18): a(f"v_sub_f32 v18, v{44+k}, v16", "v_fmac_f32 v17, v18, v18")
    rowred("v_add_f32", ["v17"]); xrow("v_add_f32", ["v17"], ["v18"], which=(16,))
    def lnstats(m, v):
        rne(m, m); rne(v, v); a(f"v_add_f32 {v}, 0x3727c5ac, {v}"); rne(v, v); a(f"v_sqrt_f32 {v}, {v}"); rne(v, v); a(f"v_rcp_f32 {v}, {v}")
    a("v_mul_f32 v17, 0x3ae38e39, v17"); lnstats("v16", "v17")
    a("s_waitcnt vmcnt(0)", "v_lshlrev_b32 v20, 16, v104", "v_and_b32 v21, 0xffff0000, v104", "v_lshlrev_b32 v22, 16, v105", "v_and_b32 v23, 0xffff0000, v105")
    for k in range(4): a(f"v_sub_f32 v{20+k}, v{20+k}, v16"); rne(f"v{20+k}", f"v{20+k}"); a(f"v_mul_f32 v{20+k}, v{20+k}, v17"); rne(f"v{20+k}", f"v{20+k}")
    a("v_lshlrev_b32 v8, 6, v1", "Lp1:", "buffer_load_dword v9, v8, s[56:59], 0 offen sc1", "s_waitcnt vmcnt(0)", "v_cmp_eq_u32 vcc, 64, v9", "s_cmp_eq_u32 vcc_lo, 15", "s_cbranch_scc1 Lp1d",
      "s_sleep 4", "s_sub_u32 s70, s70, 1", "s_cmp_gt_i32 s70, 0", "s_cbranch_scc1 Lp1", "Lp1d:")
    for k in range(9): a(f"s_mov_b32 s15, {MODP+k*27648}", f"buffer_load_dwordx4 v[{32+8*k}:{35+8*k}], v10, {WS}, s15 offen sc1", f"buffer_load_dwordx4 v[{36+8*k}:{39+8*k}], v10, {WS}, s15 offen offset:2304 sc1")
    set_flag(F_P1); stamp(1)
    for k in range(1, 9):
        a(f"s_waitcnt vmcnt({16-2*k})")
        for e in range(8): a(f"v_add_f32 v{32+e}, v{32+e}, v{32+8*k+e}")
    for k in range(4):
        rne(f"v{32+k}", f"v{32+k}"); rne(f"v{36+k}", f"v{36+k}"); a(f"v_add_f32 v{36+k}, 1.0, v{36+k}"); rne(f"v{36+k}", f"v{36+k}")
        a(f"v_mul_f32 v{20+k}, v{20+k}, v{36+k}"); rne(f"v{20+k}", f"v{20+k}"); a(f"v_add_f32 v{20+k}, v{20+k}, v{32+k}", f"v_cvt_pk_bf16_f32 v{20+k}, v{20+k}, v{20+k}", f"ds_write_b32 v111, v{20+k} offset:{80*k}")
    set_flag(F_H)
    a("Lbulk:")
    srd(48, P["wo"], 4096*1152)
    a("s_lshl_b32 s11, s5, 7", "s_and_b32 s12, s7, 1", "s_lshl_b32 s12, s12, 6", "s_add_u32 s11, s11, s12", "v_lshrrev_b32 v6, 3, v2", "v_lshl_add_u32 v6, v3, 4, v6", "v_add_u32 v6, s11, v6",
      "v_mul_u32_u24 v6, 1152, v6", "v_and_b32 v7, 7, v1", "v_lshl_add_u32 v6, v7, 4, v6", "s_lshl_b32 s15, s4, 7")
    for n in range(8): a(f"buffer_load_dwordx4 v[{32+4*n}:{35+4*n}], v6, s[48:51], s15 offen{NTW}", "s_add_u32 s15, s15, 2304", f"s_waitcnt vmcnt({HDEPTH})")
    a("s_cmp_lg_u32 s4, 0", "s_cbranch_scc1 Lb1", "s_movk_i32 s15, 1024")
    for n in range(8): a(f"buffer_load_dwordx4 v[{64+4*n}:{67+4*n}], v6, s[48:51], s15 offen{NTW}", "s_add_u32 s15, s15, 2304", f"s_waitcnt vmcnt({HDEPTH})")
    a("Lb1:", "s_cmp_lg_u32 s69, 1", "s_cbranch_scc1 Lb3")
    a("s_cmp_lt_u32 s4, 4", "s_cselect_b32 s52, s28, s30", "s_cselect_b32 s53, s29, s31", "s_and_b32 s53, s53, 0xffff", f"s_mov_b32 s54, {576*9216}", "s_mov_b32 s55, 0x20000")
    a("v_lshrrev_b32 v6, 2, v1", "v_mul_u32_u24 v6, 9216, v6", "v_and_b32 v7, 3, v1", "v_lshl_add_u32 v6, v7, 4, v6", "s_lshl_b32 s11, s10, 6", "v_add_u32 v6, s11, v6",
      "s_and_b32 s11, s4, 3", f"s_mul_i32 s15, s11, {9*16*9216}", "s_mul_i32 s12, s4, 9216", f"s_add_u32 s12, s12, {GU}")
    for n in range(9): a("s_mov_b32 m0, s12", "s_add_u32 s12, s12, 1024", f"buffer_load_dwordx4 v6, s[52:55], s15 offen{NTW} lds", f"s_add_u32 s15, s15, {16*9216}", f"s_waitcnt vmcnt({HDEPTH})")
    a("s_cmp_lt_u32 s4, 3", "s_cbranch_scc1 Lb2")
    srd(56, P["wd"], 4608*1152)
    a("s_lshl_b32 s11, s10, 5", "v_add_u32 v6, s11, v3", "v_mul_u32_u24 v6, 1152, v6", "s_sub_u32 s12, s4, 3", "s_lshl_b32 s12, s12, 8", "v_lshl_add_u32 v7, v2, 4, s12",
      "v_cmp_gt_u32 vcc, 1152, v7", "v_add_u32 v6, v6, v7", f"v_mov_b32 v8, {OOB}", "v_cndmask_b32 v6, v8, v6, vcc", "s_mov_b32 s15, 0")
    for n in range(8): a(f"buffer_load_dwordx4 v[{72+4*n}:{75+4*n}], v6, s[56:59], s15 offen{NTW}", "s_add_u32 s15, s15, 4608", f"s_waitcnt vmcnt({HDEPTH})")
    a("v_lshrrev_b32 v6, 1, v3", "v_mul_u32_u24 v6, 36, v6", "v_lshrrev_b32 v7, 5, v7", "v_add_u32 v6, v6, v7", "v_mul_u32_u24 v6, 9216, v6", "v_and_b32 v7, 1, v2", "v_lshl_add_u32 v6, v7, 5, v6",
      "v_and_b32 v7, 1, v3", "v_lshl_add_u32 v6, v7, 4, v6", "s_lshl_b32 s11, s10, 6", f"s_add_u32 s11, s11, {T3}", "v_add_u32 v6, s11, v6", "v_cndmask_b32 v110, v8, v6, vcc")
    a("Lb2:")
    a("v_cmp_gt_u32 vcc, 36, v1", "s_mul_i32 s11, s4, 576", "v_lshl_add_u32 v6, v1, 4, s11", f"v_mov_b32 v8, {OOB}", "v_cndmask_b32 v111, v8, v6, vcc", f"s_mov_b32 s12, {CB}", f"s_mov_b32 s13, {SB}")
    spin_lds(F_P1)
    poll([f"buffer_load_dwordx4 v[24:27], v111, {WS}, s12 offen sc1", f"buffer_load_dwordx4 v[28:31], v111, {WS}, s13 offen sc1"], range(24, 32), "v8", sleep=8)
    a("Lb3:")
    a("s_cmp_lg_u32 s4, 1", "s_cbranch_scc1 Lb4")
    spin_lds(F_Q)
    a("v_cmp_gt_u32 vcc, 32, v1", "v_lshlrev_b32 v6, 3, v1", f"v_mov_b32 v8, {OOB}", "v_cndmask_b32 v6, v8, v6, vcc", "s_and_b32 s11, s3, 0xfc", "s_lshl_b32 s11, s11, 6", f"s_add_u32 s12, s11, {ML}")
    poll([f"buffer_load_dwordx2 v[16:17], v6, {WS}, s12 offen sc1"], [16, 17], "v8", sleep=16)
    a("v_mov_b32 v18, v16"); rowred("v_max_f32", ["v18"]); xrow("v_max_f32", ["v18"], ["v19"], which=(16,))
    a("v_sub_f32 v16, v16, v18", "v_mul_f32 v16, 0x3fb8aa3b, v16", "v_exp_f32 v16, v16", "v_mul_f32 v17, v16, v17")
    rowred("v_add_f32", ["v17"]); xrow("v_add_f32", ["v17"], ["v19"], which=(16,))
    a("v_rcp_f32 v17, v17", "v_lshlrev_b32 v6, 2, v1", f"v_add_u32 v7, {WTAB}, v6", f"v_add_u32 v6, {DUMP}, v6", "v_cmp_gt_u32 vcc, 32, v1", "v_cndmask_b32 v6, v6, v7, vcc", "v_mul_f32 v16, v16, v17", "ds_write_b32 v6, v16")
    set_flag(F_W)
    a("Lb4:")
    a("v_lshrrev_b32 v6, 1, v2", "v_lshlrev_b32 v6, 13, v6", "v_and_b32 v7, 1, v2", "v_lshl_add_u32 v6, v7, 5, v6", "v_lshl_add_u32 v6, v3, 4, v6",
      "v_and_b32 v7, 40, v1", "v_cmp_eq_u32 vcc, 0, v7", f"v_mov_b32 v8, {OOB}", "v_cndmask_b32 v106, v8, v6, vcc",
      "s_mul_i32 s11, s6, 36", "s_lshl_b32 s11, s11, 13", "s_lshl_b32 s12, s5, 2", "s_add_u32 s12, s12, s7", "s_lshl_b32 s12, s12, 6", "s_add_u32 s11, s11, s12", f"s_add_u32 s11, s11, {T1}",
      "s_lshl_b32 s12, s4, 15", "s_add_u32 s12, s12, s11", f"s_add_u32 s13, s11, {8<<15}", "v_lshlrev_b32 v6, 2, v1")
    a("s_waitcnt vmcnt(0) lgkmcnt(0)", "s_barrier")
    stamp(5)
    for k in range(8): a(f"ds_read2st64_b32 v[{112+2*k}:{113+2*k}], v6 offset0:{OPART//256+2*k} offset1:{OPART//256+2*k+1}")
    for k in range(0, 8, 2): a(f"s_waitcnt lgkmcnt({6-k})", f"v_pk_add_f32 v[{112+2*k}:{113+2*k}], v[{112+2*k}:{113+2*k}], v[{114+2*k}:{115+2*k}]")
    a("v_pk_add_f32 v[112:113], v[112:113], v[116:117]", "v_pk_add_f32 v[120:121], v[120:121], v[124:125]", "v_pk_add_f32 v[112:113], v[112:113], v[120:121]", "v_add_f32 v16, v112, v113", "v_cvt_pk_bf16_f32 v16, v16, v16")
    def womerge(D, T, so):
        for k in range(4): a(f"v_permlane32_swap_b32 v{D+k}, v{T+k}")
        for k in range(4): a(f"v_add_f32_dpp v{D+k}, v{T+k}, v{D+k} row_ror:8 row_mask:0xf bank_mask:0xf")
        a(f"buffer_store_dwordx4 v[{D}:{D+3}], v106, {WS}, {so} offen sc1")
    a("s_cmp_eq_u32 s4, 0", "s_cbranch_scc1 Lwo0")
    for n in range(8): bc2(f"v{20+(n&1)}", "v16", 2*n, "v16", 2*n+1); mkA(112+4*(n&1), f"v{20+(n&1)}"); mfma(120, 112+4*(n&1), 32+4*n, n == 0)
    womerge(120, 8, "s12")
    a("s_branch Lwod", "Lwo0:")
    for n in range(8): bc2(f"v{20+(n&1)}", "v16", 2*n, "v16", 2*n+1); mkA(112+4*(n&1), f"v{20+(n&1)}"); mfma(120, 112+4*(n&1), 32+4*n, n == 0); mfma(124, 112+4*(n&1), 64+4*n, n == 0)
    womerge(120, 8, "s12"); womerge(124, 16, "s13")
    a("Lwod:")
    stamp(6)
    a("s_cmp_eq_u32 s69, 1", "s_cbranch_scc1 Lffn", "s_cmp_eq_u32 s69, 2", "s_cbranch_scc1 Lred", "s_branch Lfin")
    a("Lred:")
    srd(48, P["out"], 2304)
    a("v_lshlrev_b32 v6, 4, v1", "s_lshl_b32 s12, s68, 13", "s_lshl_b32 s11, s4, 10", "s_add_u32 s12, s12, s11", f"s_add_u32 s12, s12, {T1}",
      "s_mul_i32 s13, s68, 9216", "s_add_u32 s13, s13, s11", f"s_add_u32 s13, s13, {T3}", "s_add_u32 s14, s13, 8192", "s_cmp_eq_u32 s4, 0", f"s_cselect_b32 s14, s14, {OOB}",
      "v_and_b32 v7, 12, v1", "v_cmp_eq_u32 vcc, 0, v7", "v_and_b32 v7, 3, v1", "v_lshlrev_b32 v7, 4, v7", "v_lshl_add_u32 v7, v3, 6, v7", "s_lshl_b32 s11, s4, 8", f"s_add_u32 s11, s11, {RPART}",
      "v_add_u32 v7, s11, v7", f"v_add_u32 v8, {DUMP}, v6", "v_cndmask_b32 v7, v8, v7, vcc", "v_lshlrev_b32 v9, 2, v2", "v_lshl_add_u32 v9, v3, 9, v9", f"v_add_u32 v9, {RPART}, v9")
    def final_sum():
        for k in range(4): a(f"ds_read2_b32 v[{40+2*k}:{41+2*k}], v9 offset0:{32*k} offset1:{32*k+16}")
        a("s_waitcnt lgkmcnt(2)", "v_pk_add_f32 v[40:41], v[40:41], v[42:43]", "s_waitcnt lgkmcnt(0)", "v_pk_add_f32 v[44:45], v[44:45], v[46:47]", "v_pk_add_f32 v[40:41], v[40:41], v[44:45]", "v_add_f32 v40, v40, v41")
        xrow("v_add_f32", ["v40"], ["v41"]); rne("v40", "v40")
    poll([f"buffer_load_dwordx4 v[32:35], v6, {WS}, s12 offen sc1"], range(32, 36), "v8")
    rowred("v_add_f32", [f"v{32+k}" for k in range(4)], steps=(8, 4))
    a("ds_write_b128 v7, v[32:35]", "s_waitcnt lgkmcnt(0)", "s_barrier")
    stamp(7)
    a("s_cmp_lg_u32 s4, 1", "s_cbranch_scc1 Lred2")
    final_sum(); a("v_mul_f32 v40, v40, v108"); rne("v40", "v40"); a("v_add_f32 v107, v107, v40"); rne("v107", "v107")
    a("s_lshl_b32 s11, s68, 6", f"s_add_u32 s11, s11, {T2}", f"buffer_store_dword v107, v111, {WS}, s11 offen sc1")
    a("Lred2:")
    poll([f"buffer_load_dwordx4 v[32:35], v6, {WS}, s13 offen sc1", f"buffer_load_dwordx4 v[36:39], v6, {WS}, s14 offen sc1"], range(32, 40), "v8")
    a("v_pk_add_f32 v[32:33], v[32:33], v[36:37]", "v_pk_add_f32 v[34:35], v[34:35], v[38:39]")
    rowred("v_add_f32", [f"v{32+k}" for k in range(4)], steps=(8, 4))
    a("ds_write_b128 v7, v[32:35]", "s_waitcnt lgkmcnt(0)", "s_barrier")
    a("s_cmp_lg_u32 s4, 1", "s_cbranch_scc1 Lfin")
    final_sum(); a("v_mul_f32 v40, v40, v109"); rne("v40", "v40"); a("v_add_f32 v40, v107, v40", "v_cvt_pk_bf16_f32 v40, v40, v40", "buffer_store_short v40, v110, s[48:51], 0 offen")
    a("s_branch Lfin")
    a("Lffn:")
    a("v_lshrrev_b32 v6, 2, v2", "v_lshl_add_u32 v6, v3, 3, v6", "v_lshlrev_b32 v6, 6, v6", "v_and_b32 v7, 3, v1", "v_lshl_add_u32 v6, v7, 3, v6",
      "s_bfe_u32 s11, s4, 0x10001", "s_mul_i32 s11, s11, 36864", "s_and_b32 s12, s4, 1", "s_lshl_b32 s12, s12, 5", "s_add_u32 s11, s11, s12", "s_lshr_b32 s12, s4, 2", f"s_mul_i32 s13, s12, {9*2048}",
      "s_add_u32 s11, s11, s13", f"s_add_u32 s11, s11, {GU}", "v_add_u32 v6, s11, v6")
    for n in range(9): a(f"ds_read_b64_tr_b16 v[{32+4*n}:{33+4*n}], v6 offset:{2048*n}", f"ds_read_b64_tr_b16 v[{34+4*n}:{35+4*n}], v6 offset:{2048*n+256}")
    a("v_and_b32 v7, 1, v1", "v_mul_u32_u24 v7, 1152, v7", "v_lshl_add_u32 v7, v3, 4, v7", "s_mul_i32 s13, s12, 576", f"s_add_u32 s13, s13, {H2T}", "v_add_u32 v104, s13, v7")
    a("s_mul_i32 s13, s4, 288", f"s_add_u32 s13, s13, {H2T}", "v_lshl_add_u32 v7, v1, 3, s13", "v_lshlrev_b32 v8, 3, v1", f"v_add_u32 v8, {DUMP}, v8", "v_cmp_gt_u32 s[14:15], 36, v1", "v_cndmask_b32 v105, v8, v7, s[14:15]")
    a("s_lshl_b32 s13, s4, 7", f"s_add_u32 s13, s13, {GTAB}", "v_lshlrev_b32 v7, 6, v2", "v_lshl_add_u32 v7, v3, 4, v7", "v_add_u32 v7, s13, v7", "v_lshlrev_b32 v8, 4, v1", f"v_add_u32 v8, {DUMP}, v8",
      "v_cmp_gt_u32 vcc, 2, v2", "v_cndmask_b32 v107, v8, v7, vcc")
    a("v_and_b32 v7, 7, v2", "v_lshl_add_u32 v7, v7, 2, v3", "v_lshrrev_b32 v8, 4, v7", "v_and_b32 v7, 15, v7", "v_lshlrev_b32 v7, 2, v7", "v_lshl_add_u32 v7, v8, 7, v7", "v_lshrrev_b32 v8, 3, v2",
      "v_lshl_add_u32 v7, v8, 6, v7", f"v_add_u32 v108, {GTAB}, v7")
    a("s_lshl_b32 s13, s4, 3", f"s_add_u32 s13, s13, {STAT}", "v_mov_b32 v109, s13", "s_lshl_b32 s13, s12, 5", f"s_add_u32 s13, s13, {STAT}", "v_mov_b32 v9, s13", f"s_mov_b32 s12, {T2}")
    poll([f"buffer_load_dwordx4 v[16:19], v111, {WS}, s12 offen sc1"], range(16, 20), "v8")
    stamp(7)
    a("v_readfirstlane_b32 s11, v16")
    for k in range(4): a(f"v_subrev_f32 v{20+k}, s11, v{16+k}")
    a("v_add_f32 v10, v20, v21", "v_mul_f32 v11, v20, v20", "v_add_f32 v10, v10, v22", "v_fmac_f32 v11, v21, v21", "v_add_f32 v10, v10, v23", "v_fmac_f32 v11, v22, v22", "v_fmac_f32 v11, v23, v23",
      "v_cndmask_b32 v10, 0, v10, s[14:15]", "v_cndmask_b32 v11, 0, v11, s[14:15]")
    rowred("v_add_f32", ["v10", "v11"]); xrow("v_add_f32", ["v10", "v11"], ["v20", "v21"])
    a("v_mul_f32 v20, 0x3be38e39, v10", "v_fma_f32 v11, -v20, v10, v11", "v_add_f32 v10, s11, v20", "ds_write_b64 v109, v[10:11]", "s_waitcnt lgkmcnt(0)", "s_barrier",
      "ds_read_b128 v[112:115], v9", "ds_read_b128 v[116:119], v9 offset:16", "s_waitcnt lgkmcnt(0)",
      "v_add_f32 v10, v112, v114", "v_add_f32 v11, v116, v118", "v_add_f32 v20, v113, v115", "v_add_f32 v21, v117, v119", "v_add_f32 v10, v10, v11", "v_add_f32 v11, v20, v21", "v_mul_f32 v10, 0x3e800000, v10",
      "v_sub_f32 v112, v112, v10", "v_sub_f32 v114, v114, v10", "v_sub_f32 v116, v116, v10", "v_sub_f32 v118, v118, v10",
      "v_mul_f32 v20, v112, v112", "v_fmac_f32 v20, v114, v114", "v_fmac_f32 v20, v116, v116", "v_fmac_f32 v20, v118, v118", "v_mul_f32 v11, 0x3ae38e39, v11", "v_fmac_f32 v11, 0x3e800000, v20")
    lnstats("v10", "v11")
    for k in range(4): a(f"v_sub_f32 v{16+k}, v{16+k}, v10")
    def rne2(x, y): a(f"v_cvt_pk_bf16_f32 v{y}, v{x}, v{y}", f"v_lshlrev_b32 v{x}, 16, v{y}", f"v_and_b32 v{y}, 0xffff0000, v{y}")
    rne2(16, 17); rne2(18, 19)
    for k in range(4): a(f"v_mul_f32 v{16+k}, v{16+k}, v11")
    rne2(16, 17); rne2(18, 19)
    for k in range(4): a(f"v_mul_f32 v{16+k}, v{16+k}, v{24+k}")
    rne2(16, 17); rne2(18, 19)
    for k in range(4): a(f"v_add_f32 v{16+k}, v{16+k}, v{28+k}")
    a("v_cvt_pk_bf16_f32 v16, v16, v17", "v_cvt_pk_bf16_f32 v17, v18, v19", "ds_write_b64 v105, v[16:17]", "s_waitcnt lgkmcnt(0)", "s_barrier")
    hb = [8, 16, 20, 24, 28, 68, 112, 116, 124]
    for n in range(9): a(f"ds_read_b128 v[{hb[n]}:{hb[n]+3}], v104 offset:{64*n}")
    for n in range(9): a(f"s_waitcnt lgkmcnt({8-n})"); mfma(120, 32+4*n, hb[n], n == 0)
    a("ds_write_b128 v107, v[120:123]", "s_waitcnt lgkmcnt(0)", "s_barrier")
    a("s_cmp_lt_u32 s4, 3", "s_cbranch_scc1 Lfin")
    a("ds_read2st64_b32 v[16:17], v108 offset0:0 offset1:1", "ds_read2st64_b32 v[18:19], v108 offset0:2 offset1:3", "s_waitcnt lgkmcnt(0)", "v_pk_add_f32 v[16:17], v[16:17], v[18:19]")
    rne2(16, 17)
    a("v_mul_f32 v18, v16, v16", "v_mov_b32 v19, 0xc0135761", "v_fmac_f32 v19, 0xbdd2d3e8, v18", "v_mul_f32 v18, v16, v19", "v_exp_f32 v18, v18", "v_add_f32 v18, 1.0, v18", "v_rcp_f32 v18, v18", "v_mul_f32 v16, v16, v18")
    rne("v16", "v16"); a("v_mul_f32 v16, v16, v17", "v_cvt_pk_bf16_f32 v16, v16, v16")
    for n in range(8): bc2(f"v{20+(n&1)}", "v16", n, "v16", 8+n); mkA(112+4*(n&1), f"v{20+(n&1)}"); mfma(120, 112+4*(n&1), 72+4*n, n == 0)
    a(f"buffer_store_dwordx4 v[120:123], v110, {WS}, 0 offen sc1")
    a("Lfin:")
    if TS:
        stamp(10)
        a("s_cmp_eq_u32 s4, 1", "s_cbranch_scc1 Lts1", "s_cmp_eq_u32 s4, 2", "s_cbranch_scc1 Lts2", "s_cmp_eq_u32 s4, 3", "s_cbranch_scc1 Lts3", "s_endpgm")
        a("Lts1:"); a("s_waitcnt lgkmcnt(0)", "s_mov_b64 s[94:95], s[92:93]"); flush_stamps([9, 11]); a("s_endpgm")
        a("Lts2:"); flush_stamps([2]); a("s_endpgm")
        a("Lts3:"); flush_stamps([0, 1, 5, 6, 7, 10])
    a("Lend:")
    hdr = open("adaLN_cond__mha_block_cached__geglu_ffn__decode.s.ref").read().split("; Override launch")[0]
    return (hdr + f"; @launch grid=(256,1,1) block=(1024,1,1) lds={LDSN}\n.amdgcn_target \"amdgcn-amd-amdhsa--gfx950\"\n.text\n.globl {KN}\n.p2align 8\n.type {KN},@function\n{KN}:\n"
        + a.text() + f"""    s_endpgm
.section .rodata,"a"
.p2align 6
.amdhsa_kernel {KN}
  .amdhsa_next_free_vgpr 128
  .amdhsa_next_free_sgpr 102
  .amdhsa_accum_offset 128
  .amdhsa_group_segment_fixed_size 0
  .amdhsa_kernarg_size 112
  .amdhsa_user_sgpr_count 2
  .amdhsa_user_sgpr_kernarg_segment_ptr 1
  .amdhsa_system_sgpr_workgroup_id_x 1
.end_amdhsa_kernel
""")
if __name__ == "__main__":
    out = sys.argv[1]; kw = {}
    for x in sys.argv[2:]:
        k, v = x.split("="); kw[k] = eval(v)
    open(out, "w").write(gen(**kw))
```

```python
import sys
from asmlib import Asm
KN = "adaLN_cond__mha_block_cached__geglu_ffn__decode_kernel"
QP=0; T1=0xC0000; T3=0x150000; ML=0x1F2000; CB=0x1F6000; SB=0x1F7200; EP=0x1F9000; MODP=0x200000; T2=0x240000; PEX=0x300000; WSN=0x400000
OOB=0x40000000
OPART=0; RPART=4096; HTAB=6400; QTAB=7040; WTAB=7296; STAT=7424; FL=7488; H2T=7552; GTAB=9856; DUMP=10880; GU=12288; LDSN=86016
F_Q=FL; F_H=FL+4; F_M=FL+8; F_W=FL+12
def TSR(k): return {13: 100, 14: 90}.get(k, 72+2*k)
def br4(r): return int(f"{r:04b}"[::-1], 2)
def gen(RING=20, DEPTH=2, HDEPTH=1, CATCH=2, TS=False, NT=" nt", NTW=" nt", PPOS=8, PDEPTH=2, PSLEEP=2, WQD=1, BULKWAIT=0, R2=8, MWAIT=1):
    a = Asm()
    def srd(r, p, n): a(f"s_mov_b32 s{r}, s{p}", f"s_and_b32 s{r+1}, s{p+1}, 0xffff", f"s_mov_b32 s{r+2}, {n}", f"s_mov_b32 s{r+3}, 0x20000")
    P = dict(x=16, K=18, V=20, wq=22, wo=24, wg=28, wu=30, wd=32, c=34, wm=36, out=38, dbg=40, ws=42)
    WS = "s[44:47]"
    def stamp(k):
        if TS: a(f"s_memrealtime s[{TSR(k)}:{TSR(k)+1}]")
    def flush_stamps(ks):
        if not TS: return
        a("s_waitcnt lgkmcnt(0)", "s_lshl_b32 s11, s2, 7", "s_add_u32 s11, s11, 0x8000000", "v_mov_b32 v4, s11", "s_mov_b64 exec, 1")
        for k in ks: a(f"v_mov_b32 v6, s{TSR(k)}", f"v_mov_b32 v7, s{TSR(k)+1}", f"global_store_dwordx2 v4, v[6:7], s[42:43] offset:{8*k}", "s_waitcnt vmcnt(0)")
        a("s_mov_b64 exec, -1")
    def spin_lds(flag, t="v4"):
        l = a.label("Lsp"); d = a.label("Lspd")
        a(f"{l}:", f"ds_read_b32 {t}, v5 offset:{flag}", "s_waitcnt lgkmcnt(0)", f"v_readfirstlane_b32 s11, {t}", "s_cmp_lg_u32 s11, 0", f"s_cbranch_scc1 {d}",
          "s_sleep 1", "s_sub_u32 s70, s70, 1", "s_cmp_gt_i32 s70, 0", f"s_cbranch_scc1 {l}", f"{d}:")
    def set_flag(flag, t="v4"):
        a("s_waitcnt lgkmcnt(0)", f"v_mov_b32 {t}, 1", f"ds_write_b32 v5, {t} offset:{flag}")
    def tagp(rs, rnd=False):
        for r in rs:
            if rnd: a(f"v_add_u32 v{r}, 0x200, v{r}")
        for r in rs: a(f"v_bfi_b32 v{r}, s96, v0, v{r}")
    def poll(loads, rs, t, sleep=0, first=True, valid=None, clean=True):
        l = a.label("Lpo"); d = a.label("Lpod"); c = a.label("Lpoc")
        if not first: a(f"s_branch {c}")
        a(f"{l}:"); a(*loads); a("s_waitcnt vmcnt(0)"); a(f"{c}:")
        rs = list(rs); a(f"v_xor_b32 {t}, v{rs[0]}, v0")
        for r in rs[1:]: a(f"v_bitop3_b32 {t}, {t}, v{r}, v0 bitop3:0xf6")
        a(f"v_and_b32 {t}, s96, {t}", f"v_cmp_ne_u32 vcc, 0, {t}")
        if valid: a(f"s_and_b64 vcc, vcc, {valid}", f"s_cbranch_scc0 {d}")
        else: a(f"s_cbranch_vccz {d}")
        if sleep: a(f"s_sleep {sleep}")
        a("s_sub_u32 s70, s70, 1", "s_cmp_gt_i32 s70, 0", f"s_cbranch_scc1 {l}", f"{d}:")
        if clean:
            for r in rs: a(f"v_and_b32 v{r}, s98, v{r}")
    def rne(d, s): a(f"v_cvt_pk_bf16_f32 {d}, {s}, {s}", f"v_and_b32 {d}, 0xffff0000, {d}")
    def rowred(op, rs, steps=(8,4,2,1)):
        for st in steps:
            for r in rs: a(f"{op}_dpp {r}, {r}, {r} row_ror:{st} row_mask:0xf bank_mask:0xf")
    def xrow(op, rs, ts, which=(16,32)):
        for wd in which:
            for r, t in zip(rs, ts): a(f"v_mov_b32 {t}, {r}")
            for r, t in zip(rs, ts): a(f"v_permlane{wd}_swap_b32 {r}, {t}")
            for r, t in zip(rs, ts): a(f"{op} {r}, {r}, {t}")
    def masks():
        a("v_and_b32 v4, 7, v1", "v_and_b32 v6, 1, v1", "v_lshlrev_b32 v6, 4, v6", "v_mov_b32 v7, 0xffff", "v_lshlrev_b32 v6, v6, v7", "v_lshrrev_b32 v4, 1, v4")
        for r in range(4): a(f"v_cmp_eq_u32 vcc, {r}, v4", f"v_cndmask_b32 v{12+r}, 0, v6, vcc")
    def mkA(A, pp):
        for r in range(4): a(f"v_and_b32 v{A+r}, {pp}, v{12+r}")
    def bc2(pp, lo, nlo, hi, nhi):
        a(f"v_mov_b32_dpp {pp}, {lo} row_newbcast:{nlo} row_mask:0xf bank_mask:0x3", f"v_mov_b32_dpp {pp}, {hi} row_newbcast:{nhi} row_mask:0xf bank_mask:0xc")
    def mfma(D, A, B, first): a(f"v_mfma_f32_16x16x32_bf16 v[{D}:{D+3}], v[{A}:{A+3}], v[{B}:{B+3}], " + ("0" if first else f"v[{D}:{D+3}]"))
    a("s_cmp_ge_u32 s2, 256", "s_cbranch_scc1 Lend")
    stamp(0)
    a("s_load_dwordx16 s[16:31], s[0:1], 0", "s_load_dwordx8 s[32:39], s[0:1], 64", "s_load_dwordx4 s[40:43], s[0:1], 96")
    a("v_lshrrev_b32 v2, 6, v0", "v_and_b32 v1, 63, v0", "v_mov_b32 v5, 0", "v_readfirstlane_b32 s4, v2")
    a("s_and_b32 s9, s2, 7", "s_lshr_b32 s8, s2, 3", "s_lshl_b32 s3, s9, 5", "s_or_b32 s3, s3, s8")
    a("s_lshr_b32 s5, s3, 3", "s_bfe_u32 s6, s3, 0x10002", "s_and_b32 s7, s3, 3", "s_mov_b32 s70, 0x100000")
    a("v_and_b32 v2, 15, v1", "v_lshrrev_b32 v3, 4, v1")
    masks()
    a("s_waitcnt lgkmcnt(0)", f"s_add_u32 s12, s42, {EP}", "s_addc_u32 s13, s43, 0", "s_load_dword s97, s[12:13], 0", "s_movk_i32 s96, 0x3ff", "s_mov_b32 s98, 0xfffffc00")
    srd(44, P["ws"], WSN)
    a("s_cmp_lt_u32 s4, 8", "s_cbranch_scc1 Lhelper")
    a("s_sub_u32 s4, s4, 8")
    srd(48, P["K"], 0x4000000); srd(52, P["V"], 0x4000000)
    a("s_lshl_b32 s11, s6, 5", "s_add_u32 s11, s11, s5", "s_lshl_b32 s11, s11, 20", "s_lshl_b32 s12, s4, 15", "s_add_u32 s11, s11, s12",
      "s_lshl_b32 s12, s7, 18", "s_add_u32 s12, s12, s11", "s_xor_b32 s13, s7, 1", "s_lshl_b32 s13, s13, 18", "s_add_u32 s13, s13, s11")
    a("v_lshl_add_u32 v6, v1, 4, s12")
    a("v_bfe_u32 v4, v1, 3, 1", "v_lshl_add_u32 v4, v4, 2, v3", "v_lshlrev_b32 v4, 8, v4", "v_and_b32 v7, 7, v1", "v_lshl_add_u32 v4, v7, 4, v4",
      "s_and_b32 s14, s7, 1", "s_lshl_b32 s14, s14, 7", "v_add_u32 v4, s14, v4", "v_add_u32 v7, s12, v4", "v_add_u32 v30, s13, v4")
    a("s_mov_b32 s64, 0xcccccccc", "s_mov_b32 s65, 0xcccccccc", "s_mov_b32 s66, 0xaaaaaaaa", "s_mov_b32 s67, 0xaaaaaaaa")
    a("s_barrier")
    ops = []
    def slot(i): return 32 + 4*(i % RING)
    def issue(i):
        r = slot(i)
        if i < 32: a(f"s_movk_i32 s15, {i*1024}", f"buffer_load_dwordx4 v[{r}:{r+3}], v6, s[48:51], s15 offen{NT}")
        else:
            n = (i-32) % 16; v = "v7" if i < 48 else "v30"
            a(f"s_movk_i32 s15, {n*2048}", f"buffer_load_dwordx4 v[{r}:{r+3}], {v}, s[52:55], s15 offen{NT}")
        ops.append(i)
    done = [0]
    def waitn(n):
        if len(ops) - n > done[0]: done[0] = len(ops) - n; a(f"s_waitcnt vmcnt({n})")
    def wait_for(tag): waitn(len(ops) - 1 - ops.index(tag))
    def procK(i):
        wait_for(i+1); r0 = slot(i); r1 = slot(i+1)
        for k in range(4):
            a(f"v_dot2_f32_bf16 v20, v{r0+k}, v{8+k}, " + ("0" if k == 0 else "v20"), f"v_dot2_f32_bf16 v21, v{r1+k}, v{8+k}, " + ("0" if k == 0 else "v21"))
        j = i % 16; T = 22 + (j >> 1 & 1)
        a(f"v_add_f32_dpp v{T}, v20, v20 row_ror:8 row_mask:0xf bank_mask:0x3", f"v_add_f32_dpp v{T}, v21, v21 row_ror:8 row_mask:0xf bank_mask:0xc")
        if j & 2:
            U = 24 + (j >> 2 & 1)
            a(f"v_add_f32_dpp v{U}, v22, v22 row_half_mirror row_mask:0xf bank_mask:0x5", f"v_add_f32_dpp v{U}, v23, v23 row_half_mirror row_mask:0xf bank_mask:0xa")
            if j & 4:
                W = 26 + (j >> 3 & 1)
                a("v_cndmask_b32 v28, v24, v25, s[64:65]", "v_cndmask_b32 v29, v25, v24, s[64:65]", f"v_add_f32_dpp v{W}, v29, v28 quad_perm:[2,3,0,1] row_mask:0xf bank_mask:0xf")
                if j & 8:
                    a("v_cndmask_b32 v28, v26, v27, s[66:67]", "v_cndmask_b32 v29, v27, v26, s[66:67]", f"v_add_f32_dpp v{16+i//16}, v29, v28 quad_perm:[1,0,3,2] row_mask:0xf bank_mask:0xf")
    def softmax():
        a("v_cvt_pk_bf16_f32 v20, v16, v17", "s_mov_b32 s11, 0x3db504f3", "v_lshlrev_b32 v16, 16, v20", "v_and_b32 v17, 0xffff0000, v20",
          "v_mul_f32 v16, s11, v16", "v_mul_f32 v17, s11, v17", "v_cvt_pk_bf16_f32 v20, v16, v17", "v_lshlrev_b32 v16, 16, v20", "v_and_b32 v17, 0xffff0000, v20",
          "v_max_f32 v22, v16, v17")
        rowred("v_max_f32", ["v22"]); xrow("v_max_f32", ["v22"], ["v21"])
        a("s_mov_b32 s11, 0x3fb8aa3b", "v_sub_f32 v16, v16, v22", "v_sub_f32 v17, v17, v22", "v_mul_f32 v16, s11, v16", "v_mul_f32 v17, s11, v17",
          "v_exp_f32 v16, v16", "v_exp_f32 v17, v17", "v_add_f32 v23, v16, v17", "v_cvt_pk_bf16_f32 v16, v16, v16", "v_cvt_pk_bf16_f32 v17, v17, v17",
          "s_mov_b32 s14, 0xffff", "v_bfi_b32 v20, s14, v0, v16", "v_bfi_b32 v21, s14, v0, v17")
        a("s_lshl_b32 s11, s3, 3", "s_add_u32 s11, s11, s4", "s_lshl_b32 s12, s11, 9", f"s_add_u32 s12, s12, {PEX}", "v_lshlrev_b32 v31, 3, v1",
          f"buffer_store_dwordx2 v[20:21], v31, {WS}, s12 offen sc1"); ops.append("pst")
        a("s_xor_b32 s13, s12, 0x1000")
        rowred("v_add_f32", ["v23"]); xrow("v_add_f32", ["v23"], ["v25"]); tagp([22, 23])
        a("v_cmp_eq_u32 vcc, 0, v1", f"v_mov_b32 v24, {OOB}", "v_cndmask_b32 v24, v24, v5, vcc", "s_lshl_b32 s11, s11, 3", f"s_add_u32 s11, s11, {ML}",
          f"buffer_store_dwordx2 v[22:23], v24, {WS}, s11 offen sc1"); ops.append("mlst")
    def procV(i):
        n = (i-32) % 16; par = i >= 48; D = 124 if par else 120; A = 112 + 4*(i & 1); u = n >> 3; n1 = n & 7
        src = f"v{(18 if par else 16)+u}"
        if i == 48:
            wait_for("pld")
            poll([f"buffer_load_dwordx2 v[26:27], v31, {WS}, s13 offen sc1"], [26, 27], "v28", first=False, clean=False)
            a("s_mov_b32 s14, 0x03020302", "v_perm_b32 v18, v26, v26, s14", "v_perm_b32 v19, v27, v27, s14")
        bc2(f"v{20+(i&1)}", src, br4(2*n1), src, br4(2*n1+1)); mkA(A, f"v{20+(i&1)}")
        wait_for(i); mfma(D, A, slot(i), n == 0)
    issued = 0
    for i in range(RING): issue(i); issued += 1; waitn(PDEPTH)
    a("s_waitcnt lgkmcnt(0)", "s_add_u32 s97, s97, 1", "s_and_b32 s99, s97, s96", "v_mov_b32 v0, s99")
    stamp(8)
    spin_lds(F_Q)
    a(f"v_lshlrev_b32 v4, 4, v2", f"ds_read_b128 v[8:11], v4 offset:{QTAB}", "s_waitcnt lgkmcnt(0)")
    proc = 0
    while proc < 64:
        cnt = 0
        while proc < 64 and cnt < CATCH and (proc < issued - DEPTH - (1 if proc < 32 else 0) or issued == 64):
            if proc < 32:
                procK(proc); proc += 2; cnt += 2
                if proc == 32: softmax(); stamp(3)
            else: procV(proc); proc += 1; cnt += 1
        if issued < 64 and issued - proc < RING:
            issue(issued); issued += 1
            if issued == 32 + PPOS + (16 if False else 0) and False: pass
            waitn(DEPTH)
        if "mlst" in ops and "pld" not in ops and proc >= 32 + PPOS:
            a(f"buffer_load_dwordx2 v[26:27], v31, {WS}, s13 offen sc1"); ops.append("pld")
    spin_lds(F_W)
    a("s_lshl_b32 s11, s7, 3", "s_add_u32 s11, s11, s4", "s_lshl_b32 s11, s11, 2", "v_mov_b32 v4, s11", "v_xor_b32 v6, 32, v4",
      f"ds_read_b32 v20, v4 offset:{WTAB}", f"ds_read_b32 v21, v6 offset:{WTAB}")
    a("v_lshrrev_b32 v22, 3, v2", "v_lshrrev_b32 v23, 1, v3", "v_cmp_eq_u32 vcc, v22, v23", "v_and_b32 v23, 7, v1", "v_lshlrev_b32 v23, 5, v23", "v_and_b32 v24, 1, v3",
      "v_lshl_add_u32 v23, v24, 4, v23", "v_lshl_add_u32 v23, v22, 8, v23", "s_lshl_b32 s11, s4, 9", f"s_add_u32 s11, s11, {OPART}", "v_add_u32 v23, s11, v23",
      "v_lshlrev_b32 v24, 4, v1", f"v_add_u32 v24, {DUMP}, v24", "v_cndmask_b32 v23, v24, v23, vcc", "s_waitcnt lgkmcnt(0)")
    for r in range(4): a(f"v_mul_f32 v{120+r}, v20, v{120+r}")
    for r in range(4): a(f"v_fmac_f32 v{120+r}, v21, v{124+r}")
    a("ds_write_b128 v23, v[120:123]", "s_waitcnt lgkmcnt(0)")
    stamp(4)
    a("s_barrier")
    if TS:
        a("s_cmp_lg_u32 s4, 0", "s_cbranch_scc1 Lend"); flush_stamps([3, 4, 8])
    a("s_endpgm")
    a("Lhelper:")
    for r in range(104, 112): a(f"v_mov_b32 v{r}, {OOB}")
    a("s_mul_i32 s10, s9, 18", "s_add_u32 s10, s10, s8")
    a("s_mul_i32 s68, s9, 9", "s_add_u32 s68, s68, s8", "s_sub_u32 s68, s68, 18")
    a("s_mov_b32 s69, 0", "s_cmp_lt_u32 s8, 27", "s_cselect_b32 s69, 2, 0", "s_cmp_lt_u32 s8, 18", "s_cselect_b32 s69, 1, s69")
    a("s_cmp_ge_u32 s68, 36", "s_cselect_b32 s71, 1, 0")
    a("s_cmp_eq_u32 s4, 1", "s_cbranch_scc1 Lw1", "s_cmp_eq_u32 s4, 2", "s_cbranch_scc1 Lw2", "s_cmp_eq_u32 s4, 3", "s_cbranch_scc1 Lw3")
    a("v_mov_b32 v6, 0", "v_mov_b32 v7, 0", "v_mov_b32 v8, 0", "v_mov_b32 v9, 0", f"ds_write_b128 v5, v[6:9] offset:{FL}", "s_waitcnt lgkmcnt(0)", "s_add_u32 s97, s97, 1", "s_and_b32 s99, s97, s96", "v_mov_b32 v0, s99", "s_barrier", "s_branch Lbulk")
    a("Lw1:")
    srd(48, P["wm"], 576*6912); srd(52, P["c"], 2304); srd(60, P["x"], 2304)
    a("s_mul_i32 s11, s3, 7282", "s_lshr_b32 s11, s11, 16", "s_mul_i32 s12, s11, 9", "s_sub_u32 s12, s3, s12")
    a("s_cmp_lt_u32 s3, 243", "s_cbranch_scc1 Lw1a", "s_waitcnt lgkmcnt(0)", "s_add_u32 s97, s97, 1", "s_and_b32 s99, s97, s96", "v_mov_b32 v0, s99", "s_barrier", "s_branch Lw1clr", "Lw1a:")
    a("s_lshl_b32 s13, s12, 6", "v_lshl_add_u32 v6, v2, 2, v3", "v_add_u32 v6, s13, v6", "v_lshlrev_b32 v6, 1, v6",
      "buffer_load_ushort v16, v6, s[52:55], 0 offen", "buffer_load_ushort v17, v6, s[52:55], 0 offen offset:1152")
    a("v_add_u32 v6, s13, v3", "v_mul_u32_u24 v6, 6912, v6", "s_lshl_b32 s14, s11, 8", "v_lshl_add_u32 v6, v2, 4, v6", "v_add_u32 v6, s14, v6")
    for n in range(16): a(f"s_mov_b32 s15, {n*4*6912}", f"buffer_load_dwordx4 v[{32+4*n}:{35+4*n}], v6, s[48:51], s15 offen{NTW}")
    a("s_barrier", "s_waitcnt lgkmcnt(0)", "s_add_u32 s97, s97, 1", "s_and_b32 s99, s97, s96", "v_mov_b32 v0, s99")
    a("s_waitcnt vmcnt(16)")
    for r in (16, 17):
        a(f"v_lshlrev_b32 v{r}, 16, v{r}", f"v_mul_f32 v18, 0xbfb8aa3b, v{r}", "v_exp_f32 v18, v18", "v_add_f32 v18, 1.0, v18", "v_rcp_f32 v18, v18", f"v_mul_f32 v{r}, v{r}, v18", f"v_cvt_pk_bf16_f32 v{r}, v{r}, v{r}")
    for n in range(16):
        bc2(f"v{20+(n&1)}", "v16", n, "v17", n); mkA(112+4*(n&1), f"v{20+(n&1)}"); a(f"s_waitcnt vmcnt({15-n})"); mfma(120, 112+4*(n&1), 32+4*n, n == 0)
    a("v_lshrrev_b32 v6, 1, v3", "v_mul_u32_u24 v6, 13824, v6", "v_and_b32 v7, 1, v3", "v_lshl_add_u32 v6, v7, 4, v6", "v_lshl_add_u32 v6, v2, 5, v6",
      "s_mul_i32 s13, s12, 27648", "s_lshl_b32 s14, s11, 9", "s_add_u32 s13, s13, s14", f"s_add_u32 s13, s13, {MODP}")
    tagp(range(120, 124), True)
    a(f"buffer_store_dwordx4 v[120:123], v6, {WS}, s13 offen sc1"); stamp(13)
    if MWAIT: a("s_waitcnt vmcnt(0)")
    a("Lw1clr:"); set_flag(F_M); stamp(9)
    a("s_cmp_lg_u32 s69, 2", "s_cbranch_scc1 Lbulk")
    spin_lds(F_H)
    a("s_mul_i32 s12, s71, 36", "s_sub_u32 s12, s68, s12", "s_lshl_b32 s12, s12, 4")
    a("v_mul_u32_u24 v6, 576, v3", "v_add3_u32 v6, v6, v2, s12", "v_lshlrev_b32 v6, 2, v6", "s_mul_i32 s13, s71, 13824", f"s_add_u32 s13, s13, {MODP+1152*4}")
    a("s_mul_i32 s14, s71, 576", "s_add_u32 s14, s14, s12", "v_add_u32 v7, s14, v2", "v_lshlrev_b32 v8, 1, v7", "buffer_load_ushort v107, v8, s[60:63], 0 offen")
    poll(sum([[f"s_add_u32 s14, s13, {27648*k}", f"buffer_load_dword v{32+k}, v6, {WS}, s14 offen sc1"] for k in range(9)], []), range(32, 41), "v9", sleep=8)
    for k in range(1, 9): a(f"v_add_f32 v32, v32, v{32+k}")
    rne("v32", "v32"); a("v_add_f32 v33, 1.0, v32"); rne("v33", "v33")
    a("v_cmp_eq_u32 vcc, 2, v3", "v_cndmask_b32 v32, v32, v33, vcc", f"v_mov_b32 v9, {OOB}", f"v_mov_b32 v10, {CB}", "v_cndmask_b32 v9, v9, v10, vcc",
      "v_cmp_eq_u32 vcc, 1, v3", f"v_mov_b32 v10, {SB}", "v_cndmask_b32 v9, v9, v10, vcc", "v_lshl_add_u32 v9, v7, 2, v9", "v_or_b32 v33, v32, v0", f"buffer_store_dword v33, v9, {WS}, 0 offen sc1",
      "v_lshlrev_b32 v10, 2, v2", "v_add_u32 v11, 192, v10", "ds_bpermute_b32 v108, v10, v32", "ds_bpermute_b32 v109, v11, v32", "v_lshlrev_b32 v107, 16, v107",
      "v_cmp_gt_u32 vcc, 16, v1", f"v_mov_b32 v9, {OOB}", "v_cndmask_b32 v110, v9, v8, vcc", "v_mul_u32_u24 v111, 4608, v3", "v_add_u32 v111, v111, v10", "s_waitcnt lgkmcnt(0)", "s_branch Lbulk")
    a("Lw2:")
    srd(48, P["wq"], 576*8192)
    a("s_and_b32 s11, s3, 7", "s_mul_i32 s11, s11, 72", "v_add_u32 v6, s11, v3", "v_lshlrev_b32 v6, 13, v6", "s_lshl_b32 s12, s5, 8", "v_lshl_add_u32 v6, v2, 4, v6", "v_add_u32 v6, s12, v6")
    for n in range(18):
        if WQD < 18 and n == 0: a("s_barrier")
        a(f"s_mov_b32 s15, {n*32768}", f"buffer_load_dwordx4 v[{32+4*n}:{35+4*n}], v6, s[48:51], s15 offen{NTW}")
        if WQD < 18: a(f"s_waitcnt vmcnt({WQD})")
    if WQD >= 18: a("s_barrier")
    a("v_lshrrev_b32 v6, 3, v2", "v_lshl_add_u32 v6, v6, 2, v3", "v_mul_u32_u24 v6, 80, v6")
    a("s_waitcnt lgkmcnt(0)", "s_add_u32 s97, s97, 1", "s_and_b32 s99, s97, s96", "v_mov_b32 v0, s99")
    spin_lds(F_H)
    hr = [16, 20, 24, 104, 108]
    for k in range(5): a(f"ds_read_b128 v[{hr[k]}:{hr[k]+3}], v6 offset:{HTAB+16*k}")
    a("s_waitcnt vmcnt(0) lgkmcnt(0)")
    for n in range(18): mkA(112+4*(n&1), f"v{hr[n>>2]+(n&3)}"); mfma(120, 112+4*(n&1), 32+4*n, n == 0)
    a("v_lshrrev_b32 v6, 1, v3", "v_lshlrev_b32 v6, 9, v6", "v_and_b32 v7, 1, v3", "v_lshl_add_u32 v6, v7, 4, v6", "v_lshl_add_u32 v6, v2, 5, v6", "s_lshl_b32 s13, s3, 10")
    tagp(range(120, 124), True); a(f"buffer_store_dwordx4 v[120:123], v6, {WS}, s13 offen sc1")
    a("v_lshrrev_b32 v6, 5, v1", "v_lshlrev_b32 v6, 12, v6", "v_and_b32 v7, 31, v1", "v_lshl_add_u32 v6, v7, 4, v6", "s_lshl_b32 s13, s5, 13", "s_lshl_b32 s14, s6, 9", "s_add_u32 s13, s13, s14")
    poll([f"buffer_load_dwordx4 v[{32+4*t}:{35+4*t}], v6, {WS}, s13 offen offset:{1024*t} sc1" for t in range(4)], range(32, 48), "v8")
    for k in range(4): a(f"v_add_f32 v{32+k}, v{32+k}, v{36+k}", f"v_add_f32 v{40+k}, v{40+k}, v{44+k}")
    for k in range(4): a(f"v_add_f32 v{32+k}, v{32+k}, v{40+k}")
    xrow("v_add_f32", [f"v{32+k}" for k in range(4)], [f"v{36+k}" for k in range(4)], which=(32,))
    a("v_cvt_pk_bf16_f32 v32, v32, v33", "v_cvt_pk_bf16_f32 v33, v34, v35", "v_lshlrev_b32 v7, 3, v7", f"ds_write_b64 v7, v[32:33] offset:{QTAB}")
    set_flag(F_Q); stamp(2)
    a("s_branch Lbulk")
    a("Lw3:")
    srd(48, P["x"], 2304)
    a("v_lshrrev_b32 v6, 5, v1", "v_and_b32 v7, 31, v1", "v_mul_u32_u24 v8, 1152, v6", "v_mul_u32_u24 v9, 36, v7", "v_add_u32 v9, v8, v9",
      "buffer_load_dwordx4 v[32:35], v9, s[48:51], 0 offen", "buffer_load_dwordx4 v[36:39], v9, s[48:51], 0 offen offset:16", "buffer_load_dword v40, v9, s[48:51], 0 offen offset:32")
    a("s_and_b32 s11, s3, 7", "s_mul_i32 s11, s11, 72", "v_lshl_add_u32 v10, v7, 2, s11", "v_lshl_add_u32 v11, v10, 1, v8", "v_cmp_gt_u32 s[12:13], 18, v7", f"v_mov_b32 v9, {OOB}",
      "v_cndmask_b32 v11, v9, v11, s[12:13]", "buffer_load_dwordx2 v[104:105], v11, s[48:51], 0 offen")
    a("s_barrier")
    a("v_mul_u32_u24 v8, 3456, v6", "v_add_lshl_u32 v10, v10, v8, 2", "v_cndmask_b32 v10, v9, v10, s[12:13]")
    a("v_mul_u32_u24 v8, 320, v6", "v_lshl_add_u32 v8, v7, 2, v8", f"v_add_u32 v8, {HTAB}, v8", f"v_mov_b32 v9, {DUMP}", "v_cndmask_b32 v111, v9, v8, s[12:13]")
    a("s_waitcnt vmcnt(1)")
    for k in range(9): a(f"v_lshlrev_b32 v{44+2*k}, 16, v{32+k}", f"v_and_b32 v{45+2*k}, 0xffff0000, v{32+k}")
    a("v_add_f32 v16, v44, v45")
    for k in range(2, 18): a(f"v_add_f32 v16, v16, v{44+k}")
    rowred("v_add_f32", ["v16"]); xrow("v_add_f32", ["v16"], ["v17"], which=(16,))
    a("v_mul_f32 v16, 0x3ae38e39, v16", "v_mov_b32 v17, 0")
    for k in range(18): a(f"v_sub_f32 v18, v{44+k}, v16", "v_fmac_f32 v17, v18, v18")
    rowred("v_add_f32", ["v17"]); xrow("v_add_f32", ["v17"], ["v18"], which=(16,))
    def lnstats(m, v):
        rne(m, m); rne(v, v); a(f"v_add_f32 {v}, 0x3727c5ac, {v}"); rne(v, v); a(f"v_sqrt_f32 {v}, {v}"); rne(v, v); a(f"v_rcp_f32 {v}, {v}")
    a("v_mul_f32 v17, 0x3ae38e39, v17"); lnstats("v16", "v17")
    a("s_waitcnt vmcnt(0)", "v_lshlrev_b32 v20, 16, v104", "v_and_b32 v21, 0xffff0000, v104", "v_lshlrev_b32 v22, 16, v105", "v_and_b32 v23, 0xffff0000, v105")
    for k in range(4): a(f"v_sub_f32 v{20+k}, v{20+k}, v16"); rne(f"v{20+k}", f"v{20+k}"); a(f"v_mul_f32 v{20+k}, v{20+k}, v17"); rne(f"v{20+k}", f"v{20+k}")
    a("s_waitcnt lgkmcnt(0)", "s_add_u32 s97, s97, 1", "s_and_b32 s99, s97, s96", "v_mov_b32 v0, s99")
    spin_lds(F_M); stamp(1)
    poll(sum([[f"s_mov_b32 s15, {MODP+k*27648}", f"buffer_load_dwordx4 v[{32+8*k}:{35+8*k}], v10, {WS}, s15 offen sc1", f"buffer_load_dwordx4 v[{36+8*k}:{39+8*k}], v10, {WS}, s15 offen offset:2304 sc1"] for k in range(9)], []), range(32, 104), "v9", valid="s[12:13]", sleep=PSLEEP)
    stamp(14)
    for k in range(1, 9):
        for e in range(0, 8, 2): a(f"v_pk_add_f32 v[{32+e}:{33+e}], v[{32+e}:{33+e}], v[{32+8*k+e}:{33+8*k+e}]")
    for k in range(4):
        rne(f"v{32+k}", f"v{32+k}"); rne(f"v{36+k}", f"v{36+k}"); a(f"v_add_f32 v{36+k}, 1.0, v{36+k}"); rne(f"v{36+k}", f"v{36+k}")
        a(f"v_mul_f32 v{20+k}, v{20+k}, v{36+k}"); rne(f"v{20+k}", f"v{20+k}"); a(f"v_add_f32 v{20+k}, v{20+k}, v{32+k}", f"v_cvt_pk_bf16_f32 v{20+k}, v{20+k}, v{20+k}", f"ds_write_b32 v111, v{20+k} offset:{80*k}")
    set_flag(F_H)
    a("Lbulk:")
    if BULKWAIT == 1: spin_lds(F_M)
    if BULKWAIT == 2: spin_lds(F_H)
    if BULKWAIT == 3: spin_lds(F_Q)
    srd(48, P["wo"], 4096*1152)
    a("s_lshl_b32 s11, s5, 7", "s_and_b32 s12, s7, 1", "s_lshl_b32 s12, s12, 6", "s_add_u32 s11, s11, s12", "v_lshrrev_b32 v6, 3, v2", "v_lshl_add_u32 v6, v3, 4, v6", "v_add_u32 v6, s11, v6",
      "v_mul_u32_u24 v6, 1152, v6", "v_and_b32 v7, 7, v1", "v_lshl_add_u32 v6, v7, 4, v6", "s_lshl_b32 s15, s4, 7")
    for n in range(8): a(f"buffer_load_dwordx4 v[{32+4*n}:{35+4*n}], v6, s[48:51], s15 offen{NTW}", "s_add_u32 s15, s15, 2304", f"s_waitcnt vmcnt({HDEPTH})")
    a("s_cmp_lg_u32 s4, 0", "s_cbranch_scc1 Lb1", "s_movk_i32 s15, 1024")
    for n in range(8): a(f"buffer_load_dwordx4 v[{64+4*n}:{67+4*n}], v6, s[48:51], s15 offen{NTW}", "s_add_u32 s15, s15, 2304", f"s_waitcnt vmcnt({HDEPTH})")
    a("Lb1:", "s_cmp_lg_u32 s69, 1", "s_cbranch_scc1 Lb3")
    a("s_cmp_lt_u32 s4, 4", "s_cselect_b32 s52, s28, s30", "s_cselect_b32 s53, s29, s31", "s_and_b32 s53, s53, 0xffff", f"s_mov_b32 s54, {576*9216}", "s_mov_b32 s55, 0x20000")
    a("v_lshrrev_b32 v6, 2, v1", "v_mul_u32_u24 v6, 9216, v6", "v_and_b32 v7, 3, v1", "v_lshl_add_u32 v6, v7, 4, v6", "s_lshl_b32 s11, s10, 6", "v_add_u32 v6, s11, v6",
      "s_and_b32 s11, s4, 3", f"s_mul_i32 s15, s11, {9*16*9216}", "s_mul_i32 s12, s4, 9216", f"s_add_u32 s12, s12, {GU}")
    for n in range(9): a("s_mov_b32 m0, s12", "s_add_u32 s12, s12, 1024", f"buffer_load_dwordx4 v6, s[52:55], s15 offen{NTW} lds", f"s_add_u32 s15, s15, {16*9216}", f"s_waitcnt vmcnt({HDEPTH})")
    a("s_cmp_lt_u32 s4, 3", "s_cbranch_scc1 Lb2")
    srd(56, P["wd"], 4608*1152)
    a("s_lshl_b32 s11, s10, 5", "v_add_u32 v6, s11, v3", "v_mul_u32_u24 v6, 1152, v6", "s_sub_u32 s12, s4, 3", "s_lshl_b32 s12, s12, 8", "v_lshl_add_u32 v7, v2, 4, s12",
      "v_cmp_gt_u32 vcc, 1152, v7", "v_add_u32 v6, v6, v7", f"v_mov_b32 v8, {OOB}", "v_cndmask_b32 v6, v8, v6, vcc", "s_mov_b32 s15, 0")
    for n in range(8): a(f"buffer_load_dwordx4 v[{72+4*n}:{75+4*n}], v6, s[56:59], s15 offen{NTW}", "s_add_u32 s15, s15, 4608", f"s_waitcnt vmcnt({HDEPTH})")
    a("v_lshrrev_b32 v6, 1, v3", "v_mul_u32_u24 v6, 36, v6", "v_lshrrev_b32 v7, 5, v7", "v_add_u32 v6, v6, v7", "v_mul_u32_u24 v6, 9216, v6", "v_and_b32 v7, 1, v2", "v_lshl_add_u32 v6, v7, 5, v6",
      "v_and_b32 v7, 1, v3", "v_lshl_add_u32 v6, v7, 4, v6", "s_lshl_b32 s11, s10, 6", f"s_add_u32 s11, s11, {T3}", "v_add_u32 v6, s11, v6", "v_cndmask_b32 v110, v8, v6, vcc")
    a("Lb2:")
    a("v_cmp_gt_u32 vcc, 36, v1", "s_mul_i32 s11, s4, 576", "v_lshl_add_u32 v6, v1, 4, s11", f"v_mov_b32 v8, {OOB}", "v_cndmask_b32 v111, v8, v6, vcc", f"s_mov_b32 s12, {CB}", f"s_mov_b32 s13, {SB}", "s_mov_b64 s[14:15], vcc")
    spin_lds(F_Q)
    poll([f"buffer_load_dwordx4 v[24:27], v111, {WS}, s12 offen sc1", f"buffer_load_dwordx4 v[28:31], v111, {WS}, s13 offen sc1"], range(24, 32), "v8", sleep=8, valid="s[14:15]")
    a("Lb3:")
    a("s_cmp_lg_u32 s4, 1", "s_cbranch_scc1 Lb4")
    spin_lds(F_Q)
    a("v_cmp_gt_u32 vcc, 32, v1", "v_lshlrev_b32 v6, 3, v1", f"v_mov_b32 v8, {OOB}", "v_cndmask_b32 v6, v8, v6, vcc", "s_and_b32 s11, s3, 0xfc", "s_lshl_b32 s11, s11, 6", f"s_add_u32 s12, s11, {ML}", "s_mov_b64 s[14:15], vcc")
    poll([f"buffer_load_dwordx2 v[16:17], v6, {WS}, s12 offen sc1"], [16, 17], "v8", sleep=16, valid="s[14:15]")
    a("v_mov_b32 v18, v16"); rowred("v_max_f32", ["v18"]); xrow("v_max_f32", ["v18"], ["v19"], which=(16,))
    a("v_sub_f32 v16, v16, v18", "v_mul_f32 v16, 0x3fb8aa3b, v16", "v_exp_f32 v16, v16", "v_mul_f32 v17, v16, v17")
    rowred("v_add_f32", ["v17"]); xrow("v_add_f32", ["v17"], ["v19"], which=(16,))
    a("v_rcp_f32 v17, v17", "v_lshlrev_b32 v6, 2, v1", f"v_add_u32 v7, {WTAB}, v6", f"v_add_u32 v6, {DUMP}, v6", "v_cmp_gt_u32 vcc, 32, v1", "v_cndmask_b32 v6, v6, v7, vcc", "v_mul_f32 v16, v16, v17", "ds_write_b32 v6, v16")
    set_flag(F_W)
    a("Lb4:")
    a("v_lshrrev_b32 v6, 1, v2", "v_lshlrev_b32 v6, 13, v6", "v_and_b32 v7, 1, v2", "v_lshl_add_u32 v6, v7, 5, v6", "v_lshl_add_u32 v6, v3, 4, v6",
      "v_and_b32 v7, 40, v1", "v_cmp_eq_u32 vcc, 0, v7", f"v_mov_b32 v8, {OOB}", "v_cndmask_b32 v106, v8, v6, vcc",
      "s_mul_i32 s11, s6, 36", "s_lshl_b32 s11, s11, 13", "s_lshl_b32 s12, s5, 2", "s_add_u32 s12, s12, s7", "s_lshl_b32 s12, s12, 6", "s_add_u32 s11, s11, s12", f"s_add_u32 s11, s11, {T1}",
      "s_lshl_b32 s12, s4, 15", "s_add_u32 s12, s12, s11", f"s_add_u32 s13, s11, {8<<15}", "v_lshlrev_b32 v6, 2, v1")
    a("s_waitcnt vmcnt(0) lgkmcnt(0)", "s_barrier")
    stamp(5)
    for k in range(8): a(f"ds_read2st64_b32 v[{112+2*k}:{113+2*k}], v6 offset0:{OPART//256+2*k} offset1:{OPART//256+2*k+1}")
    for k in range(0, 8, 2): a(f"s_waitcnt lgkmcnt({6-k})", f"v_pk_add_f32 v[{112+2*k}:{113+2*k}], v[{112+2*k}:{113+2*k}], v[{114+2*k}:{115+2*k}]")
    a("v_pk_add_f32 v[112:113], v[112:113], v[116:117]", "v_pk_add_f32 v[120:121], v[120:121], v[124:125]", "v_pk_add_f32 v[112:113], v[112:113], v[120:121]", "v_add_f32 v16, v112, v113", "v_cvt_pk_bf16_f32 v16, v16, v16")
    def womerge(D, T, so):
        for k in range(4): a(f"v_permlane32_swap_b32 v{D+k}, v{T+k}")
        for k in range(4): a(f"v_add_f32_dpp v{D+k}, v{T+k}, v{D+k} row_ror:8 row_mask:0xf bank_mask:0xf")
        tagp(range(D, D+4))
        a(f"buffer_store_dwordx4 v[{D}:{D+3}], v106, {WS}, {so} offen sc1")
    a("s_cmp_eq_u32 s4, 0", "s_cbranch_scc1 Lwo0")
    for n in range(8): bc2(f"v{20+(n&1)}", "v16", 2*n, "v16", 2*n+1); mkA(112+4*(n&1), f"v{20+(n&1)}"); mfma(120, 112+4*(n&1), 32+4*n, n == 0)
    womerge(120, 8, "s12")
    a("s_branch Lwod", "Lwo0:")
    for n in range(8): bc2(f"v{20+(n&1)}", "v16", 2*n, "v16", 2*n+1); mkA(112+4*(n&1), f"v{20+(n&1)}"); mfma(120, 112+4*(n&1), 32+4*n, n == 0); mfma(124, 112+4*(n&1), 64+4*n, n == 0)
    womerge(120, 8, "s12"); womerge(124, 16, "s13")
    a("Lwod:")
    stamp(6)
    a("s_cmp_eq_u32 s69, 1", "s_cbranch_scc1 Lffn", "s_cmp_eq_u32 s69, 2", "s_cbranch_scc1 Lred", "s_branch Lfin")
    a("Lred:")
    srd(48, P["out"], 2304)
    a("v_lshlrev_b32 v6, 4, v1", "s_lshl_b32 s12, s68, 13", "s_lshl_b32 s11, s4, 10", "s_add_u32 s12, s12, s11", f"s_add_u32 s12, s12, {T1}",
      "s_mul_i32 s13, s68, 9216", "s_add_u32 s13, s13, s11", f"s_add_u32 s13, s13, {T3}", "s_add_u32 s14, s13, 8192", "s_cmp_eq_u32 s4, 0", f"s_cselect_b32 s14, s14, {OOB}",
      "v_and_b32 v7, 12, v1", "v_cmp_eq_u32 vcc, 0, v7", "v_and_b32 v7, 3, v1", "v_lshlrev_b32 v7, 4, v7", "v_lshl_add_u32 v7, v3, 6, v7", "s_lshl_b32 s11, s4, 8", f"s_add_u32 s11, s11, {RPART}",
      "v_add_u32 v7, s11, v7", f"v_add_u32 v8, {DUMP}, v6", "v_cndmask_b32 v7, v8, v7, vcc", "v_lshlrev_b32 v9, 2, v2", "v_lshl_add_u32 v9, v3, 9, v9", f"v_add_u32 v9, {RPART}, v9")
    def final_sum():
        for k in range(4): a(f"ds_read2_b32 v[{40+2*k}:{41+2*k}], v9 offset0:{32*k} offset1:{32*k+16}")
        a("s_waitcnt lgkmcnt(2)", "v_pk_add_f32 v[40:41], v[40:41], v[42:43]", "s_waitcnt lgkmcnt(0)", "v_pk_add_f32 v[44:45], v[44:45], v[46:47]", "v_pk_add_f32 v[40:41], v[40:41], v[44:45]", "v_add_f32 v40, v40, v41")
        xrow("v_add_f32", ["v40"], ["v41"]); rne("v40", "v40")
    poll([f"buffer_load_dwordx4 v[32:35], v6, {WS}, s12 offen sc1"], range(32, 36), "v8")
    rowred("v_add_f32", [f"v{32+k}" for k in range(4)], steps=(8, 4))
    a("ds_write_b128 v7, v[32:35]", "s_waitcnt lgkmcnt(0)", "s_barrier")
    stamp(7)
    a("s_cmp_lg_u32 s4, 1", "s_cbranch_scc1 Lred2")
    final_sum(); a("v_mul_f32 v40, v40, v108"); rne("v40", "v40"); a("v_add_f32 v107, v107, v40"); rne("v107", "v107")
    a("s_lshl_b32 s11, s68, 6", f"s_add_u32 s11, s11, {T2}", "v_or_b32 v40, v107, v0")
    for k in range(R2//4): a(f"buffer_store_dword v40, v111, {WS}, s11 offen sc1", f"s_add_u32 s11, s11, {4*4608}")
    a("Lred2:")
    a("s_cmp_eq_u32 s4, 0", "s_cbranch_scc1 Lred3")
    poll([f"buffer_load_dwordx4 v[32:35], v6, {WS}, s13 offen sc1"], range(32, 36), "v8")
    a("s_branch Lred4", "Lred3:")
    poll([f"buffer_load_dwordx4 v[32:35], v6, {WS}, s13 offen sc1", f"buffer_load_dwordx4 v[36:39], v6, {WS}, s14 offen sc1"], range(32, 40), "v8")
    a("v_pk_add_f32 v[32:33], v[32:33], v[36:37]", "v_pk_add_f32 v[34:35], v[34:35], v[38:39]", "Lred4:")
    rowred("v_add_f32", [f"v{32+k}" for k in range(4)], steps=(8, 4))
    a("ds_write_b128 v7, v[32:35]", "s_waitcnt lgkmcnt(0)", "s_barrier")
    a("s_cmp_lg_u32 s4, 1", "s_cbranch_scc1 Lfin")
    final_sum(); a("v_mul_f32 v40, v40, v109"); rne("v40", "v40"); a("v_add_f32 v40, v107, v40", "v_cvt_pk_bf16_f32 v40, v40, v40", "buffer_store_short v40, v110, s[48:51], 0 offen")
    a("s_cmp_lg_u32 s68, 0", "s_cbranch_scc1 Lfin", "v_mov_b32 v41, s97", f"s_mov_b32 s11, {EP}", "s_mov_b64 exec, 1", f"buffer_store_dword v41, v5, {WS}, s11 offen sc1", "s_mov_b64 exec, -1")
    a("s_branch Lfin")
    a("Lffn:")
    a("v_lshrrev_b32 v6, 2, v2", "v_lshl_add_u32 v6, v3, 3, v6", "v_lshlrev_b32 v6, 6, v6", "v_and_b32 v7, 3, v1", "v_lshl_add_u32 v6, v7, 3, v6",
      "s_bfe_u32 s11, s4, 0x10001", "s_mul_i32 s11, s11, 36864", "s_and_b32 s12, s4, 1", "s_lshl_b32 s12, s12, 5", "s_add_u32 s11, s11, s12", "s_lshr_b32 s12, s4, 2", f"s_mul_i32 s13, s12, {9*2048}",
      "s_add_u32 s11, s11, s13", f"s_add_u32 s11, s11, {GU}", "v_add_u32 v6, s11, v6")
    for n in range(9): a(f"ds_read_b64_tr_b16 v[{32+4*n}:{33+4*n}], v6 offset:{2048*n}", f"ds_read_b64_tr_b16 v[{34+4*n}:{35+4*n}], v6 offset:{2048*n+256}")
    a("v_and_b32 v7, 1, v1", "v_mul_u32_u24 v7, 1152, v7", "v_lshl_add_u32 v7, v3, 4, v7", "s_mul_i32 s13, s12, 576", f"s_add_u32 s13, s13, {H2T}", "v_add_u32 v104, s13, v7")
    a("s_mul_i32 s13, s4, 288", f"s_add_u32 s13, s13, {H2T}", "v_lshl_add_u32 v7, v1, 3, s13", "v_lshlrev_b32 v8, 3, v1", f"v_add_u32 v8, {DUMP}, v8", "v_cmp_gt_u32 s[14:15], 36, v1", "v_cndmask_b32 v105, v8, v7, s[14:15]")
    a("s_lshl_b32 s13, s4, 7", f"s_add_u32 s13, s13, {GTAB}", "v_lshlrev_b32 v7, 6, v2", "v_lshl_add_u32 v7, v3, 4, v7", "v_add_u32 v7, s13, v7", "v_lshlrev_b32 v8, 4, v1", f"v_add_u32 v8, {DUMP}, v8",
      "v_cmp_gt_u32 vcc, 2, v2", "v_cndmask_b32 v107, v8, v7, vcc")
    a("v_and_b32 v7, 7, v2", "v_lshl_add_u32 v7, v7, 2, v3", "v_lshrrev_b32 v8, 4, v7", "v_and_b32 v7, 15, v7", "v_lshlrev_b32 v7, 2, v7", "v_lshl_add_u32 v7, v8, 7, v7", "v_lshrrev_b32 v8, 3, v2",
      "v_lshl_add_u32 v7, v8, 6, v7", f"v_add_u32 v108, {GTAB}, v7")
    a("s_lshl_b32 s13, s4, 3", f"s_add_u32 s13, s13, {STAT}", "v_mov_b32 v109, s13", "s_lshl_b32 s13, s12, 5", f"s_add_u32 s13, s13, {STAT}", "v_mov_b32 v9, s13", f"s_and_b32 s12, s10, {R2-1}", "s_mul_i32 s12, s12, 4608", f"s_add_u32 s12, s12, {T2}")
    poll([f"buffer_load_dwordx4 v[16:19], v111, {WS}, s12 offen sc1"], range(16, 20), "v8", valid="s[14:15]")
    stamp(7)
    a("v_readfirstlane_b32 s11, v16")
    for k in range(4): a(f"v_subrev_f32 v{20+k}, s11, v{16+k}")
    a("v_add_f32 v10, v20, v21", "v_mul_f32 v11, v20, v20", "v_add_f32 v10, v10, v22", "v_fmac_f32 v11, v21, v21", "v_add_f32 v10, v10, v23", "v_fmac_f32 v11, v22, v22", "v_fmac_f32 v11, v23, v23",
      "v_cndmask_b32 v10, 0, v10, s[14:15]", "v_cndmask_b32 v11, 0, v11, s[14:15]")
    rowred("v_add_f32", ["v10", "v11"]); xrow("v_add_f32", ["v10", "v11"], ["v20", "v21"])
    a("v_mul_f32 v20, 0x3be38e39, v10", "v_fma_f32 v11, -v20, v10, v11", "v_add_f32 v10, s11, v20", "ds_write_b64 v109, v[10:11]", "s_waitcnt lgkmcnt(0)", "s_barrier",
      "ds_read_b128 v[112:115], v9", "ds_read_b128 v[116:119], v9 offset:16", "s_waitcnt lgkmcnt(0)",
      "v_add_f32 v10, v112, v114", "v_add_f32 v11, v116, v118", "v_add_f32 v20, v113, v115", "v_add_f32 v21, v117, v119", "v_add_f32 v10, v10, v11", "v_add_f32 v11, v20, v21", "v_mul_f32 v10, 0x3e800000, v10",
      "v_sub_f32 v112, v112, v10", "v_sub_f32 v114, v114, v10", "v_sub_f32 v116, v116, v10", "v_sub_f32 v118, v118, v10",
      "v_mul_f32 v20, v112, v112", "v_fmac_f32 v20, v114, v114", "v_fmac_f32 v20, v116, v116", "v_fmac_f32 v20, v118, v118", "v_mul_f32 v11, 0x3ae38e39, v11", "v_fmac_f32 v11, 0x3e800000, v20")
    lnstats("v10", "v11")
    for k in range(4): a(f"v_sub_f32 v{16+k}, v{16+k}, v10")
    def rne2(x, y): a(f"v_cvt_pk_bf16_f32 v{y}, v{x}, v{y}", f"v_lshlrev_b32 v{x}, 16, v{y}", f"v_and_b32 v{y}, 0xffff0000, v{y}")
    rne2(16, 17); rne2(18, 19)
    for k in range(4): a(f"v_mul_f32 v{16+k}, v{16+k}, v11")
    rne2(16, 17); rne2(18, 19)
    for k in range(4): a(f"v_mul_f32 v{16+k}, v{16+k}, v{24+k}")
    rne2(16, 17); rne2(18, 19)
    for k in range(4): a(f"v_add_f32 v{16+k}, v{16+k}, v{28+k}")
    a("v_cvt_pk_bf16_f32 v16, v16, v17", "v_cvt_pk_bf16_f32 v17, v18, v19", "ds_write_b64 v105, v[16:17]", "s_waitcnt lgkmcnt(0)", "s_barrier")
    hb = [8, 16, 20, 24, 28, 68, 112, 116, 124]
    for n in range(9): a(f"ds_read_b128 v[{hb[n]}:{hb[n]+3}], v104 offset:{64*n}")
    for n in range(9): a(f"s_waitcnt lgkmcnt({8-n})"); mfma(120, 32+4*n, hb[n], n == 0)
    a("ds_write_b128 v107, v[120:123]", "s_waitcnt lgkmcnt(0)", "s_barrier")
    a("s_cmp_lt_u32 s4, 3", "s_cbranch_scc1 Lfin")
    a("ds_read2st64_b32 v[16:17], v108 offset0:0 offset1:1", "ds_read2st64_b32 v[18:19], v108 offset0:2 offset1:3", "s_waitcnt lgkmcnt(0)", "v_pk_add_f32 v[16:17], v[16:17], v[18:19]")
    rne2(16, 17)
    a("v_mul_f32 v18, v16, v16", "v_mov_b32 v19, 0xc0135761", "v_fmac_f32 v19, 0xbdd2d3e8, v18", "v_mul_f32 v18, v16, v19", "v_exp_f32 v18, v18", "v_add_f32 v18, 1.0, v18", "v_rcp_f32 v18, v18", "v_mul_f32 v16, v16, v18")
    rne("v16", "v16"); a("v_mul_f32 v16, v16, v17", "v_cvt_pk_bf16_f32 v16, v16, v16")
    for n in range(8): bc2(f"v{20+(n&1)}", "v16", n, "v16", 8+n); mkA(112+4*(n&1), f"v{20+(n&1)}"); mfma(120, 112+4*(n&1), 72+4*n, n == 0)
    tagp(range(120, 124)); a(f"buffer_store_dwordx4 v[120:123], v110, {WS}, 0 offen sc1")
    a("Lfin:")
    if TS:
        stamp(10)
        a("s_cmp_eq_u32 s4, 1", "s_cbranch_scc1 Lts1", "s_cmp_eq_u32 s4, 2", "s_cbranch_scc1 Lts2", "s_cmp_eq_u32 s4, 3", "s_cbranch_scc1 Lts3", "s_endpgm")
        a("Lts1:"); a("s_waitcnt lgkmcnt(0)", "s_mov_b64 s[94:95], s[92:93]"); flush_stamps([9, 11, 13]); a("s_endpgm")
        a("Lts2:"); flush_stamps([2]); a("s_endpgm")
        a("Lts3:"); flush_stamps([0, 1, 5, 6, 7, 10, 14])
    a("Lend:")
    hdr = open("adaLN_cond__mha_block_cached__geglu_ffn__decode.s.ref").read().split("; Override launch")[0]
    return (hdr + f"; @launch grid=(256,1,1) block=(1024,1,1) lds={LDSN}\n.amdgcn_target \"amdgcn-amd-amdhsa--gfx950\"\n.text\n.globl {KN}\n.p2align 8\n.type {KN},@function\n{KN}:\n"
        + a.text() + f"""    s_endpgm
.section .rodata,"a"
.p2align 6
.amdhsa_kernel {KN}
  .amdhsa_next_free_vgpr 128
  .amdhsa_next_free_sgpr 102
  .amdhsa_accum_offset 128
  .amdhsa_group_segment_fixed_size 0
  .amdhsa_kernarg_size 112
  .amdhsa_user_sgpr_count 2
  .amdhsa_user_sgpr_kernarg_segment_ptr 1
  .amdhsa_system_sgpr_workgroup_id_x 1
.end_amdhsa_kernel
""")
if __name__ == "__main__":
    out = sys.argv[1]; kw = {}
    for x in sys.argv[2:]:
        k, v = x.split("="); kw[k] = eval(v)
    open(out, "w").write(gen(**kw))
```

```python
import sys
from asmlib import Asm
KN = "adaLN_cond__mha_block_cached__geglu_ffn__decode_kernel"
QP=0; T1=0xC0000; T3=0x150000; ML=0x1F2000; CB=0x1F6000; SB=0x1F7200; EP=0x1F9000; MODP=0x200000; T2=0x240000; PEX=0x300000; WSN=0x400000
OOB=0x40000000
OPART=0; RPART=4096; HTAB=6400; QTAB=7040; WTAB=7296; STAT=7424; FL=7488; H2T=7552; GTAB=9856; DUMP=10880; GU=12288; LDSN=86016
F_Q=FL; F_H=FL+4; F_M=FL+8; F_W=FL+12
def TSR(k): return {13: 100, 14: 90, 12: 74, 15: 78}.get(k, 72+2*k)
def br4(r): return int(f"{r:04b}"[::-1], 2)
def gen(RING=20, DEPTH=2, HDEPTH=1, CATCH=2, TS=False, NT=" nt", NTW=" nt", PPOS=8, PDEPTH=2, PSLEEP=2, WQD=1, BULKWAIT=0, R2=8, MWAIT=1, SKIP='', TSL=0, NTG=' nt', GD=1, GSPL=1):
    a = Asm()
    def srd(r, p, n): a(f"s_mov_b32 s{r}, s{p}", f"s_and_b32 s{r+1}, s{p+1}, 0xffff", f"s_mov_b32 s{r+2}, {n}", f"s_mov_b32 s{r+3}, 0x20000")
    P = dict(x=16, K=18, V=20, wq=22, wo=24, wg=28, wu=30, wd=32, c=34, wm=36, out=38, dbg=40, ws=42)
    WS = "s[44:47]"
    def stamp(k):
        if TS: a(f"s_memrealtime s[{TSR(k)}:{TSR(k)+1}]")
    def flush_stamps(ks):
        if not TS: return
        a("s_waitcnt lgkmcnt(0)", "s_lshl_b32 s11, s2, 7", "s_add_u32 s11, s11, 0x8000000", "v_mov_b32 v4, s11", "s_mov_b64 exec, 1")
        for k in ks: a(f"v_mov_b32 v6, s{TSR(k)}", f"v_mov_b32 v7, s{TSR(k)+1}", f"global_store_dwordx2 v4, v[6:7], s[42:43] offset:{8*k}", "s_waitcnt vmcnt(0)")
        a("s_mov_b64 exec, -1")
    def spin_lds(flag, t="v4"):
        l = a.label("Lsp"); d = a.label("Lspd")
        a(f"{l}:", f"ds_read_b32 {t}, v5 offset:{flag}", "s_waitcnt lgkmcnt(0)", f"v_readfirstlane_b32 s11, {t}", "s_cmp_lg_u32 s11, 0", f"s_cbranch_scc1 {d}",
          "s_sleep 1", "s_sub_u32 s70, s70, 1", "s_cmp_gt_i32 s70, 0", f"s_cbranch_scc1 {l}", f"{d}:")
    def set_flag(flag, t="v4"):
        a("s_waitcnt lgkmcnt(0)", f"v_mov_b32 {t}, 1", f"ds_write_b32 v5, {t} offset:{flag}")
    def tagp(rs, rnd=False):
        for r in rs:
            if rnd: a(f"v_add_u32 v{r}, 0x200, v{r}")
        for r in rs: a(f"v_bfi_b32 v{r}, s96, v0, v{r}")
    def poll(loads, rs, t, sleep=0, first=True, valid=None, clean=True):
        l = a.label("Lpo"); d = a.label("Lpod"); c = a.label("Lpoc")
        if not first: a(f"s_branch {c}")
        a(f"{l}:"); a(*loads); a("s_waitcnt vmcnt(0)"); a(f"{c}:")
        rs = list(rs); a(f"v_xor_b32 {t}, v{rs[0]}, v0")
        for r in rs[1:]: a(f"v_bitop3_b32 {t}, {t}, v{r}, v0 bitop3:0xf6")
        a(f"v_and_b32 {t}, s96, {t}", f"v_cmp_ne_u32 vcc, 0, {t}")
        if valid: a(f"s_and_b64 vcc, vcc, {valid}", f"s_cbranch_scc0 {d}")
        else: a(f"s_cbranch_vccz {d}")
        if sleep: a(f"s_sleep {sleep}")
        a("s_sub_u32 s70, s70, 1", "s_cmp_gt_i32 s70, 0", f"s_cbranch_scc1 {l}", f"{d}:")
        if clean:
            for r in rs: a(f"v_and_b32 v{r}, s98, v{r}")
    def rne(d, s): a(f"v_cvt_pk_bf16_f32 {d}, {s}, {s}", f"v_and_b32 {d}, 0xffff0000, {d}")
    def rowred(op, rs, steps=(8,4,2,1)):
        for st in steps:
            for r in rs: a(f"{op}_dpp {r}, {r}, {r} row_ror:{st} row_mask:0xf bank_mask:0xf")
    def xrow(op, rs, ts, which=(16,32)):
        for wd in which:
            for r, t in zip(rs, ts): a(f"v_mov_b32 {t}, {r}")
            for r, t in zip(rs, ts): a(f"v_permlane{wd}_swap_b32 {r}, {t}")
            for r, t in zip(rs, ts): a(f"{op} {r}, {r}, {t}")
    def masks():
        a("v_and_b32 v4, 7, v1", "v_and_b32 v6, 1, v1", "v_lshlrev_b32 v6, 4, v6", "v_mov_b32 v7, 0xffff", "v_lshlrev_b32 v6, v6, v7", "v_lshrrev_b32 v4, 1, v4")
        for r in range(4): a(f"v_cmp_eq_u32 vcc, {r}, v4", f"v_cndmask_b32 v{12+r}, 0, v6, vcc")
    def mkA(A, pp):
        for r in range(4): a(f"v_and_b32 v{A+r}, {pp}, v{12+r}")
    def bc2(pp, lo, nlo, hi, nhi):
        a(f"v_mov_b32_dpp {pp}, {lo} row_newbcast:{nlo} row_mask:0xf bank_mask:0x3", f"v_mov_b32_dpp {pp}, {hi} row_newbcast:{nhi} row_mask:0xf bank_mask:0xc")
    def mfma(D, A, B, first): a(f"v_mfma_f32_16x16x32_bf16 v[{D}:{D+3}], v[{A}:{A+3}], v[{B}:{B+3}], " + ("0" if first else f"v[{D}:{D+3}]"))
    a("s_cmp_ge_u32 s2, 256", "s_cbranch_scc1 Lend")
    stamp(0)
    a("s_load_dwordx16 s[16:31], s[0:1], 0", "s_load_dwordx8 s[32:39], s[0:1], 64", "s_load_dwordx4 s[40:43], s[0:1], 96")
    a("v_lshrrev_b32 v2, 6, v0", "v_and_b32 v1, 63, v0", "v_mov_b32 v5, 0", "v_readfirstlane_b32 s4, v2")
    a("s_and_b32 s9, s2, 7", "s_lshr_b32 s8, s2, 3", "s_lshl_b32 s3, s9, 5", "s_or_b32 s3, s3, s8")
    a("s_lshr_b32 s5, s3, 3", "s_bfe_u32 s6, s3, 0x10002", "s_and_b32 s7, s3, 3", "s_mov_b32 s70, 0x100000")
    a("v_and_b32 v2, 15, v1", "v_lshrrev_b32 v3, 4, v1")
    masks()
    a("s_waitcnt lgkmcnt(0)", f"s_add_u32 s12, s42, {EP}", "s_addc_u32 s13, s43, 0", "s_load_dword s97, s[12:13], 0", "s_movk_i32 s96, 0x3ff", "s_mov_b32 s98, 0xfffffc00")
    srd(44, P["ws"], WSN)
    a("s_cmp_lt_u32 s4, 8", "s_cbranch_scc1 Lhelper")
    a("s_sub_u32 s4, s4, 8")
    srd(48, P["K"], 0x4000000); srd(52, P["V"], 0x4000000)
    a("s_lshl_b32 s11, s6, 5", "s_add_u32 s11, s11, s5", "s_lshl_b32 s11, s11, 20", "s_lshl_b32 s12, s4, 15", "s_add_u32 s11, s11, s12",
      "s_lshl_b32 s12, s7, 18", "s_add_u32 s12, s12, s11", "s_xor_b32 s13, s7, 1", "s_lshl_b32 s13, s13, 18", "s_add_u32 s13, s13, s11")
    a("v_lshl_add_u32 v6, v1, 4, s12")
    a("v_bfe_u32 v4, v1, 3, 1", "v_lshl_add_u32 v4, v4, 2, v3", "v_lshlrev_b32 v4, 8, v4", "v_and_b32 v7, 7, v1", "v_lshl_add_u32 v4, v7, 4, v4",
      "s_and_b32 s14, s7, 1", "s_lshl_b32 s14, s14, 7", "v_add_u32 v4, s14, v4", "v_add_u32 v7, s12, v4", "v_add_u32 v30, s13, v4")
    a("s_mov_b32 s64, 0xcccccccc", "s_mov_b32 s65, 0xcccccccc", "s_mov_b32 s66, 0xaaaaaaaa", "s_mov_b32 s67, 0xaaaaaaaa")
    a("s_barrier")
    ops = []
    def slot(i): return 32 + 4*(i % RING)
    def issue(i):
        r = slot(i)
        if i < 32: a(f"s_movk_i32 s15, {i*1024}", f"buffer_load_dwordx4 v[{r}:{r+3}], v6, s[48:51], s15 offen{NT}")
        else:
            n = (i-32) % 16; v = "v7" if i < 48 else "v30"
            a(f"s_movk_i32 s15, {n*2048}", f"buffer_load_dwordx4 v[{r}:{r+3}], {v}, s[52:55], s15 offen{NT}")
        ops.append(i)
    done = [0]
    def waitn(n):
        if len(ops) - n > done[0]: done[0] = len(ops) - n; a(f"s_waitcnt vmcnt({n})")
    def wait_for(tag): waitn(len(ops) - 1 - ops.index(tag))
    def procK(i):
        wait_for(i+1); r0 = slot(i); r1 = slot(i+1)
        for k in range(4):
            a(f"v_dot2_f32_bf16 v20, v{r0+k}, v{8+k}, " + ("0" if k == 0 else "v20"), f"v_dot2_f32_bf16 v21, v{r1+k}, v{8+k}, " + ("0" if k == 0 else "v21"))
        j = i % 16; T = 22 + (j >> 1 & 1)
        a(f"v_add_f32_dpp v{T}, v20, v20 row_ror:8 row_mask:0xf bank_mask:0x3", f"v_add_f32_dpp v{T}, v21, v21 row_ror:8 row_mask:0xf bank_mask:0xc")
        if j & 2:
            U = 24 + (j >> 2 & 1)
            a(f"v_add_f32_dpp v{U}, v22, v22 row_half_mirror row_mask:0xf bank_mask:0x5", f"v_add_f32_dpp v{U}, v23, v23 row_half_mirror row_mask:0xf bank_mask:0xa")
            if j & 4:
                W = 26 + (j >> 3 & 1)
                a("v_cndmask_b32 v28, v24, v25, s[64:65]", "v_cndmask_b32 v29, v25, v24, s[64:65]", f"v_add_f32_dpp v{W}, v29, v28 quad_perm:[2,3,0,1] row_mask:0xf bank_mask:0xf")
                if j & 8:
                    a("v_cndmask_b32 v28, v26, v27, s[66:67]", "v_cndmask_b32 v29, v27, v26, s[66:67]", f"v_add_f32_dpp v{16+i//16}, v29, v28 quad_perm:[1,0,3,2] row_mask:0xf bank_mask:0xf")
    def softmax():
        a("v_cvt_pk_bf16_f32 v20, v16, v17", "s_mov_b32 s11, 0x3db504f3", "v_lshlrev_b32 v16, 16, v20", "v_and_b32 v17, 0xffff0000, v20",
          "v_mul_f32 v16, s11, v16", "v_mul_f32 v17, s11, v17", "v_cvt_pk_bf16_f32 v20, v16, v17", "v_lshlrev_b32 v16, 16, v20", "v_and_b32 v17, 0xffff0000, v20",
          "v_max_f32 v22, v16, v17")
        rowred("v_max_f32", ["v22"]); xrow("v_max_f32", ["v22"], ["v21"])
        a("s_mov_b32 s11, 0x3fb8aa3b", "v_sub_f32 v16, v16, v22", "v_sub_f32 v17, v17, v22", "v_mul_f32 v16, s11, v16", "v_mul_f32 v17, s11, v17",
          "v_exp_f32 v16, v16", "v_exp_f32 v17, v17", "v_add_f32 v23, v16, v17", "v_cvt_pk_bf16_f32 v16, v16, v16", "v_cvt_pk_bf16_f32 v17, v17, v17",
          "s_mov_b32 s14, 0xffff", "v_bfi_b32 v20, s14, v0, v16", "v_bfi_b32 v21, s14, v0, v17")
        a("s_lshl_b32 s11, s3, 3", "s_add_u32 s11, s11, s4", "s_lshl_b32 s12, s11, 9", f"s_add_u32 s12, s12, {PEX}", "v_lshlrev_b32 v31, 3, v1",
          f"buffer_store_dwordx2 v[20:21], v31, {WS}, s12 offen sc1"); ops.append("pst")
        a("s_xor_b32 s13, s12, 0x1000")
        rowred("v_add_f32", ["v23"]); xrow("v_add_f32", ["v23"], ["v25"]); tagp([22, 23])
        a("v_cmp_eq_u32 vcc, 0, v1", f"v_mov_b32 v24, {OOB}", "v_cndmask_b32 v24, v24, v5, vcc", "s_lshl_b32 s11, s11, 3", f"s_add_u32 s11, s11, {ML}",
          f"buffer_store_dwordx2 v[22:23], v24, {WS}, s11 offen sc1"); ops.append("mlst")
    def procV(i):
        n = (i-32) % 16; par = i >= 48; D = 124 if par else 120; A = 112 + 4*(i & 1); u = n >> 3; n1 = n & 7
        src = f"v{(18 if par else 16)+u}"
        if i == 48:
            wait_for("pld")
            poll([f"buffer_load_dwordx2 v[26:27], v31, {WS}, s13 offen sc1"], [26, 27], "v28", first=False, clean=False)
            a("s_mov_b32 s14, 0x03020302", "v_perm_b32 v18, v26, v26, s14", "v_perm_b32 v19, v27, v27, s14")
        bc2(f"v{20+(i&1)}", src, br4(2*n1), src, br4(2*n1+1)); mkA(A, f"v{20+(i&1)}")
        wait_for(i); mfma(D, A, slot(i), n == 0)
    issued = 0
    for i in range(RING): issue(i); issued += 1; waitn(PDEPTH)
    a("s_waitcnt lgkmcnt(0)", "s_add_u32 s97, s97, 1", "s_and_b32 s99, s97, s96", "v_mov_b32 v0, s99")
    stamp(8)
    spin_lds(F_Q)
    a(f"v_lshlrev_b32 v4, 4, v2", f"ds_read_b128 v[8:11], v4 offset:{QTAB}", "s_waitcnt lgkmcnt(0)")
    proc = 0
    while proc < 64:
        cnt = 0
        while proc < 64 and cnt < CATCH and (proc < issued - DEPTH - (1 if proc < 32 else 0) or issued == 64):
            if proc < 32:
                procK(proc); proc += 2; cnt += 2
                if proc == 32: softmax(); stamp(3)
            else: procV(proc); proc += 1; cnt += 1
        if issued < 64 and issued - proc < RING:
            issue(issued); issued += 1
            if issued == 32 + PPOS + (16 if False else 0) and False: pass
            waitn(DEPTH)
        if "mlst" in ops and "pld" not in ops and proc >= 32 + PPOS:
            a(f"buffer_load_dwordx2 v[26:27], v31, {WS}, s13 offen sc1"); ops.append("pld")
    spin_lds(F_W)
    a("s_lshl_b32 s11, s7, 3", "s_add_u32 s11, s11, s4", "s_lshl_b32 s11, s11, 2", "v_mov_b32 v4, s11", "v_xor_b32 v6, 32, v4",
      f"ds_read_b32 v20, v4 offset:{WTAB}", f"ds_read_b32 v21, v6 offset:{WTAB}")
    a("v_lshrrev_b32 v22, 3, v2", "v_lshrrev_b32 v23, 1, v3", "v_cmp_eq_u32 vcc, v22, v23", "v_and_b32 v23, 7, v1", "v_lshlrev_b32 v23, 5, v23", "v_and_b32 v24, 1, v3",
      "v_lshl_add_u32 v23, v24, 4, v23", "v_lshl_add_u32 v23, v22, 8, v23", "s_lshl_b32 s11, s4, 9", f"s_add_u32 s11, s11, {OPART}", "v_add_u32 v23, s11, v23",
      "v_lshlrev_b32 v24, 4, v1", f"v_add_u32 v24, {DUMP}, v24", "v_cndmask_b32 v23, v24, v23, vcc", "s_waitcnt lgkmcnt(0)")
    for r in range(4): a(f"v_mul_f32 v{120+r}, v20, v{120+r}")
    for r in range(4): a(f"v_fmac_f32 v{120+r}, v21, v{124+r}")
    a("ds_write_b128 v23, v[120:123]", "s_waitcnt lgkmcnt(0)")
    stamp(4)
    a("s_barrier")
    if TS:
        a("s_cmp_lg_u32 s4, 0", "s_cbranch_scc1 Lend"); flush_stamps([3, 4, 8])
    a("s_endpgm")
    a("Lhelper:")
    for r in range(104, 112): a(f"v_mov_b32 v{r}, {OOB}")
    a("s_mul_i32 s10, s9, 18", "s_add_u32 s10, s10, s8")
    a("s_mul_i32 s68, s9, 9", "s_add_u32 s68, s68, s8", "s_sub_u32 s68, s68, 18")
    a("s_mov_b32 s69, 0", "s_cmp_lt_u32 s8, 27", "s_cselect_b32 s69, 2, 0", "s_cmp_lt_u32 s8, 18", "s_cselect_b32 s69, 1, s69")
    a("s_cmp_ge_u32 s68, 36", "s_cselect_b32 s71, 1, 0")
    a("s_cmp_eq_u32 s4, 1", "s_cbranch_scc1 Lw1", "s_cmp_eq_u32 s4, 2", "s_cbranch_scc1 Lw2", "s_cmp_eq_u32 s4, 3", "s_cbranch_scc1 Lw3")
    a("v_mov_b32 v6, 0", "v_mov_b32 v7, 0", "v_mov_b32 v8, 0", "v_mov_b32 v9, 0", f"ds_write_b128 v5, v[6:9] offset:{FL}", "s_waitcnt lgkmcnt(0)", "s_add_u32 s97, s97, 1", "s_and_b32 s99, s97, s96", "v_mov_b32 v0, s99", "s_barrier", "s_branch Lbulk")
    a("Lw1:")
    srd(48, P["wm"], 576*6912); srd(52, P["c"], 2304); srd(60, P["x"], 2304)
    a("s_mul_i32 s11, s3, 7282", "s_lshr_b32 s11, s11, 16", "s_mul_i32 s12, s11, 9", "s_sub_u32 s12, s3, s12")
    a("s_cmp_lt_u32 s3, 243", "s_cbranch_scc1 Lw1a", "s_waitcnt lgkmcnt(0)", "s_add_u32 s97, s97, 1", "s_and_b32 s99, s97, s96", "v_mov_b32 v0, s99", "s_barrier", "s_branch Lw1clr", "Lw1a:")
    a("s_lshl_b32 s13, s12, 6", "v_lshl_add_u32 v6, v2, 2, v3", "v_add_u32 v6, s13, v6", "v_lshlrev_b32 v6, 1, v6",
      "buffer_load_ushort v16, v6, s[52:55], 0 offen", "buffer_load_ushort v17, v6, s[52:55], 0 offen offset:1152")
    a("v_add_u32 v6, s13, v3", "v_mul_u32_u24 v6, 6912, v6", "s_lshl_b32 s14, s11, 8", "v_lshl_add_u32 v6, v2, 4, v6", "v_add_u32 v6, s14, v6")
    for n in range(16): a(f"s_mov_b32 s15, {n*4*6912}", f"buffer_load_dwordx4 v[{32+4*n}:{35+4*n}], v6, s[48:51], s15 offen{NTW}")
    a("s_barrier", "s_waitcnt lgkmcnt(0)", "s_add_u32 s97, s97, 1", "s_and_b32 s99, s97, s96", "v_mov_b32 v0, s99")
    a("s_waitcnt vmcnt(16)")
    for r in (16, 17):
        a(f"v_lshlrev_b32 v{r}, 16, v{r}", f"v_mul_f32 v18, 0xbfb8aa3b, v{r}", "v_exp_f32 v18, v18", "v_add_f32 v18, 1.0, v18", "v_rcp_f32 v18, v18", f"v_mul_f32 v{r}, v{r}, v18", f"v_cvt_pk_bf16_f32 v{r}, v{r}, v{r}")
    for n in range(16):
        bc2(f"v{20+(n&1)}", "v16", n, "v17", n); mkA(112+4*(n&1), f"v{20+(n&1)}"); a(f"s_waitcnt vmcnt({15-n})"); mfma(120, 112+4*(n&1), 32+4*n, n == 0)
    a("v_lshrrev_b32 v6, 1, v3", "v_mul_u32_u24 v6, 13824, v6", "v_and_b32 v7, 1, v3", "v_lshl_add_u32 v6, v7, 4, v6", "v_lshl_add_u32 v6, v2, 5, v6",
      "s_mul_i32 s13, s12, 27648", "s_lshl_b32 s14, s11, 9", "s_add_u32 s13, s13, s14", f"s_add_u32 s13, s13, {MODP}")
    tagp(range(120, 124), True)
    a(f"buffer_store_dwordx4 v[120:123], v6, {WS}, s13 offen sc1"); stamp(13)
    if MWAIT: a("s_waitcnt vmcnt(0)")
    a("Lw1clr:"); set_flag(F_M); stamp(9)
    a("s_cmp_lg_u32 s69, 2", "s_cbranch_scc1 Lbulk")
    spin_lds(F_H)
    a("s_mul_i32 s12, s71, 36", "s_sub_u32 s12, s68, s12", "s_lshl_b32 s12, s12, 4")
    a("v_mul_u32_u24 v6, 576, v3", "v_add3_u32 v6, v6, v2, s12", "v_lshlrev_b32 v6, 2, v6", "s_mul_i32 s13, s71, 13824", f"s_add_u32 s13, s13, {MODP+1152*4}")
    a("s_mul_i32 s14, s71, 576", "s_add_u32 s14, s14, s12", "v_add_u32 v7, s14, v2", "v_lshlrev_b32 v8, 1, v7", "buffer_load_ushort v107, v8, s[60:63], 0 offen")
    poll(sum([[f"s_add_u32 s14, s13, {27648*k}", f"buffer_load_dword v{32+k}, v6, {WS}, s14 offen sc1"] for k in range(9)], []), range(32, 41), "v9", sleep=8)
    for k in range(1, 9): a(f"v_add_f32 v32, v32, v{32+k}")
    rne("v32", "v32"); a("v_add_f32 v33, 1.0, v32"); rne("v33", "v33")
    a("v_cmp_eq_u32 vcc, 2, v3", "v_cndmask_b32 v32, v32, v33, vcc", f"v_mov_b32 v9, {OOB}", f"v_mov_b32 v10, {CB}", "v_cndmask_b32 v9, v9, v10, vcc",
      "v_cmp_eq_u32 vcc, 1, v3", f"v_mov_b32 v10, {SB}", "v_cndmask_b32 v9, v9, v10, vcc", "v_lshl_add_u32 v9, v7, 2, v9", "v_or_b32 v33, v32, v0", f"buffer_store_dword v33, v9, {WS}, 0 offen sc1",
      "v_lshlrev_b32 v10, 2, v2", "v_add_u32 v11, 192, v10", "ds_bpermute_b32 v108, v10, v32", "ds_bpermute_b32 v109, v11, v32", "v_lshlrev_b32 v107, 16, v107",
      "v_cmp_gt_u32 vcc, 16, v1", f"v_mov_b32 v9, {OOB}", "v_cndmask_b32 v110, v9, v8, vcc", "v_mul_u32_u24 v111, 4608, v3", "v_add_u32 v111, v111, v10", "s_waitcnt lgkmcnt(0)", "s_branch Lbulk")
    a("Lw2:")
    srd(48, P["wq"], 576*8192)
    a("s_and_b32 s11, s3, 7", "s_mul_i32 s11, s11, 72", "v_add_u32 v6, s11, v3", "v_lshlrev_b32 v6, 13, v6", "s_lshl_b32 s12, s5, 8", "v_lshl_add_u32 v6, v2, 4, v6", "v_add_u32 v6, s12, v6")
    for n in range(18):
        if WQD < 18 and n == 0: a("s_barrier")
        a(f"s_mov_b32 s15, {n*32768}", f"buffer_load_dwordx4 v[{32+4*n}:{35+4*n}], v6, s[48:51], s15 offen{NTW}")
        if WQD < 18: a(f"s_waitcnt vmcnt({WQD})")
    if WQD >= 18: a("s_barrier")
    a("v_lshrrev_b32 v6, 3, v2", "v_lshl_add_u32 v6, v6, 2, v3", "v_mul_u32_u24 v6, 80, v6")
    a("s_waitcnt lgkmcnt(0)", "s_add_u32 s97, s97, 1", "s_and_b32 s99, s97, s96", "v_mov_b32 v0, s99")
    if TS: a("s_waitcnt vmcnt(0)"); stamp(12)
    spin_lds(F_H)
    hr = [16, 20, 24, 104, 108]
    for k in range(5): a(f"ds_read_b128 v[{hr[k]}:{hr[k]+3}], v6 offset:{HTAB+16*k}")
    a("s_waitcnt vmcnt(0) lgkmcnt(0)")
    for n in range(18): mkA(112+4*(n&1), f"v{hr[n>>2]+(n&3)}"); mfma(120, 112+4*(n&1), 32+4*n, n == 0)
    a("v_lshrrev_b32 v6, 1, v3", "v_lshlrev_b32 v6, 9, v6", "v_and_b32 v7, 1, v3", "v_lshl_add_u32 v6, v7, 4, v6", "v_lshl_add_u32 v6, v2, 5, v6", "s_lshl_b32 s13, s3, 10")
    tagp(range(120, 124), True); a(f"buffer_store_dwordx4 v[120:123], v6, {WS}, s13 offen sc1"); stamp(15)
    a("v_lshrrev_b32 v6, 5, v1", "v_lshlrev_b32 v6, 12, v6", "v_and_b32 v7, 31, v1", "v_lshl_add_u32 v6, v7, 4, v6", "s_lshl_b32 s13, s5, 13", "s_lshl_b32 s14, s6, 9", "s_add_u32 s13, s13, s14")
    poll([f"buffer_load_dwordx4 v[{32+4*t}:{35+4*t}], v6, {WS}, s13 offen offset:{1024*t} sc1" for t in range(4)], range(32, 48), "v8")
    for k in range(4): a(f"v_add_f32 v{32+k}, v{32+k}, v{36+k}", f"v_add_f32 v{40+k}, v{40+k}, v{44+k}")
    for k in range(4): a(f"v_add_f32 v{32+k}, v{32+k}, v{40+k}")
    xrow("v_add_f32", [f"v{32+k}" for k in range(4)], [f"v{36+k}" for k in range(4)], which=(32,))
    a("v_cvt_pk_bf16_f32 v32, v32, v33", "v_cvt_pk_bf16_f32 v33, v34, v35", "v_lshlrev_b32 v7, 3, v7", f"ds_write_b64 v7, v[32:33] offset:{QTAB}")
    set_flag(F_Q); stamp(2)
    a("s_branch Lbulk")
    a("Lw3:")
    srd(48, P["x"], 2304)
    a("v_lshrrev_b32 v6, 5, v1", "v_and_b32 v7, 31, v1", "v_mul_u32_u24 v8, 1152, v6", "v_mul_u32_u24 v9, 36, v7", "v_add_u32 v9, v8, v9",
      "buffer_load_dwordx4 v[32:35], v9, s[48:51], 0 offen", "buffer_load_dwordx4 v[36:39], v9, s[48:51], 0 offen offset:16", "buffer_load_dword v40, v9, s[48:51], 0 offen offset:32")
    a("s_and_b32 s11, s3, 7", "s_mul_i32 s11, s11, 72", "v_lshl_add_u32 v10, v7, 2, s11", "v_lshl_add_u32 v11, v10, 1, v8", "v_cmp_gt_u32 s[12:13], 18, v7", f"v_mov_b32 v9, {OOB}",
      "v_cndmask_b32 v11, v9, v11, s[12:13]", "buffer_load_dwordx2 v[104:105], v11, s[48:51], 0 offen")
    a("s_barrier")
    a("v_mul_u32_u24 v8, 3456, v6", "v_add_lshl_u32 v10, v10, v8, 2", "v_cndmask_b32 v10, v9, v10, s[12:13]")
    a("v_mul_u32_u24 v8, 320, v6", "v_lshl_add_u32 v8, v7, 2, v8", f"v_add_u32 v8, {HTAB}, v8", f"v_mov_b32 v9, {DUMP}", "v_cndmask_b32 v111, v9, v8, s[12:13]")
    a("s_waitcnt vmcnt(1)")
    for k in range(9): a(f"v_lshlrev_b32 v{44+2*k}, 16, v{32+k}", f"v_and_b32 v{45+2*k}, 0xffff0000, v{32+k}")
    a("v_add_f32 v16, v44, v45")
    for k in range(2, 18): a(f"v_add_f32 v16, v16, v{44+k}")
    rowred("v_add_f32", ["v16"]); xrow("v_add_f32", ["v16"], ["v17"], which=(16,))
    a("v_mul_f32 v16, 0x3ae38e39, v16", "v_mov_b32 v17, 0")
    for k in range(18): a(f"v_sub_f32 v18, v{44+k}, v16", "v_fmac_f32 v17, v18, v18")
    rowred("v_add_f32", ["v17"]); xrow("v_add_f32", ["v17"], ["v18"], which=(16,))
    def lnstats(m, v):
        rne(m, m); rne(v, v); a(f"v_add_f32 {v}, 0x3727c5ac, {v}"); rne(v, v); a(f"v_sqrt_f32 {v}, {v}"); rne(v, v); a(f"v_rcp_f32 {v}, {v}")
    a("v_mul_f32 v17, 0x3ae38e39, v17"); lnstats("v16", "v17")
    a("s_waitcnt vmcnt(0)", "v_lshlrev_b32 v20, 16, v104", "v_and_b32 v21, 0xffff0000, v104", "v_lshlrev_b32 v22, 16, v105", "v_and_b32 v23, 0xffff0000, v105")
    for k in range(4): a(f"v_sub_f32 v{20+k}, v{20+k}, v16"); rne(f"v{20+k}", f"v{20+k}"); a(f"v_mul_f32 v{20+k}, v{20+k}, v17"); rne(f"v{20+k}", f"v{20+k}")
    a("s_waitcnt lgkmcnt(0)", "s_add_u32 s97, s97, 1", "s_and_b32 s99, s97, s96", "v_mov_b32 v0, s99")
    spin_lds(F_M); stamp(1)
    poll(sum([[f"s_mov_b32 s15, {MODP+k*27648}", f"buffer_load_dwordx4 v[{32+8*k}:{35+8*k}], v10, {WS}, s15 offen sc1", f"buffer_load_dwordx4 v[{36+8*k}:{39+8*k}], v10, {WS}, s15 offen offset:2304 sc1"] for k in range(9)], []), range(32, 104), "v9", valid="s[12:13]", sleep=PSLEEP)
    stamp(14)
    for k in range(1, 9):
        for e in range(0, 8, 2): a(f"v_pk_add_f32 v[{32+e}:{33+e}], v[{32+e}:{33+e}], v[{32+8*k+e}:{33+8*k+e}]")
    for k in range(4):
        rne(f"v{32+k}", f"v{32+k}"); rne(f"v{36+k}", f"v{36+k}"); a(f"v_add_f32 v{36+k}, 1.0, v{36+k}"); rne(f"v{36+k}", f"v{36+k}")
        a(f"v_mul_f32 v{20+k}, v{20+k}, v{36+k}"); rne(f"v{20+k}", f"v{20+k}"); a(f"v_add_f32 v{20+k}, v{20+k}, v{32+k}", f"v_cvt_pk_bf16_f32 v{20+k}, v{20+k}, v{20+k}", f"ds_write_b32 v111, v{20+k} offset:{80*k}")
    set_flag(F_H)
    a("Lbulk:")
    if BULKWAIT == 1: spin_lds(F_M)
    if BULKWAIT == 2: spin_lds(F_H)
    if BULKWAIT == 3: spin_lds(F_Q)
    srd(48, P["wo"], 4096*1152)
    a("s_lshl_b32 s11, s5, 7", "s_and_b32 s12, s7, 1", "s_lshl_b32 s12, s12, 6", "s_add_u32 s11, s11, s12", "v_lshrrev_b32 v6, 3, v2", "v_lshl_add_u32 v6, v3, 4, v6", "v_add_u32 v6, s11, v6",
      "v_mul_u32_u24 v6, 1152, v6", "v_and_b32 v7, 7, v1", "v_lshl_add_u32 v6, v7, 4, v6", "s_lshl_b32 s15, s4, 7")
    for n in range(8): a(f"buffer_load_dwordx4 v[{32+4*n}:{35+4*n}], v6, s[48:51], s15 offen{NTW}", "s_add_u32 s15, s15, 2304", f"s_waitcnt vmcnt({HDEPTH})")
    a("s_cmp_lg_u32 s4, 0", "s_cbranch_scc1 Lb1", "s_movk_i32 s15, 1024")
    for n in range(8): a(f"buffer_load_dwordx4 v[{64+4*n}:{67+4*n}], v6, s[48:51], s15 offen{NTW}", "s_add_u32 s15, s15, 2304", f"s_waitcnt vmcnt({HDEPTH})")
    a("Lb1:", "s_cmp_lg_u32 s69, 1", "s_cbranch_scc1 Lb3")
    a("s_cmp_lt_u32 s4, 4", "s_cselect_b32 s52, s28, s30", "s_cselect_b32 s53, s29, s31", "s_and_b32 s53, s53, 0xffff", f"s_mov_b32 s54, {576*9216}", "s_mov_b32 s55, 0x20000")
    a("v_lshrrev_b32 v6, 2, v1", "v_mul_u32_u24 v6, 9216, v6", "v_and_b32 v7, 3, v1", "v_lshl_add_u32 v6, v7, 4, v6", "s_lshl_b32 s11, s10, 6", "v_add_u32 v6, s11, v6",
      "s_and_b32 s11, s4, 3", f"s_mul_i32 s15, s11, {9*16*9216}", "s_mul_i32 s12, s4, 9216", f"s_add_u32 s12, s12, {GU}")
    if 'sh' in SKIP: a("v_add_u32 v6, 128, v6")
    for n in range(0 if 'gu' in SKIP else 9):
        a("s_mov_b32 m0, s12", "s_add_u32 s12, s12, 1024")
        for g in range(GSPL):
            if GSPL > 1:
                m = ((1 << (64//GSPL)) - 1) << (g*64//GSPL)
                a(f"s_mov_b32 exec_lo, {m & 0xffffffff}", f"s_mov_b32 exec_hi, {m >> 32}")
            a(f"buffer_load_dwordx4 v6, s[52:55], s15 offen{NTG} lds", f"s_waitcnt vmcnt({GD})")
        a(f"s_add_u32 s15, s15, {16*9216}")
    if GSPL > 1: a("s_mov_b64 exec, -1")
    a("s_cmp_lt_u32 s4, 3", "s_cbranch_scc1 Lb2")
    srd(56, P["wd"], 4608*1152)
    a("s_lshl_b32 s11, s10, 5", "v_add_u32 v6, s11, v3", "v_mul_u32_u24 v6, 1152, v6", "s_sub_u32 s12, s4, 3", "s_lshl_b32 s12, s12, 8", "v_lshl_add_u32 v7, v2, 4, s12",
      "v_cmp_gt_u32 vcc, 1152, v7", "v_add_u32 v6, v6, v7", f"v_mov_b32 v8, {OOB}", "v_cndmask_b32 v6, v8, v6, vcc", "s_mov_b32 s15, 0")
    for n in range(0 if 'wd' in SKIP else 8): a(f"buffer_load_dwordx4 v[{72+4*n}:{75+4*n}], v6, s[56:59], s15 offen{NTW}", "s_add_u32 s15, s15, 4608", f"s_waitcnt vmcnt({HDEPTH})")
    a("v_lshrrev_b32 v6, 1, v3", "v_mul_u32_u24 v6, 36, v6", "v_lshrrev_b32 v7, 5, v7", "v_add_u32 v6, v6, v7", "v_mul_u32_u24 v6, 9216, v6", "v_and_b32 v7, 1, v2", "v_lshl_add_u32 v6, v7, 5, v6",
      "v_and_b32 v7, 1, v3", "v_lshl_add_u32 v6, v7, 4, v6", "s_lshl_b32 s11, s10, 6", f"s_add_u32 s11, s11, {T3}", "v_add_u32 v6, s11, v6", "v_cndmask_b32 v110, v8, v6, vcc")
    a("Lb2:")
    a("v_cmp_gt_u32 vcc, 36, v1", "s_mul_i32 s11, s4, 576", "v_lshl_add_u32 v6, v1, 4, s11", f"v_mov_b32 v8, {OOB}", "v_cndmask_b32 v111, v8, v6, vcc", f"s_mov_b32 s12, {CB}", f"s_mov_b32 s13, {SB}", "s_mov_b64 s[14:15], vcc")
    spin_lds(F_Q)
    poll([f"buffer_load_dwordx4 v[24:27], v111, {WS}, s12 offen sc1", f"buffer_load_dwordx4 v[28:31], v111, {WS}, s13 offen sc1"], range(24, 32), "v8", sleep=8, valid="s[14:15]")
    a("Lb3:")
    a("s_cmp_lg_u32 s4, 1", "s_cbranch_scc1 Lb4")
    spin_lds(F_Q)
    a("v_cmp_gt_u32 vcc, 32, v1", "v_lshlrev_b32 v6, 3, v1", f"v_mov_b32 v8, {OOB}", "v_cndmask_b32 v6, v8, v6, vcc", "s_and_b32 s11, s3, 0xfc", "s_lshl_b32 s11, s11, 6", f"s_add_u32 s12, s11, {ML}", "s_mov_b64 s[14:15], vcc")
    poll([f"buffer_load_dwordx2 v[16:17], v6, {WS}, s12 offen sc1"], [16, 17], "v8", sleep=16, valid="s[14:15]")
    a("v_mov_b32 v18, v16"); rowred("v_max_f32", ["v18"]); xrow("v_max_f32", ["v18"], ["v19"], which=(16,))
    a("v_sub_f32 v16, v16, v18", "v_mul_f32 v16, 0x3fb8aa3b, v16", "v_exp_f32 v16, v16", "v_mul_f32 v17, v16, v17")
    rowred("v_add_f32", ["v17"]); xrow("v_add_f32", ["v17"], ["v19"], which=(16,))
    a("v_rcp_f32 v17, v17", "v_lshlrev_b32 v6, 2, v1", f"v_add_u32 v7, {WTAB}, v6", f"v_add_u32 v6, {DUMP}, v6", "v_cmp_gt_u32 vcc, 32, v1", "v_cndmask_b32 v6, v6, v7, vcc", "v_mul_f32 v16, v16, v17", "ds_write_b32 v6, v16")
    set_flag(F_W)
    a("Lb4:")
    a("v_lshrrev_b32 v6, 1, v2", "v_lshlrev_b32 v6, 13, v6", "v_and_b32 v7, 1, v2", "v_lshl_add_u32 v6, v7, 5, v6", "v_lshl_add_u32 v6, v3, 4, v6",
      "v_and_b32 v7, 40, v1", "v_cmp_eq_u32 vcc, 0, v7", f"v_mov_b32 v8, {OOB}", "v_cndmask_b32 v106, v8, v6, vcc",
      "s_mul_i32 s11, s6, 36", "s_lshl_b32 s11, s11, 13", "s_lshl_b32 s12, s5, 2", "s_add_u32 s12, s12, s7", "s_lshl_b32 s12, s12, 6", "s_add_u32 s11, s11, s12", f"s_add_u32 s11, s11, {T1}",
      "s_lshl_b32 s12, s4, 15", "s_add_u32 s12, s12, s11", f"s_add_u32 s13, s11, {8<<15}", "v_lshlrev_b32 v6, 2, v1")
    a("s_waitcnt vmcnt(0) lgkmcnt(0)", "s_barrier")
    stamp(5)
    for k in range(8): a(f"ds_read2st64_b32 v[{112+2*k}:{113+2*k}], v6 offset0:{OPART//256+2*k} offset1:{OPART//256+2*k+1}")
    for k in range(0, 8, 2): a(f"s_waitcnt lgkmcnt({6-k})", f"v_pk_add_f32 v[{112+2*k}:{113+2*k}], v[{112+2*k}:{113+2*k}], v[{114+2*k}:{115+2*k}]")
    a("v_pk_add_f32 v[112:113], v[112:113], v[116:117]", "v_pk_add_f32 v[120:121], v[120:121], v[124:125]", "v_pk_add_f32 v[112:113], v[112:113], v[120:121]", "v_add_f32 v16, v112, v113", "v_cvt_pk_bf16_f32 v16, v16, v16")
    def womerge(D, T, so):
        for k in range(4): a(f"v_permlane32_swap_b32 v{D+k}, v{T+k}")
        for k in range(4): a(f"v_add_f32_dpp v{D+k}, v{T+k}, v{D+k} row_ror:8 row_mask:0xf bank_mask:0xf")
        tagp(range(D, D+4))
        a(f"buffer_store_dwordx4 v[{D}:{D+3}], v106, {WS}, {so} offen sc1")
    a("s_cmp_eq_u32 s4, 0", "s_cbranch_scc1 Lwo0")
    for n in range(8): bc2(f"v{20+(n&1)}", "v16", 2*n, "v16", 2*n+1); mkA(112+4*(n&1), f"v{20+(n&1)}"); mfma(120, 112+4*(n&1), 32+4*n, n == 0)
    womerge(120, 8, "s12")
    a("s_branch Lwod", "Lwo0:")
    for n in range(8): bc2(f"v{20+(n&1)}", "v16", 2*n, "v16", 2*n+1); mkA(112+4*(n&1), f"v{20+(n&1)}"); mfma(120, 112+4*(n&1), 32+4*n, n == 0); mfma(124, 112+4*(n&1), 64+4*n, n == 0)
    womerge(120, 8, "s12"); womerge(124, 16, "s13")
    a("Lwod:")
    stamp(6)
    a("s_cmp_eq_u32 s69, 1", "s_cbranch_scc1 Lffn", "s_cmp_eq_u32 s69, 2", "s_cbranch_scc1 Lred", "s_branch Lfin")
    a("Lred:")
    srd(48, P["out"], 2304)
    a("v_lshlrev_b32 v6, 4, v1", "s_lshl_b32 s12, s68, 13", "s_lshl_b32 s11, s4, 10", "s_add_u32 s12, s12, s11", f"s_add_u32 s12, s12, {T1}",
      "s_mul_i32 s13, s68, 9216", "s_add_u32 s13, s13, s11", f"s_add_u32 s13, s13, {T3}", "s_add_u32 s14, s13, 8192", "s_cmp_eq_u32 s4, 0", f"s_cselect_b32 s14, s14, {OOB}",
      "v_and_b32 v7, 12, v1", "v_cmp_eq_u32 vcc, 0, v7", "v_and_b32 v7, 3, v1", "v_lshlrev_b32 v7, 4, v7", "v_lshl_add_u32 v7, v3, 6, v7", "s_lshl_b32 s11, s4, 8", f"s_add_u32 s11, s11, {RPART}",
      "v_add_u32 v7, s11, v7", f"v_add_u32 v8, {DUMP}, v6", "v_cndmask_b32 v7, v8, v7, vcc", "v_lshlrev_b32 v9, 2, v2", "v_lshl_add_u32 v9, v3, 9, v9", f"v_add_u32 v9, {RPART}, v9")
    def final_sum():
        for k in range(4): a(f"ds_read2_b32 v[{40+2*k}:{41+2*k}], v9 offset0:{32*k} offset1:{32*k+16}")
        a("s_waitcnt lgkmcnt(2)", "v_pk_add_f32 v[40:41], v[40:41], v[42:43]", "s_waitcnt lgkmcnt(0)", "v_pk_add_f32 v[44:45], v[44:45], v[46:47]", "v_pk_add_f32 v[40:41], v[40:41], v[44:45]", "v_add_f32 v40, v40, v41")
        xrow("v_add_f32", ["v40"], ["v41"]); rne("v40", "v40")
    poll([f"buffer_load_dwordx4 v[32:35], v6, {WS}, s12 offen sc1"], range(32, 36), "v8", sleep=TSL)
    rowred("v_add_f32", [f"v{32+k}" for k in range(4)], steps=(8, 4))
    a("ds_write_b128 v7, v[32:35]", "s_waitcnt lgkmcnt(0)", "s_barrier")
    stamp(7)
    a("s_cmp_lg_u32 s4, 1", "s_cbranch_scc1 Lred2")
    final_sum(); a("v_mul_f32 v40, v40, v108"); rne("v40", "v40"); a("v_add_f32 v107, v107, v40"); rne("v107", "v107")
    a("s_lshl_b32 s11, s68, 6", f"s_add_u32 s11, s11, {T2}", "v_or_b32 v40, v107, v0")
    for k in range(R2//4): a(f"buffer_store_dword v40, v111, {WS}, s11 offen sc1", f"s_add_u32 s11, s11, {4*4608}")
    a("Lred2:")
    a("s_cmp_eq_u32 s4, 0", "s_cbranch_scc1 Lred3")
    poll([f"buffer_load_dwordx4 v[32:35], v6, {WS}, s13 offen sc1"], range(32, 36), "v8")
    a("s_branch Lred4", "Lred3:")
    poll([f"buffer_load_dwordx4 v[32:35], v6, {WS}, s13 offen sc1", f"buffer_load_dwordx4 v[36:39], v6, {WS}, s14 offen sc1"], range(32, 40), "v8")
    a("v_pk_add_f32 v[32:33], v[32:33], v[36:37]", "v_pk_add_f32 v[34:35], v[34:35], v[38:39]", "Lred4:")
    rowred("v_add_f32", [f"v{32+k}" for k in range(4)], steps=(8, 4))
    a("ds_write_b128 v7, v[32:35]", "s_waitcnt lgkmcnt(0)", "s_barrier")
    a("s_cmp_lg_u32 s4, 1", "s_cbranch_scc1 Lfin")
    final_sum(); a("v_mul_f32 v40, v40, v109"); rne("v40", "v40"); a("v_add_f32 v40, v107, v40", "v_cvt_pk_bf16_f32 v40, v40, v40", "buffer_store_short v40, v110, s[48:51], 0 offen")
    a("s_cmp_lg_u32 s68, 0", "s_cbranch_scc1 Lfin", "v_mov_b32 v41, s97", f"s_mov_b32 s11, {EP}", "s_mov_b64 exec, 1", f"buffer_store_dword v41, v5, {WS}, s11 offen sc1", "s_mov_b64 exec, -1")
    a("s_branch Lfin")
    a("Lffn:")
    a("v_lshrrev_b32 v6, 2, v2", "v_lshl_add_u32 v6, v3, 3, v6", "v_lshlrev_b32 v6, 6, v6", "v_and_b32 v7, 3, v1", "v_lshl_add_u32 v6, v7, 3, v6",
      "s_bfe_u32 s11, s4, 0x10001", "s_mul_i32 s11, s11, 36864", "s_and_b32 s12, s4, 1", "s_lshl_b32 s12, s12, 5", "s_add_u32 s11, s11, s12", "s_lshr_b32 s12, s4, 2", f"s_mul_i32 s13, s12, {9*2048}",
      "s_add_u32 s11, s11, s13", f"s_add_u32 s11, s11, {GU}", "v_add_u32 v6, s11, v6")
    for n in range(9): a(f"ds_read_b64_tr_b16 v[{32+4*n}:{33+4*n}], v6 offset:{2048*n}", f"ds_read_b64_tr_b16 v[{34+4*n}:{35+4*n}], v6 offset:{2048*n+256}")
    a("v_and_b32 v7, 1, v1", "v_mul_u32_u24 v7, 1152, v7", "v_lshl_add_u32 v7, v3, 4, v7", "s_mul_i32 s13, s12, 576", f"s_add_u32 s13, s13, {H2T}", "v_add_u32 v104, s13, v7")
    a("s_mul_i32 s13, s4, 288", f"s_add_u32 s13, s13, {H2T}", "v_lshl_add_u32 v7, v1, 3, s13", "v_lshlrev_b32 v8, 3, v1", f"v_add_u32 v8, {DUMP}, v8", "v_cmp_gt_u32 s[14:15], 36, v1", "v_cndmask_b32 v105, v8, v7, s[14:15]")
    a("s_lshl_b32 s13, s4, 7", f"s_add_u32 s13, s13, {GTAB}", "v_lshlrev_b32 v7, 6, v2", "v_lshl_add_u32 v7, v3, 4, v7", "v_add_u32 v7, s13, v7", "v_lshlrev_b32 v8, 4, v1", f"v_add_u32 v8, {DUMP}, v8",
      "v_cmp_gt_u32 vcc, 2, v2", "v_cndmask_b32 v107, v8, v7, vcc")
    a("v_and_b32 v7, 7, v2", "v_lshl_add_u32 v7, v7, 2, v3", "v_lshrrev_b32 v8, 4, v7", "v_and_b32 v7, 15, v7", "v_lshlrev_b32 v7, 2, v7", "v_lshl_add_u32 v7, v8, 7, v7", "v_lshrrev_b32 v8, 3, v2",
      "v_lshl_add_u32 v7, v8, 6, v7", f"v_add_u32 v108, {GTAB}, v7")
    a("s_lshl_b32 s13, s4, 3", f"s_add_u32 s13, s13, {STAT}", "v_mov_b32 v109, s13", "s_lshl_b32 s13, s12, 5", f"s_add_u32 s13, s13, {STAT}", "v_mov_b32 v9, s13", f"s_and_b32 s12, s10, {R2-1}", "s_mul_i32 s12, s12, 4608", f"s_add_u32 s12, s12, {T2}")
    poll([f"buffer_load_dwordx4 v[16:19], v111, {WS}, s12 offen sc1"], range(16, 20), "v8", valid="s[14:15]", sleep=TSL)
    stamp(7)
    a("v_readfirstlane_b32 s11, v16")
    for k in range(4): a(f"v_subrev_f32 v{20+k}, s11, v{16+k}")
    a("v_add_f32 v10, v20, v21", "v_mul_f32 v11, v20, v20", "v_add_f32 v10, v10, v22", "v_fmac_f32 v11, v21, v21", "v_add_f32 v10, v10, v23", "v_fmac_f32 v11, v22, v22", "v_fmac_f32 v11, v23, v23",
      "v_cndmask_b32 v10, 0, v10, s[14:15]", "v_cndmask_b32 v11, 0, v11, s[14:15]")
    rowred("v_add_f32", ["v10", "v11"]); xrow("v_add_f32", ["v10", "v11"], ["v20", "v21"])
    a("v_mul_f32 v20, 0x3be38e39, v10", "v_fma_f32 v11, -v20, v10, v11", "v_add_f32 v10, s11, v20", "ds_write_b64 v109, v[10:11]", "s_waitcnt lgkmcnt(0)", "s_barrier",
      "ds_read_b128 v[112:115], v9", "ds_read_b128 v[116:119], v9 offset:16", "s_waitcnt lgkmcnt(0)",
      "v_add_f32 v10, v112, v114", "v_add_f32 v11, v116, v118", "v_add_f32 v20, v113, v115", "v_add_f32 v21, v117, v119", "v_add_f32 v10, v10, v11", "v_add_f32 v11, v20, v21", "v_mul_f32 v10, 0x3e800000, v10",
      "v_sub_f32 v112, v112, v10", "v_sub_f32 v114, v114, v10", "v_sub_f32 v116, v116, v10", "v_sub_f32 v118, v118, v10",
      "v_mul_f32 v20, v112, v112", "v_fmac_f32 v20, v114, v114", "v_fmac_f32 v20, v116, v116", "v_fmac_f32 v20, v118, v118", "v_mul_f32 v11, 0x3ae38e39, v11", "v_fmac_f32 v11, 0x3e800000, v20")
    lnstats("v10", "v11")
    for k in range(4): a(f"v_sub_f32 v{16+k}, v{16+k}, v10")
    def rne2(x, y): a(f"v_cvt_pk_bf16_f32 v{y}, v{x}, v{y}", f"v_lshlrev_b32 v{x}, 16, v{y}", f"v_and_b32 v{y}, 0xffff0000, v{y}")
    rne2(16, 17); rne2(18, 19)
    for k in range(4): a(f"v_mul_f32 v{16+k}, v{16+k}, v11")
    rne2(16, 17); rne2(18, 19)
    for k in range(4): a(f"v_mul_f32 v{16+k}, v{16+k}, v{24+k}")
    rne2(16, 17); rne2(18, 19)
    for k in range(4): a(f"v_add_f32 v{16+k}, v{16+k}, v{28+k}")
    a("v_cvt_pk_bf16_f32 v16, v16, v17", "v_cvt_pk_bf16_f32 v17, v18, v19", "ds_write_b64 v105, v[16:17]", "s_waitcnt lgkmcnt(0)", "s_barrier")
    hb = [8, 16, 20, 24, 28, 68, 112, 116, 124]
    for n in range(9): a(f"ds_read_b128 v[{hb[n]}:{hb[n]+3}], v104 offset:{64*n}")
    for n in range(9): a(f"s_waitcnt lgkmcnt({8-n})"); mfma(120, 32+4*n, hb[n], n == 0)
    a("ds_write_b128 v107, v[120:123]", "s_waitcnt lgkmcnt(0)", "s_barrier")
    a("s_cmp_lt_u32 s4, 3", "s_cbranch_scc1 Lfin")
    a("ds_read2st64_b32 v[16:17], v108 offset0:0 offset1:1", "ds_read2st64_b32 v[18:19], v108 offset0:2 offset1:3", "s_waitcnt lgkmcnt(0)", "v_pk_add_f32 v[16:17], v[16:17], v[18:19]")
    rne2(16, 17)
    a("v_mul_f32 v18, v16, v16", "v_mov_b32 v19, 0xc0135761", "v_fmac_f32 v19, 0xbdd2d3e8, v18", "v_mul_f32 v18, v16, v19", "v_exp_f32 v18, v18", "v_add_f32 v18, 1.0, v18", "v_rcp_f32 v18, v18", "v_mul_f32 v16, v16, v18")
    rne("v16", "v16"); a("v_mul_f32 v16, v16, v17", "v_cvt_pk_bf16_f32 v16, v16, v16")
    for n in range(8): bc2(f"v{20+(n&1)}", "v16", n, "v16", 8+n); mkA(112+4*(n&1), f"v{20+(n&1)}"); mfma(120, 112+4*(n&1), 72+4*n, n == 0)
    tagp(range(120, 124)); a(f"buffer_store_dwordx4 v[120:123], v110, {WS}, 0 offen sc1")
    a("Lfin:")
    if TS:
        stamp(10)
        a("s_cmp_eq_u32 s4, 1", "s_cbranch_scc1 Lts1", "s_cmp_eq_u32 s4, 2", "s_cbranch_scc1 Lts2", "s_cmp_eq_u32 s4, 3", "s_cbranch_scc1 Lts3", "s_endpgm")
        a("Lts1:"); a("s_waitcnt lgkmcnt(0)", "s_mov_b64 s[94:95], s[92:93]"); flush_stamps([9, 11, 13]); a("s_endpgm")
        a("Lts2:"); flush_stamps([2, 12, 15]); a("s_endpgm")
        a("Lts3:"); flush_stamps([0, 1, 5, 6, 7, 10, 14])
    a("Lend:")
    hdr = open("adaLN_cond__mha_block_cached__geglu_ffn__decode.s.ref").read().split("; Override launch")[0]
    return (hdr + f"; @launch grid=(256,1,1) block=(1024,1,1) lds={LDSN}\n.amdgcn_target \"amdgcn-amd-amdhsa--gfx950\"\n.text\n.globl {KN}\n.p2align 8\n.type {KN},@function\n{KN}:\n"
        + a.text() + f"""    s_endpgm
.section .rodata,"a"
.p2align 6
.amdhsa_kernel {KN}
  .amdhsa_next_free_vgpr 128
  .amdhsa_next_free_sgpr 102
  .amdhsa_accum_offset 128
  .amdhsa_group_segment_fixed_size 0
  .amdhsa_kernarg_size 112
  .amdhsa_user_sgpr_count 2
  .amdhsa_user_sgpr_kernarg_segment_ptr 1
  .amdhsa_system_sgpr_workgroup_id_x 1
.end_amdhsa_kernel
""")
if __name__ == "__main__":
    out = sys.argv[1]; kw = {}
    for x in sys.argv[2:]:
        k, v = x.split("="); kw[k] = eval(v)
    open(out, "w").write(gen(**kw))
```

```python
import sys
from asmlib import Asm
KN = "adaLN_cond__mha_block_cached__geglu_ffn__decode_kernel"
QP=0; T1=0xC0000; T3=0x150000; ML=0x1F2000; CB=0x1F6000; SB=0x1F7200; EP=0x1F9000; MODP=0x200000; T2=0x240000; PEX=0x300000; WSN=0x400000
OOB=0x40000000
OPART=0; RPART=4096; HTAB=6400; QTAB=7040; WTAB=7296; STAT=7424; FL=7488; H2T=7552; GTAB=9856; DUMP=10880; GU=12288; LDSN=86016
F_Q=FL; F_H=FL+4; F_M=FL+8; F_W=FL+12
def TSR(k): return {13: 100, 14: 90, 12: 74, 15: 78}.get(k, 72+2*k)
def br4(r): return int(f"{r:04b}"[::-1], 2)
def gen(RING=20, DEPTH=2, HDEPTH=1, CATCH=2, TS=False, NT=" nt", NTW=" nt", PPOS=8, PDEPTH=2, PSLEEP=2, WQD=1, BULKWAIT=0, R2=8, MWAIT=1, SKIP='', TSL=0, NTG=' nt', GD=1, GSPL=1, PF=0, PFD=1, NTP='', GULAST=0, PFN=12, GUS=0, GP0=36, GST=3, DSW=64, DEPTH2=4, LV=None, LP0=32, FMAP=0, XM=0, SCOUT=0):
    a = Asm()
    def srd(r, p, n): a(f"s_mov_b32 s{r}, s{p}", f"s_and_b32 s{r+1}, s{p+1}, 0xffff", f"s_mov_b32 s{r+2}, {n}", f"s_mov_b32 s{r+3}, 0x20000")
    P = dict(x=16, K=18, V=20, wq=22, wo=24, wg=28, wu=30, wd=32, c=34, wm=36, out=38, dbg=40, ws=42)
    WS = "s[44:47]"
    def stamp(k):
        if TS: a(f"s_memrealtime s[{TSR(k)}:{TSR(k)+1}]")
    def flush_stamps(ks):
        if not TS: return
        a("s_waitcnt lgkmcnt(0)", "s_lshl_b32 s11, s2, 7", "s_add_u32 s11, s11, 0x8000000", "v_mov_b32 v4, s11", "s_mov_b64 exec, 1")
        for k in ks: a(f"v_mov_b32 v6, s{TSR(k)}", f"v_mov_b32 v7, s{TSR(k)+1}", f"global_store_dwordx2 v4, v[6:7], s[42:43] offset:{8*k}", "s_waitcnt vmcnt(0)")
        a("s_mov_b64 exec, -1")
    def spin_lds(flag, t="v4"):
        l = a.label("Lsp"); d = a.label("Lspd")
        a(f"{l}:", f"ds_read_b32 {t}, v5 offset:{flag}", "s_waitcnt lgkmcnt(0)", f"v_readfirstlane_b32 s11, {t}", "s_cmp_lg_u32 s11, 0", f"s_cbranch_scc1 {d}",
          "s_sleep 1", "s_sub_u32 s70, s70, 1", "s_cmp_gt_i32 s70, 0", f"s_cbranch_scc1 {l}", f"{d}:")
    def set_flag(flag, t="v4"):
        a("s_waitcnt lgkmcnt(0)", f"v_mov_b32 {t}, 1", f"ds_write_b32 v5, {t} offset:{flag}")
    def tagp(rs, rnd=False):
        for r in rs:
            if rnd: a(f"v_add_u32 v{r}, 0x200, v{r}")
        for r in rs: a(f"v_bfi_b32 v{r}, s96, v0, v{r}")
    def pollx(loads, rs, t, valid=None, clean=True, sleep=0):
        l = a.label("Lpx"); d = a.label("Lpxd")
        if valid: a(f"s_mov_b64 exec, {valid}")
        a(f"{l}:"); a(*loads); a("s_waitcnt vmcnt(0)")
        rs = list(rs); a(f"v_xor_b32 {t}, v{rs[0]}, v0")
        for r in rs[1:]: a(f"v_bitop3_b32 {t}, {t}, v{r}, v0 bitop3:0xf6")
        a(f"v_and_b32 {t}, s96, {t}", f"v_cmp_ne_u32 vcc, 0, {t}", "s_and_b64 exec, vcc, vcc", f"s_cbranch_scc0 {d}")
        if sleep: a(f"s_sleep {sleep}")
        a("s_sub_u32 s70, s70, 1", "s_cmp_gt_i32 s70, 0", f"s_cbranch_scc1 {l}", f"{d}:", "s_mov_b64 exec, -1")
        if clean:
            for r in rs: a(f"v_and_b32 v{r}, s98, v{r}")
    def poll(loads, rs, t, sleep=0, first=True, valid=None, clean=True, xm=0):
        if xm: return pollx(loads, rs, t, valid, clean, sleep)
        l = a.label("Lpo"); d = a.label("Lpod"); c = a.label("Lpoc")
        if not first: a(f"s_branch {c}")
        a(f"{l}:"); a(*loads); a("s_waitcnt vmcnt(0)"); a(f"{c}:")
        rs = list(rs); a(f"v_xor_b32 {t}, v{rs[0]}, v0")
        for r in rs[1:]: a(f"v_bitop3_b32 {t}, {t}, v{r}, v0 bitop3:0xf6")
        a(f"v_and_b32 {t}, s96, {t}", f"v_cmp_ne_u32 vcc, 0, {t}")
        if valid: a(f"s_and_b64 vcc, vcc, {valid}", f"s_cbranch_scc0 {d}")
        else: a(f"s_cbranch_vccz {d}")
        if sleep: a(f"s_sleep {sleep}")
        a("s_sub_u32 s70, s70, 1", "s_cmp_gt_i32 s70, 0", f"s_cbranch_scc1 {l}", f"{d}:")
        if clean:
            for r in rs: a(f"v_and_b32 v{r}, s98, v{r}")
    def rne(d, s): a(f"v_cvt_pk_bf16_f32 {d}, {s}, {s}", f"v_and_b32 {d}, 0xffff0000, {d}")
    def rowred(op, rs, steps=(8,4,2,1)):
        for st in steps:
            for r in rs: a(f"{op}_dpp {r}, {r}, {r} row_ror:{st} row_mask:0xf bank_mask:0xf")
    def xrow(op, rs, ts, which=(16,32)):
        for wd in which:
            for r, t in zip(rs, ts): a(f"v_mov_b32 {t}, {r}")
            for r, t in zip(rs, ts): a(f"v_permlane{wd}_swap_b32 {r}, {t}")
            for r, t in zip(rs, ts): a(f"{op} {r}, {r}, {t}")
    def masks():
        a("v_and_b32 v4, 7, v1", "v_and_b32 v6, 1, v1", "v_lshlrev_b32 v6, 4, v6", "v_mov_b32 v7, 0xffff", "v_lshlrev_b32 v6, v6, v7", "v_lshrrev_b32 v4, 1, v4")
        for r in range(4): a(f"v_cmp_eq_u32 vcc, {r}, v4", f"v_cndmask_b32 v{12+r}, 0, v6, vcc")
    def mkA(A, pp):
        for r in range(4): a(f"v_and_b32 v{A+r}, {pp}, v{12+r}")
    def bc2(pp, lo, nlo, hi, nhi):
        a(f"v_mov_b32_dpp {pp}, {lo} row_newbcast:{nlo} row_mask:0xf bank_mask:0x3", f"v_mov_b32_dpp {pp}, {hi} row_newbcast:{nhi} row_mask:0xf bank_mask:0xc")
    def mfma(D, A, B, first): a(f"v_mfma_f32_16x16x32_bf16 v[{D}:{D+3}], v[{A}:{A+3}], v[{B}:{B+3}], " + ("0" if first else f"v[{D}:{D+3}]"))
    a("s_cmp_ge_u32 s2, 256", "s_cbranch_scc1 Lend")
    stamp(0)
    a("s_load_dwordx16 s[16:31], s[0:1], 0", "s_load_dwordx8 s[32:39], s[0:1], 64", "s_load_dwordx4 s[40:43], s[0:1], 96")
    a("v_lshrrev_b32 v2, 6, v0", "v_and_b32 v1, 63, v0", "v_mov_b32 v5, 0", "v_readfirstlane_b32 s4, v2")
    a("s_and_b32 s9, s2, 7", "s_lshr_b32 s8, s2, 3", "s_lshl_b32 s3, s9, 5", "s_or_b32 s3, s3, s8")
    a("s_lshr_b32 s5, s3, 3", "s_bfe_u32 s6, s3, 0x10002", "s_and_b32 s7, s3, 3", "s_mov_b32 s70, 0x100000")
    a("v_and_b32 v2, 15, v1", "v_lshrrev_b32 v3, 4, v1")
    if FMAP:
        pk = lambda q: sum(v << (4*i) for i, v in enumerate(q))
        ce, co, c5 = pk([1,3,5,7,0,2,4,6,8]), pk([0,2,4,8,6,1,3,5,7]), pk([0,2,6,8,4,1,3,5,7])
        a("s_bitcmp1_b32 s9, 0", f"s_cselect_b32 s12, {co & 0xffffffff}, {ce & 0xffffffff}".replace(f", {ce & 0xffffffff}", ", s70"), f"s_cselect_b32 s13, {co >> 32}, {ce >> 32}", "s_cbranch_scc1 Lfm", f"s_mov_b32 s12, {ce & 0xffffffff}", "Lfm:",
          "s_cmp_eq_u32 s9, 5", f"s_cselect_b32 s12, {c5 & 0xffffffff}, s12", "s_and_b32 s10, s8, 1", "s_mul_i32 s10, s10, 9", "s_lshr_b32 s11, s8, 1", "s_add_u32 s10, s10, s11",
          "s_lshr_b32 s11, s10, 1", "s_lshl_b32 s11, s11, 2", "s_lshr_b64 s[12:13], s[12:13], s11", "s_and_b32 s12, s12, 15", "s_mul_i32 s11, s9, 9", "s_add_u32 s12, s12, s11", "s_and_b32 s10, s10, 1", "s_lshl1_add_u32 s10, s12, s10")
    else: a("s_mul_i32 s10, s9, 18", "s_add_u32 s10, s10, s8")
    masks()
    a("s_waitcnt lgkmcnt(0)", f"s_add_u32 s12, s42, {EP}", "s_addc_u32 s13, s43, 0", "s_load_dword s97, s[12:13], 0", "s_movk_i32 s96, 0x3ff", "s_mov_b32 s98, 0xfffffc00")
    srd(44, P["ws"], WSN)
    a("s_cmp_lt_u32 s4, 8", "s_cbranch_scc1 Lhelper")
    a("s_sub_u32 s4, s4, 8")
    srd(48, P["K"], 0x4000000); srd(52, P["V"], 0x4000000)
    a("s_lshl_b32 s11, s6, 5", "s_add_u32 s11, s11, s5", "s_lshl_b32 s11, s11, 20", "s_lshl_b32 s12, s4, 15", "s_add_u32 s11, s11, s12",
      "s_lshl_b32 s12, s7, 18", "s_add_u32 s12, s12, s11", "s_xor_b32 s13, s7, 1", "s_lshl_b32 s13, s13, 18", "s_add_u32 s13, s13, s11")
    a("v_lshl_add_u32 v6, v1, 4, s12")
    a("v_bfe_u32 v4, v1, 3, 1", "v_lshl_add_u32 v4, v4, 2, v3", "v_lshlrev_b32 v4, 8, v4", "v_and_b32 v7, 7, v1", "v_lshl_add_u32 v4, v7, 4, v4",
      "s_and_b32 s14, s7, 1", "s_lshl_b32 s14, s14, 7", "v_add_u32 v4, s14, v4", "v_add_u32 v7, s12, v4", "v_add_u32 v30, s13, v4")
    a("s_mov_b32 s64, 0xcccccccc", "s_mov_b32 s65, 0xcccccccc", "s_mov_b32 s66, 0xaaaaaaaa", "s_mov_b32 s67, 0xaaaaaaaa")
    a("s_barrier")
    ops = []
    def slot(i): return 32 + 4*(i % RING)
    def issue(i):
        r = slot(i)
        if i < 32: a(f"s_movk_i32 s15, {i*1024}", f"buffer_load_dwordx4 v[{r}:{r+3}], v6, s[48:51], s15 offen{NT}")
        else:
            n = (i-32) % 16; v = "v7" if i < 48 else "v30"
            a(f"s_movk_i32 s15, {n*2048}", f"buffer_load_dwordx4 v[{r}:{r+3}], {v}, s[52:55], s15 offen{NT}")
        ops.append(i)
    done = [0]
    def waitn(n):
        if len(ops) - n > done[0]: done[0] = len(ops) - n; a(f"s_waitcnt vmcnt({n})")
    def wait_for(tag): waitn(len(ops) - 1 - ops.index(tag))
    def procK(i):
        wait_for(i+1); r0 = slot(i); r1 = slot(i+1)
        for k in range(4):
            a(f"v_dot2_f32_bf16 v20, v{r0+k}, v{8+k}, " + ("0" if k == 0 else "v20"), f"v_dot2_f32_bf16 v21, v{r1+k}, v{8+k}, " + ("0" if k == 0 else "v21"))
        j = i % 16; T = 22 + (j >> 1 & 1)
        a(f"v_add_f32_dpp v{T}, v20, v20 row_ror:8 row_mask:0xf bank_mask:0x3", f"v_add_f32_dpp v{T}, v21, v21 row_ror:8 row_mask:0xf bank_mask:0xc")
        if j & 2:
            U = 24 + (j >> 2 & 1)
            a(f"v_add_f32_dpp v{U}, v22, v22 row_half_mirror row_mask:0xf bank_mask:0x5", f"v_add_f32_dpp v{U}, v23, v23 row_half_mirror row_mask:0xf bank_mask:0xa")
            if j & 4:
                W = 26 + (j >> 3 & 1)
                a("v_cndmask_b32 v28, v24, v25, s[64:65]", "v_cndmask_b32 v29, v25, v24, s[64:65]", f"v_add_f32_dpp v{W}, v29, v28 quad_perm:[2,3,0,1] row_mask:0xf bank_mask:0xf")
                if j & 8:
                    a("v_cndmask_b32 v28, v26, v27, s[66:67]", "v_cndmask_b32 v29, v27, v26, s[66:67]", f"v_add_f32_dpp v{16+i//16}, v29, v28 quad_perm:[1,0,3,2] row_mask:0xf bank_mask:0xf")
    def softmax():
        a("v_cvt_pk_bf16_f32 v20, v16, v17", "s_mov_b32 s11, 0x3db504f3", "v_lshlrev_b32 v16, 16, v20", "v_and_b32 v17, 0xffff0000, v20",
          "v_mul_f32 v16, s11, v16", "v_mul_f32 v17, s11, v17", "v_cvt_pk_bf16_f32 v20, v16, v17", "v_lshlrev_b32 v16, 16, v20", "v_and_b32 v17, 0xffff0000, v20",
          "v_max_f32 v22, v16, v17")
        rowred("v_max_f32", ["v22"]); xrow("v_max_f32", ["v22"], ["v21"])
        a("s_mov_b32 s11, 0x3fb8aa3b", "v_sub_f32 v16, v16, v22", "v_sub_f32 v17, v17, v22", "v_mul_f32 v16, s11, v16", "v_mul_f32 v17, s11, v17",
          "v_exp_f32 v16, v16", "v_exp_f32 v17, v17", "v_add_f32 v23, v16, v17", "v_cvt_pk_bf16_f32 v16, v16, v16", "v_cvt_pk_bf16_f32 v17, v17, v17",
          "s_mov_b32 s14, 0xffff", "v_bfi_b32 v20, s14, v0, v16", "v_bfi_b32 v21, s14, v0, v17")
        a("s_lshl_b32 s11, s3, 3", "s_add_u32 s11, s11, s4", "s_lshl_b32 s12, s11, 9", f"s_add_u32 s12, s12, {PEX}", "v_lshlrev_b32 v31, 3, v1",
          f"buffer_store_dwordx2 v[20:21], v31, {WS}, s12 offen sc1"); ops.append("pst")
        a("s_xor_b32 s13, s12, 0x1000")
        rowred("v_add_f32", ["v23"]); xrow("v_add_f32", ["v23"], ["v25"]); tagp([22, 23])
        a("v_cmp_eq_u32 vcc, 0, v1", f"v_mov_b32 v24, {OOB}", "v_cndmask_b32 v24, v24, v5, vcc", "s_lshl_b32 s11, s11, 3", f"s_add_u32 s11, s11, {ML}",
          f"buffer_store_dwordx2 v[22:23], v24, {WS}, s11 offen sc1"); ops.append("mlst")
    def procV(i):
        n = (i-32) % 16; par = i >= 48; D = 124 if par else 120; A = 112 + 4*(i & 1); u = n >> 3; n1 = n & 7
        src = f"v{(18 if par else 16)+u}"
        if i == 48:
            wait_for("pld")
            poll([f"buffer_load_dwordx2 v[26:27], v31, {WS}, s13 offen sc1"], [26, 27], "v28", first=False, clean=False)
            a("s_mov_b32 s14, 0x03020302", "v_perm_b32 v18, v26, v26, s14", "v_perm_b32 v19, v27, v27, s14")
        bc2(f"v{20+(i&1)}", src, br4(2*n1), src, br4(2*n1+1)); mkA(A, f"v{20+(i&1)}")
        wait_for(i); mfma(D, A, slot(i), n == 0)
    issued = 0
    for i in range(RING): issue(i); issued += 1; waitn(PDEPTH)
    a("s_waitcnt lgkmcnt(0)", "s_add_u32 s97, s97, 1", "s_and_b32 s99, s97, s96", "v_mov_b32 v0, s99")
    stamp(8)
    spin_lds(F_Q)
    a(f"v_lshlrev_b32 v4, 4, v2", f"ds_read_b128 v[8:11], v4 offset:{QTAB}", "s_waitcnt lgkmcnt(0)")
    proc = 0
    if LV:
        a("s_and_b32 s63, s7, 1", f"s_mul_i32 s63, s63, {LV[1]}", f"s_add_u32 s63, s63, {LV[0]}", "s_and_b32 s11, s10, 14", "s_cmp_eq_u32 s11, 6",
          f"s_cselect_b32 s11, {LV[2]+LV[3]}, {LV[3]}", "s_cmp_lt_u32 s8, 18", "s_cselect_b32 s11, s11, 0", "s_add_u32 s63, s63, s11")
    def dep(i): return (DEPTH if i < DSW else DEPTH2) + (1 if LV and i >= LP0 else 0)
    while proc < 64:
        cnt = 0
        while proc < 64 and cnt < CATCH and (proc < issued - dep(issued) - (1 if proc < 32 else 0) or issued == 64):
            if proc < 32:
                procK(proc); proc += 2; cnt += 2
                if proc == 32: softmax(); stamp(3)
            else: procV(proc); proc += 1; cnt += 1
        if issued < 64 and issued - proc < RING:
            issue(issued); issued += 1
            if GUS and issued == 33:
                a("s_cmp_lt_u32 s4, 4", "s_cselect_b32 s56, s28, s30", "s_cselect_b32 s57, s29, s31", "s_and_b32 s57, s57, 0xffff", "s_cmp_lt_u32 s8, 18", f"s_cselect_b32 s58, {576*9216}, 0", "s_mov_b32 s59, 0x20000",
                  "s_lshl_b32 s60, s10, 6", "s_and_b32 s61, s4, 3", f"s_mul_i32 s62, s61, {16*9216}", "s_add_u32 s60, s60, s62",
                  "v_lshrrev_b32 v6, 2, v1", "v_mul_u32_u24 v6, 9216, v6", "v_and_b32 v4, 3, v1", "v_lshl_add_u32 v6, v4, 4, v6", "v_add_u32 v6, s60, v6",
                  "s_lshr_b32 s62, s4, 2", "s_mul_i32 s62, s62, 36864", "s_lshl_b32 s61, s61, 10", "s_add_u32 s61, s61, s62", f"s_add_u32 s61, s61, {GU}", "s_mov_b32 s62, 0")
            if GUS and issued >= GP0 and (issued - GP0) % GST == 0 and (issued - GP0)//GST < 9:
                a("s_mov_b32 m0, s61", "s_add_u32 s61, s61, 4096", f"buffer_load_dwordx4 v6, s[56:59], s62 offen{NTG} lds", f"s_add_u32 s62, s62, {64*9216}"); ops.append(f"gu{issued}")
            waitn(dep(issued))
            if LV and issued >= LP0:
                l = a.label("Llv"); a(f"s_cmp_gt_u32 s63, {br4(issued & 15) >> 1}", f"s_cbranch_scc1 {l}", f"s_waitcnt vmcnt({dep(issued)-1})", f"{l}:")
        if "mlst" in ops and "pld" not in ops and proc >= 32 + PPOS:
            a(f"buffer_load_dwordx2 v[26:27], v31, {WS}, s13 offen sc1"); ops.append("pld")
    spin_lds(F_W)
    a("s_lshl_b32 s11, s7, 3", "s_add_u32 s11, s11, s4", "s_lshl_b32 s11, s11, 2", "v_mov_b32 v4, s11", "v_xor_b32 v6, 32, v4",
      f"ds_read_b32 v20, v4 offset:{WTAB}", f"ds_read_b32 v21, v6 offset:{WTAB}")
    a("v_lshrrev_b32 v22, 3, v2", "v_lshrrev_b32 v23, 1, v3", "v_cmp_eq_u32 vcc, v22, v23", "v_and_b32 v23, 7, v1", "v_lshlrev_b32 v23, 5, v23", "v_and_b32 v24, 1, v3",
      "v_lshl_add_u32 v23, v24, 4, v23", "v_lshl_add_u32 v23, v22, 8, v23", "s_lshl_b32 s11, s4, 9", f"s_add_u32 s11, s11, {OPART}", "v_add_u32 v23, s11, v23",
      "v_lshlrev_b32 v24, 4, v1", f"v_add_u32 v24, {DUMP}, v24", "v_cndmask_b32 v23, v24, v23, vcc", "s_waitcnt lgkmcnt(0)")
    for r in range(4): a(f"v_mul_f32 v{120+r}, v20, v{120+r}")
    for r in range(4): a(f"v_fmac_f32 v{120+r}, v21, v{124+r}")
    a("ds_write_b128 v23, v[120:123]", "s_waitcnt lgkmcnt(0)")
    stamp(4)
    a("s_barrier")
    if TS:
        a("s_cmp_lg_u32 s4, 0", "s_cbranch_scc1 Lend"); flush_stamps([3, 4, 8])
    a("s_endpgm")
    a("Lhelper:")
    for r in range(104, 112): a(f"v_mov_b32 v{r}, {OOB}")
    a("s_mul_i32 s68, s9, 9", "s_add_u32 s68, s68, s8", "s_sub_u32 s68, s68, 18")
    a("s_mov_b32 s69, 0", "s_cmp_lt_u32 s8, 27", "s_cselect_b32 s69, 2, 0", "s_cmp_lt_u32 s8, 18", "s_cselect_b32 s69, 1, s69")
    a("s_cmp_ge_u32 s68, 36", "s_cselect_b32 s71, 1, 0")
    a("s_cmp_eq_u32 s4, 1", "s_cbranch_scc1 Lw1", "s_cmp_eq_u32 s4, 2", "s_cbranch_scc1 Lw2", "s_cmp_eq_u32 s4, 3", "s_cbranch_scc1 Lw3")
    a("v_mov_b32 v6, 0", "v_mov_b32 v7, 0", "v_mov_b32 v8, 0", "v_mov_b32 v9, 0", f"ds_write_b128 v5, v[6:9] offset:{FL}", "s_waitcnt lgkmcnt(0)", "s_add_u32 s97, s97, 1", "s_and_b32 s99, s97, s96", "v_mov_b32 v0, s99", "s_barrier", "s_branch Lbulk")
    a("Lw1:")
    srd(48, P["wm"], 576*6912); srd(52, P["c"], 2304); srd(60, P["x"], 2304)
    a("s_mul_i32 s11, s3, 7282", "s_lshr_b32 s11, s11, 16", "s_mul_i32 s12, s11, 9", "s_sub_u32 s12, s3, s12")
    a("s_cmp_lt_u32 s3, 243", "s_cbranch_scc1 Lw1a", "s_waitcnt lgkmcnt(0)", "s_add_u32 s97, s97, 1", "s_and_b32 s99, s97, s96", "v_mov_b32 v0, s99", "s_barrier", "s_branch Lw1clr", "Lw1a:")
    a("s_lshl_b32 s13, s12, 6", "v_lshl_add_u32 v6, v2, 2, v3", "v_add_u32 v6, s13, v6", "v_lshlrev_b32 v6, 1, v6",
      "buffer_load_ushort v16, v6, s[52:55], 0 offen", "buffer_load_ushort v17, v6, s[52:55], 0 offen offset:1152")
    a("v_add_u32 v6, s13, v3", "v_mul_u32_u24 v6, 6912, v6", "s_lshl_b32 s14, s11, 8", "v_lshl_add_u32 v6, v2, 4, v6", "v_add_u32 v6, s14, v6")
    for n in range(16): a(f"s_mov_b32 s15, {n*4*6912}", f"buffer_load_dwordx4 v[{32+4*n}:{35+4*n}], v6, s[48:51], s15 offen{NTW}")
    a("s_barrier", "s_waitcnt lgkmcnt(0)", "s_add_u32 s97, s97, 1", "s_and_b32 s99, s97, s96", "v_mov_b32 v0, s99")
    a("s_waitcnt vmcnt(16)")
    for r in (16, 17):
        a(f"v_lshlrev_b32 v{r}, 16, v{r}", f"v_mul_f32 v18, 0xbfb8aa3b, v{r}", "v_exp_f32 v18, v18", "v_add_f32 v18, 1.0, v18", "v_rcp_f32 v18, v18", f"v_mul_f32 v{r}, v{r}, v18", f"v_cvt_pk_bf16_f32 v{r}, v{r}, v{r}")
    for n in range(16):
        bc2(f"v{20+(n&1)}", "v16", n, "v17", n); mkA(112+4*(n&1), f"v{20+(n&1)}"); a(f"s_waitcnt vmcnt({15-n})"); mfma(120, 112+4*(n&1), 32+4*n, n == 0)
    a("v_lshrrev_b32 v6, 1, v3", "v_mul_u32_u24 v6, 13824, v6", "v_and_b32 v7, 1, v3", "v_lshl_add_u32 v6, v7, 4, v6", "v_lshl_add_u32 v6, v2, 5, v6",
      "s_mul_i32 s13, s12, 27648", "s_lshl_b32 s14, s11, 9", "s_add_u32 s13, s13, s14", f"s_add_u32 s13, s13, {MODP}")
    tagp(range(120, 124), True)
    a(f"buffer_store_dwordx4 v[120:123], v6, {WS}, s13 offen sc1"); stamp(13)
    if MWAIT: a("s_waitcnt vmcnt(0)")
    a("Lw1clr:"); set_flag(F_M); stamp(9)
    a("s_cmp_lg_u32 s69, 2", "s_cbranch_scc1 Lbulk")
    spin_lds(F_H)
    a("s_mul_i32 s12, s71, 36", "s_sub_u32 s12, s68, s12", "s_lshl_b32 s12, s12, 4")
    a("v_mul_u32_u24 v6, 576, v3", "v_add3_u32 v6, v6, v2, s12", "v_lshlrev_b32 v6, 2, v6", "s_mul_i32 s13, s71, 13824", f"s_add_u32 s13, s13, {MODP+1152*4}")
    a("s_mul_i32 s14, s71, 576", "s_add_u32 s14, s14, s12", "v_add_u32 v7, s14, v2", "v_lshlrev_b32 v8, 1, v7", "buffer_load_ushort v107, v8, s[60:63], 0 offen")
    poll(sum([[f"s_add_u32 s14, s13, {27648*k}", f"buffer_load_dword v{32+k}, v6, {WS}, s14 offen sc1"] for k in range(9)], []), range(32, 41), "v9", sleep=8)
    for k in range(1, 9): a(f"v_add_f32 v32, v32, v{32+k}")
    rne("v32", "v32"); a("v_add_f32 v33, 1.0, v32"); rne("v33", "v33")
    a("v_cmp_eq_u32 vcc, 2, v3", "v_cndmask_b32 v32, v32, v33, vcc", f"v_mov_b32 v9, {OOB}", f"v_mov_b32 v10, {CB}", "v_cndmask_b32 v9, v9, v10, vcc",
      "v_cmp_eq_u32 vcc, 1, v3", f"v_mov_b32 v10, {SB}", "v_cndmask_b32 v9, v9, v10, vcc", "v_lshl_add_u32 v9, v7, 2, v9", "v_or_b32 v33, v32, v0", f"buffer_store_dword v33, v9, {WS}, 0 offen sc1",
      "v_lshlrev_b32 v10, 2, v2", "v_add_u32 v11, 192, v10", "ds_bpermute_b32 v108, v10, v32", "ds_bpermute_b32 v109, v11, v32", "v_lshlrev_b32 v107, 16, v107",
      "v_cmp_gt_u32 vcc, 16, v1", f"v_mov_b32 v9, {OOB}", "v_cndmask_b32 v110, v9, v8, vcc", "v_mul_u32_u24 v111, 4608, v3", "v_add_u32 v111, v111, v10", "s_waitcnt lgkmcnt(0)", "s_branch Lbulk")
    a("Lw2:")
    srd(48, P["wq"], 576*8192)
    a("s_and_b32 s11, s3, 7", "s_mul_i32 s11, s11, 72", "v_add_u32 v6, s11, v3", "v_lshlrev_b32 v6, 13, v6", "s_lshl_b32 s12, s5, 8", "v_lshl_add_u32 v6, v2, 4, v6", "v_add_u32 v6, s12, v6")
    for n in range(18):
        if WQD < 18 and n == 0: a("s_barrier")
        a(f"s_mov_b32 s15, {n*32768}", f"buffer_load_dwordx4 v[{32+4*n}:{35+4*n}], v6, s[48:51], s15 offen{NTW}")
        if WQD < 18: a(f"s_waitcnt vmcnt({WQD})")
    if WQD >= 18: a("s_barrier")
    a("v_lshrrev_b32 v6, 3, v2", "v_lshl_add_u32 v6, v6, 2, v3", "v_mul_u32_u24 v6, 80, v6")
    a("s_waitcnt lgkmcnt(0)", "s_add_u32 s97, s97, 1", "s_and_b32 s99, s97, s96", "v_mov_b32 v0, s99")
    if TS: a("s_waitcnt vmcnt(0)"); stamp(12)
    spin_lds(F_H)
    hr = [16, 20, 24, 104, 108]
    for k in range(5): a(f"ds_read_b128 v[{hr[k]}:{hr[k]+3}], v6 offset:{HTAB+16*k}")
    a("s_waitcnt vmcnt(0) lgkmcnt(0)")
    for n in range(18): mkA(112+4*(n&1), f"v{hr[n>>2]+(n&3)}"); mfma(120, 112+4*(n&1), 32+4*n, n == 0)
    a("v_lshrrev_b32 v6, 1, v3", "v_lshlrev_b32 v6, 9, v6", "v_and_b32 v7, 1, v3", "v_lshl_add_u32 v6, v7, 4, v6", "v_lshl_add_u32 v6, v2, 5, v6", "s_lshl_b32 s13, s3, 10")
    tagp(range(120, 124), True); a(f"buffer_store_dwordx4 v[120:123], v6, {WS}, s13 offen sc1"); stamp(15)
    a("v_lshrrev_b32 v6, 5, v1", "v_lshlrev_b32 v6, 12, v6", "v_and_b32 v7, 31, v1", "v_lshl_add_u32 v6, v7, 4, v6", "s_lshl_b32 s13, s5, 13", "s_lshl_b32 s14, s6, 9", "s_add_u32 s13, s13, s14")
    poll([f"buffer_load_dwordx4 v[{32+4*t}:{35+4*t}], v6, {WS}, s13 offen offset:{1024*t} sc1" for t in range(4)], range(32, 48), "v8", xm=XM&8)
    for k in range(4): a(f"v_add_f32 v{32+k}, v{32+k}, v{36+k}", f"v_add_f32 v{40+k}, v{40+k}, v{44+k}")
    for k in range(4): a(f"v_add_f32 v{32+k}, v{32+k}, v{40+k}")
    xrow("v_add_f32", [f"v{32+k}" for k in range(4)], [f"v{36+k}" for k in range(4)], which=(32,))
    a("v_cvt_pk_bf16_f32 v32, v32, v33", "v_cvt_pk_bf16_f32 v33, v34, v35", "v_lshlrev_b32 v7, 3, v7", f"ds_write_b64 v7, v[32:33] offset:{QTAB}")
    set_flag(F_Q); stamp(2)
    a("s_branch Lbulk")
    a("Lw3:")
    srd(48, P["x"], 2304)
    a("v_lshrrev_b32 v6, 5, v1", "v_and_b32 v7, 31, v1", "v_mul_u32_u24 v8, 1152, v6", "v_mul_u32_u24 v9, 36, v7", "v_add_u32 v9, v8, v9",
      "buffer_load_dwordx4 v[32:35], v9, s[48:51], 0 offen", "buffer_load_dwordx4 v[36:39], v9, s[48:51], 0 offen offset:16", "buffer_load_dword v40, v9, s[48:51], 0 offen offset:32")
    a("s_and_b32 s11, s3, 7", "s_mul_i32 s11, s11, 72", "v_lshl_add_u32 v10, v7, 2, s11", "v_lshl_add_u32 v11, v10, 1, v8", "v_cmp_gt_u32 s[12:13], 18, v7", f"v_mov_b32 v9, {OOB}",
      "v_cndmask_b32 v11, v9, v11, s[12:13]", "buffer_load_dwordx2 v[104:105], v11, s[48:51], 0 offen")
    a("s_barrier")
    a("v_mul_u32_u24 v8, 3456, v6", "v_add_lshl_u32 v10, v10, v8, 2", "v_cndmask_b32 v10, v9, v10, s[12:13]")
    a("v_mul_u32_u24 v8, 320, v6", "v_lshl_add_u32 v8, v7, 2, v8", f"v_add_u32 v8, {HTAB}, v8", f"v_mov_b32 v9, {DUMP}", "v_cndmask_b32 v111, v9, v8, s[12:13]")
    a("s_waitcnt vmcnt(1)")
    for k in range(9): a(f"v_lshlrev_b32 v{44+2*k}, 16, v{32+k}", f"v_and_b32 v{45+2*k}, 0xffff0000, v{32+k}")
    a("v_add_f32 v16, v44, v45")
    for k in range(2, 18): a(f"v_add_f32 v16, v16, v{44+k}")
    rowred("v_add_f32", ["v16"]); xrow("v_add_f32", ["v16"], ["v17"], which=(16,))
    a("v_mul_f32 v16, 0x3ae38e39, v16", "v_mov_b32 v17, 0")
    for k in range(18): a(f"v_sub_f32 v18, v{44+k}, v16", "v_fmac_f32 v17, v18, v18")
    rowred("v_add_f32", ["v17"]); xrow("v_add_f32", ["v17"], ["v18"], which=(16,))
    def lnstats(m, v):
        rne(m, m); rne(v, v); a(f"v_add_f32 {v}, 0x3727c5ac, {v}"); rne(v, v); a(f"v_sqrt_f32 {v}, {v}"); rne(v, v); a(f"v_rcp_f32 {v}, {v}")
    a("v_mul_f32 v17, 0x3ae38e39, v17"); lnstats("v16", "v17")
    a("s_waitcnt vmcnt(0)", "v_lshlrev_b32 v20, 16, v104", "v_and_b32 v21, 0xffff0000, v104", "v_lshlrev_b32 v22, 16, v105", "v_and_b32 v23, 0xffff0000, v105")
    for k in range(4): a(f"v_sub_f32 v{20+k}, v{20+k}, v16"); rne(f"v{20+k}", f"v{20+k}"); a(f"v_mul_f32 v{20+k}, v{20+k}, v17"); rne(f"v{20+k}", f"v{20+k}")
    a("s_waitcnt lgkmcnt(0)", "s_add_u32 s97, s97, 1", "s_and_b32 s99, s97, s96", "v_mov_b32 v0, s99")
    spin_lds(F_M)
    poll(sum([[f"s_mov_b32 s15, {MODP+k*27648}", f"buffer_load_dwordx4 v[{32+8*k}:{35+8*k}], v10, {WS}, s15 offen sc1", f"buffer_load_dwordx4 v[{36+8*k}:{39+8*k}], v10, {WS}, s15 offen offset:2304 sc1"] for k in range(9)], []), range(32, 104), "v9", valid="s[12:13]", sleep=PSLEEP)
    stamp(14)
    for k in range(1, 9):
        for e in range(0, 8, 2): a(f"v_pk_add_f32 v[{32+e}:{33+e}], v[{32+e}:{33+e}], v[{32+8*k+e}:{33+8*k+e}]")
    for k in range(4):
        rne(f"v{32+k}", f"v{32+k}"); rne(f"v{36+k}", f"v{36+k}"); a(f"v_add_f32 v{36+k}, 1.0, v{36+k}"); rne(f"v{36+k}", f"v{36+k}")
        a(f"v_mul_f32 v{20+k}, v{20+k}, v{36+k}"); rne(f"v{20+k}", f"v{20+k}"); a(f"v_add_f32 v{20+k}, v{20+k}, v{32+k}", f"v_cvt_pk_bf16_f32 v{20+k}, v{20+k}, v{20+k}", f"ds_write_b32 v111, v{20+k} offset:{80*k}")
    set_flag(F_H)
    a("Lbulk:")
    if BULKWAIT == 1: spin_lds(F_M)
    if BULKWAIT == 2: spin_lds(F_H)
    if BULKWAIT == 3: spin_lds(F_Q)
    if PF:
        a("s_cmp_eq_u32 s69, 1", "s_cbranch_scc1 Lpf1")
        srd(52, P["wg"], 576*9216); srd(56, P["wu"], 576*9216)
        a("s_sub_u32 s11, s8, 18", "s_lshl_b32 s11, s11, 3", "s_add_u32 s11, s11, s4", "s_lshl_b32 s11, s11, 3", "v_lshrrev_b32 v6, 3, v1", "v_add_u32 v6, s11, v6",
          "s_mul_i32 s12, s9, 1152", "v_and_b32 v7, 7, v1", "v_lshl_add_u32 v7, v7, 4, s12")
        for n in range(PFN//2):
            a("v_mul_u32_u24 v8, 7282, v6", "v_lshrrev_b32 v8, 16, v8", "v_mul_u32_u24 v9, 9, v8", "v_sub_u32 v9, v6, v9", "v_mul_u32_u24 v8, 9216, v8", "v_lshl_add_u32 v8, v9, 7, v8", "v_add_u32 v8, v8, v7",
              f"buffer_load_dwordx4 v[32:35], v8, s[52:55], 0 offen{NTP}", f"s_waitcnt vmcnt({PFD})", f"buffer_load_dwordx4 v[36:39], v8, s[56:59], 0 offen{NTP}", f"s_waitcnt vmcnt({PFD})", "v_add_u32 v6, 896, v6")
        a("Lpf1:")
    srd(48, P["wo"], 4096*1152)
    a("s_lshl_b32 s11, s5, 7", "s_and_b32 s12, s7, 1", "s_lshl_b32 s12, s12, 6", "s_add_u32 s11, s11, s12", "v_lshrrev_b32 v6, 3, v2", "v_lshl_add_u32 v6, v3, 4, v6", "v_add_u32 v6, s11, v6",
      "v_mul_u32_u24 v6, 1152, v6", "v_and_b32 v7, 7, v1", "v_lshl_add_u32 v6, v7, 4, v6", "s_lshl_b32 s15, s4, 7")
    for n in range(8): a(f"buffer_load_dwordx4 v[{32+4*n}:{35+4*n}], v6, s[48:51], s15 offen{NTW}", "s_add_u32 s15, s15, 2304", f"s_waitcnt vmcnt({HDEPTH})")
    a("s_cmp_lg_u32 s4, 0", "s_cbranch_scc1 Lb1", "s_movk_i32 s15, 1024")
    for n in range(8): a(f"buffer_load_dwordx4 v[{64+4*n}:{67+4*n}], v6, s[48:51], s15 offen{NTW}", "s_add_u32 s15, s15, 2304", f"s_waitcnt vmcnt({HDEPTH})")
    a("Lb1:", "s_cmp_lg_u32 s69, 1", "s_cbranch_scc1 Lb3")
    def guload():
        a("s_cmp_lt_u32 s4, 4", "s_cselect_b32 s52, s28, s30", "s_cselect_b32 s53, s29, s31", "s_and_b32 s53, s53, 0xffff", f"s_mov_b32 s54, {576*9216}", "s_mov_b32 s55, 0x20000")
        a("v_lshrrev_b32 v6, 2, v1", "v_mul_u32_u24 v6, 9216, v6", "v_and_b32 v7, 3, v1", "v_lshl_add_u32 v6, v7, 4, v6", "s_lshl_b32 s11, s10, 6", "v_add_u32 v6, s11, v6",
          "s_and_b32 s11, s4, 3", f"s_mul_i32 s15, s11, {9*16*9216}", "s_mul_i32 s12, s4, 9216", f"s_add_u32 s12, s12, {GU}")
        if 'sh' in SKIP: a("v_add_u32 v6, 128, v6")
        for n in range(0 if 'gu' in SKIP else 9):
            a("s_mov_b32 m0, s12", "s_add_u32 s12, s12, 1024")
            for g in range(GSPL):
                if GSPL > 1:
                    m = ((1 << (64//GSPL)) - 1) << (g*64//GSPL)
                    a(f"s_mov_b32 exec_lo, {m & 0xffffffff}", f"s_mov_b32 exec_hi, {m >> 32}")
                a(f"buffer_load_dwordx4 v6, s[52:55], s15 offen{NTG} lds", f"s_waitcnt vmcnt({GD})")
            a(f"s_add_u32 s15, s15, {16*9216}")
        if GSPL > 1: a("s_mov_b64 exec, -1")
    if not GULAST and not GUS: guload()
    a("s_cmp_lt_u32 s4, 3", "s_cbranch_scc1 Lb2")
    srd(56, P["wd"], 4608*1152)
    a("s_lshl_b32 s11, s10, 5", "v_add_u32 v6, s11, v3", "v_mul_u32_u24 v6, 1152, v6", "s_sub_u32 s12, s4, 3", "s_lshl_b32 s12, s12, 8", "v_lshl_add_u32 v7, v2, 4, s12",
      "v_cmp_gt_u32 vcc, 1152, v7", "v_add_u32 v6, v6, v7", f"v_mov_b32 v8, {OOB}", "v_cndmask_b32 v6, v8, v6, vcc", "s_mov_b32 s15, 0")
    for n in range(0 if 'wd' in SKIP else 8): a(f"buffer_load_dwordx4 v[{72+4*n}:{75+4*n}], v6, s[56:59], s15 offen{NTW}", "s_add_u32 s15, s15, 4608", f"s_waitcnt vmcnt({HDEPTH})")
    a("v_lshrrev_b32 v6, 1, v3", "v_mul_u32_u24 v6, 36, v6", "v_lshrrev_b32 v7, 5, v7", "v_add_u32 v6, v6, v7", "v_mul_u32_u24 v6, 9216, v6", "v_and_b32 v7, 1, v2", "v_lshl_add_u32 v6, v7, 5, v6",
      "v_and_b32 v7, 1, v3", "v_lshl_add_u32 v6, v7, 4, v6", "s_lshl_b32 s11, s10, 6", f"s_add_u32 s11, s11, {T3}", "v_add_u32 v6, s11, v6", "v_cndmask_b32 v110, v8, v6, vcc")
    a("Lb2:")
    if GULAST == 1 and not GUS: guload()
    a("v_cmp_gt_u32 vcc, 36, v1", "s_mul_i32 s11, s4, 576", "v_lshl_add_u32 v6, v1, 4, s11", f"v_mov_b32 v8, {OOB}", "v_cndmask_b32 v111, v8, v6, vcc", f"s_mov_b32 s12, {CB}", f"s_mov_b32 s13, {SB}", "s_mov_b64 s[14:15], vcc")
    spin_lds(F_Q)
    poll([f"buffer_load_dwordx4 v[24:27], v111, {WS}, s12 offen sc1", f"buffer_load_dwordx4 v[28:31], v111, {WS}, s13 offen sc1"], range(24, 32), "v8", sleep=8, valid="s[14:15]")
    a("Lb3:")
    a("s_cmp_lg_u32 s4, 1", "s_cbranch_scc1 Lb4")
    spin_lds(F_Q)
    a("v_cmp_gt_u32 vcc, 32, v1", "v_lshlrev_b32 v6, 3, v1", f"v_mov_b32 v8, {OOB}", "v_cndmask_b32 v6, v8, v6, vcc", "s_and_b32 s11, s3, 0xfc", "s_lshl_b32 s11, s11, 6", f"s_add_u32 s12, s11, {ML}", "s_mov_b64 s[14:15], vcc")
    poll([f"buffer_load_dwordx2 v[16:17], v6, {WS}, s12 offen sc1"], [16, 17], "v8", sleep=16, valid="s[14:15]")
    a("v_mov_b32 v18, v16"); rowred("v_max_f32", ["v18"]); xrow("v_max_f32", ["v18"], ["v19"], which=(16,))
    a("v_sub_f32 v16, v16, v18", "v_mul_f32 v16, 0x3fb8aa3b, v16", "v_exp_f32 v16, v16", "v_mul_f32 v17, v16, v17")
    rowred("v_add_f32", ["v17"]); xrow("v_add_f32", ["v17"], ["v19"], which=(16,))
    a("v_rcp_f32 v17, v17", "v_lshlrev_b32 v6, 2, v1", f"v_add_u32 v7, {WTAB}, v6", f"v_add_u32 v6, {DUMP}, v6", "v_cmp_gt_u32 vcc, 32, v1", "v_cndmask_b32 v6, v6, v7, vcc", "v_mul_f32 v16, v16, v17", "ds_write_b32 v6, v16")
    set_flag(F_W)
    a("Lb4:")
    a("v_lshrrev_b32 v6, 1, v2", "v_lshlrev_b32 v6, 13, v6", "v_and_b32 v7, 1, v2", "v_lshl_add_u32 v6, v7, 5, v6", "v_lshl_add_u32 v6, v3, 4, v6",
      "v_and_b32 v7, 40, v1", "v_cmp_eq_u32 vcc, 0, v7", f"v_mov_b32 v8, {OOB}", "v_cndmask_b32 v106, v8, v6, vcc",
      "s_mul_i32 s11, s6, 36", "s_lshl_b32 s11, s11, 13", "s_lshl_b32 s12, s5, 2", "s_add_u32 s12, s12, s7", "s_lshl_b32 s12, s12, 6", "s_add_u32 s11, s11, s12", f"s_add_u32 s11, s11, {T1}",
      "s_lshl_b32 s12, s4, 15", "s_add_u32 s12, s12, s11", f"s_add_u32 s13, s11, {8<<15}", "v_lshlrev_b32 v6, 2, v1")
    a("s_waitcnt vmcnt(0) lgkmcnt(0)"); stamp(1); a("s_barrier")
    stamp(5)
    for k in range(8): a(f"ds_read2st64_b32 v[{112+2*k}:{113+2*k}], v6 offset0:{OPART//256+2*k} offset1:{OPART//256+2*k+1}")
    for k in range(0, 8, 2): a(f"s_waitcnt lgkmcnt({6-k})", f"v_pk_add_f32 v[{112+2*k}:{113+2*k}], v[{112+2*k}:{113+2*k}], v[{114+2*k}:{115+2*k}]")
    a("v_pk_add_f32 v[112:113], v[112:113], v[116:117]", "v_pk_add_f32 v[120:121], v[120:121], v[124:125]", "v_pk_add_f32 v[112:113], v[112:113], v[120:121]", "v_add_f32 v16, v112, v113", "v_cvt_pk_bf16_f32 v16, v16, v16")
    def womerge(D, T, so):
        for k in range(4): a(f"v_permlane32_swap_b32 v{D+k}, v{T+k}")
        for k in range(4): a(f"v_add_f32_dpp v{D+k}, v{T+k}, v{D+k} row_ror:8 row_mask:0xf bank_mask:0xf")
        tagp(range(D, D+4))
        a(f"buffer_store_dwordx4 v[{D}:{D+3}], v106, {WS}, {so} offen sc1")
    a("s_cmp_eq_u32 s4, 0", "s_cbranch_scc1 Lwo0")
    for n in range(8): bc2(f"v{20+(n&1)}", "v16", 2*n, "v16", 2*n+1); mkA(112+4*(n&1), f"v{20+(n&1)}"); mfma(120, 112+4*(n&1), 32+4*n, n == 0)
    womerge(120, 8, "s12")
    a("s_branch Lwod", "Lwo0:")
    for n in range(8): bc2(f"v{20+(n&1)}", "v16", 2*n, "v16", 2*n+1); mkA(112+4*(n&1), f"v{20+(n&1)}"); mfma(120, 112+4*(n&1), 32+4*n, n == 0); mfma(124, 112+4*(n&1), 64+4*n, n == 0)
    womerge(120, 8, "s12"); womerge(124, 16, "s13")
    a("Lwod:")
    stamp(6)
    a("s_cmp_eq_u32 s69, 1", "s_cbranch_scc1 Lffn", "s_cmp_eq_u32 s69, 2", "s_cbranch_scc1 Lred", "s_branch Lfin")
    a("Lred:")
    srd(48, P["out"], 2304)
    a("v_lshlrev_b32 v6, 4, v1", "s_lshl_b32 s12, s68, 13", "s_lshl_b32 s11, s4, 10", "s_add_u32 s12, s12, s11", f"s_add_u32 s12, s12, {T1}",
      "s_mul_i32 s13, s68, 9216", "s_add_u32 s13, s13, s11", f"s_add_u32 s13, s13, {T3}", "s_add_u32 s14, s13, 8192", "s_cmp_eq_u32 s4, 0", f"s_cselect_b32 s14, s14, {OOB}",
      "v_and_b32 v7, 12, v1", "v_cmp_eq_u32 vcc, 0, v7", "v_and_b32 v7, 3, v1", "v_lshlrev_b32 v7, 4, v7", "v_lshl_add_u32 v7, v3, 6, v7", "s_lshl_b32 s11, s4, 8", f"s_add_u32 s11, s11, {RPART}",
      "v_add_u32 v7, s11, v7", f"v_add_u32 v8, {DUMP}, v6", "v_cndmask_b32 v7, v8, v7, vcc", "v_lshlrev_b32 v9, 2, v2", "v_lshl_add_u32 v9, v3, 9, v9", f"v_add_u32 v9, {RPART}, v9")
    def final_sum():
        for k in range(4): a(f"ds_read2_b32 v[{40+2*k}:{41+2*k}], v9 offset0:{32*k} offset1:{32*k+16}")
        a("s_waitcnt lgkmcnt(2)", "v_pk_add_f32 v[40:41], v[40:41], v[42:43]", "s_waitcnt lgkmcnt(0)", "v_pk_add_f32 v[44:45], v[44:45], v[46:47]", "v_pk_add_f32 v[40:41], v[40:41], v[44:45]", "v_add_f32 v40, v40, v41")
        xrow("v_add_f32", ["v40"], ["v41"]); rne("v40", "v40")
    poll([f"buffer_load_dwordx4 v[32:35], v6, {WS}, s12 offen sc1"], range(32, 36), "v8", sleep=TSL, xm=XM&1)
    rowred("v_add_f32", [f"v{32+k}" for k in range(4)], steps=(8, 4))
    a("ds_write_b128 v7, v[32:35]", "s_waitcnt lgkmcnt(0)", "s_barrier")
    stamp(7)
    a("s_cmp_lg_u32 s4, 1", "s_cbranch_scc1 Lred2")
    final_sum(); a("v_mul_f32 v40, v40, v108"); rne("v40", "v40"); a("v_add_f32 v107, v107, v40"); rne("v107", "v107")
    a("s_lshl_b32 s11, s68, 6", f"s_add_u32 s11, s11, {T2}", "v_or_b32 v40, v107, v0")
    for k in range(R2//4): a(f"buffer_store_dword v40, v111, {WS}, s11 offen sc1", f"s_add_u32 s11, s11, {4*4608}")
    a("Lred2:")
    a("s_cmp_eq_u32 s4, 0", "s_cbranch_scc1 Lred3")
    poll([f"buffer_load_dwordx4 v[32:35], v6, {WS}, s13 offen sc1"], range(32, 36), "v8", xm=XM&4)
    a("s_branch Lred4", "Lred3:")
    poll([f"buffer_load_dwordx4 v[32:35], v6, {WS}, s13 offen sc1", f"buffer_load_dwordx4 v[36:39], v6, {WS}, s14 offen sc1"], range(32, 40), "v8", xm=XM&4)
    a("v_pk_add_f32 v[32:33], v[32:33], v[36:37]", "v_pk_add_f32 v[34:35], v[34:35], v[38:39]", "Lred4:")
    rowred("v_add_f32", [f"v{32+k}" for k in range(4)], steps=(8, 4))
    a("ds_write_b128 v7, v[32:35]", "s_waitcnt lgkmcnt(0)", "s_barrier")
    a("s_cmp_lg_u32 s4, 1", "s_cbranch_scc1 Lfin")
    final_sum(); a("v_mul_f32 v40, v40, v109"); rne("v40", "v40"); a("v_add_f32 v40, v107, v40", "v_cvt_pk_bf16_f32 v40, v40, v40", "buffer_store_short v40, v110, s[48:51], 0 offen")
    a("s_cmp_lg_u32 s68, 0", "s_cbranch_scc1 Lfin", "v_mov_b32 v41, s97", f"s_mov_b32 s11, {EP}", "s_mov_b64 exec, 1", f"buffer_store_dword v41, v5, {WS}, s11 offen sc1", "s_mov_b64 exec, -1")
    a("s_branch Lfin")
    a("Lffn:")
    a("v_lshrrev_b32 v6, 2, v2", "v_lshl_add_u32 v6, v3, 3, v6", "v_lshlrev_b32 v6, 6, v6", "v_and_b32 v7, 3, v1", "v_lshl_add_u32 v6, v7, 3, v6",
      "s_bfe_u32 s11, s4, 0x10001", "s_mul_i32 s11, s11, 36864", "s_and_b32 s12, s4, 1", "s_lshl_b32 s12, s12, 5", "s_add_u32 s11, s11, s12", "s_lshr_b32 s12, s4, 2", f"s_mul_i32 s13, s12, {9*2048}",
      "s_add_u32 s11, s11, s13", f"s_add_u32 s11, s11, {GU}", "v_add_u32 v6, s11, v6")
    for n in range(9): a(f"ds_read_b64_tr_b16 v[{32+4*n}:{33+4*n}], v6 offset:{2048*n}", f"ds_read_b64_tr_b16 v[{34+4*n}:{35+4*n}], v6 offset:{2048*n+256}")
    a("v_and_b32 v7, 1, v1", "v_mul_u32_u24 v7, 1152, v7", "v_lshl_add_u32 v7, v3, 4, v7", "s_mul_i32 s13, s12, 576", f"s_add_u32 s13, s13, {H2T}", "v_add_u32 v104, s13, v7")
    a("s_mul_i32 s13, s4, 288", f"s_add_u32 s13, s13, {H2T}", "v_lshl_add_u32 v7, v1, 3, s13", "v_lshlrev_b32 v8, 3, v1", f"v_add_u32 v8, {DUMP}, v8", "v_cmp_gt_u32 s[14:15], 36, v1", "v_cndmask_b32 v105, v8, v7, s[14:15]")
    a("s_lshl_b32 s13, s4, 7", f"s_add_u32 s13, s13, {GTAB}", "v_lshlrev_b32 v7, 6, v2", "v_lshl_add_u32 v7, v3, 4, v7", "v_add_u32 v7, s13, v7", "v_lshlrev_b32 v8, 4, v1", f"v_add_u32 v8, {DUMP}, v8",
      "v_cmp_gt_u32 vcc, 2, v2", "v_cndmask_b32 v107, v8, v7, vcc")
    a("v_and_b32 v7, 7, v2", "v_lshl_add_u32 v7, v7, 2, v3", "v_lshrrev_b32 v8, 4, v7", "v_and_b32 v7, 15, v7", "v_lshlrev_b32 v7, 2, v7", "v_lshl_add_u32 v7, v8, 7, v7", "v_lshrrev_b32 v8, 3, v2",
      "v_lshl_add_u32 v7, v8, 6, v7", f"v_add_u32 v108, {GTAB}, v7")
    a("s_lshl_b32 s13, s4, 3", f"s_add_u32 s13, s13, {STAT}", "v_mov_b32 v109, s13", "s_lshl_b32 s13, s12, 5", f"s_add_u32 s13, s13, {STAT}", "v_mov_b32 v9, s13", f"s_and_b32 s12, s10, {R2-1}", "s_mul_i32 s12, s12, 4608", f"s_add_u32 s12, s12, {T2}")
    if SCOUT: pollx([f"buffer_load_dword v16, v111, {WS}, s12 offen sc1"], [16], "v8", valid="1", clean=False)
    poll([f"buffer_load_dwordx4 v[16:19], v111, {WS}, s12 offen sc1"], range(16, 20), "v8", valid="s[14:15]", sleep=TSL, xm=XM&2)
    stamp(7)
    a("v_readfirstlane_b32 s11, v16")
    for k in range(4): a(f"v_subrev_f32 v{20+k}, s11, v{16+k}")
    a("v_add_f32 v10, v20, v21", "v_mul_f32 v11, v20, v20", "v_add_f32 v10, v10, v22", "v_fmac_f32 v11, v21, v21", "v_add_f32 v10, v10, v23", "v_fmac_f32 v11, v22, v22", "v_fmac_f32 v11, v23, v23",
      "v_cndmask_b32 v10, 0, v10, s[14:15]", "v_cndmask_b32 v11, 0, v11, s[14:15]")
    rowred("v_add_f32", ["v10", "v11"]); xrow("v_add_f32", ["v10", "v11"], ["v20", "v21"])
    a("v_mul_f32 v20, 0x3be38e39, v10", "v_fma_f32 v11, -v20, v10, v11", "v_add_f32 v10, s11, v20", "ds_write_b64 v109, v[10:11]", "s_waitcnt lgkmcnt(0)", "s_barrier",
      "ds_read_b128 v[112:115], v9", "ds_read_b128 v[116:119], v9 offset:16", "s_waitcnt lgkmcnt(0)",
      "v_add_f32 v10, v112, v114", "v_add_f32 v11, v116, v118", "v_add_f32 v20, v113, v115", "v_add_f32 v21, v117, v119", "v_add_f32 v10, v10, v11", "v_add_f32 v11, v20, v21", "v_mul_f32 v10, 0x3e800000, v10",
      "v_sub_f32 v112, v112, v10", "v_sub_f32 v114, v114, v10", "v_sub_f32 v116, v116, v10", "v_sub_f32 v118, v118, v10",
      "v_mul_f32 v20, v112, v112", "v_fmac_f32 v20, v114, v114", "v_fmac_f32 v20, v116, v116", "v_fmac_f32 v20, v118, v118", "v_mul_f32 v11, 0x3ae38e39, v11", "v_fmac_f32 v11, 0x3e800000, v20")
    lnstats("v10", "v11")
    for k in range(4): a(f"v_sub_f32 v{16+k}, v{16+k}, v10")
    def rne2(x, y): a(f"v_cvt_pk_bf16_f32 v{y}, v{x}, v{y}", f"v_lshlrev_b32 v{x}, 16, v{y}", f"v_and_b32 v{y}, 0xffff0000, v{y}")
    rne2(16, 17); rne2(18, 19)
    for k in range(4): a(f"v_mul_f32 v{16+k}, v{16+k}, v11")
    rne2(16, 17); rne2(18, 19)
    for k in range(4): a(f"v_mul_f32 v{16+k}, v{16+k}, v{24+k}")
    rne2(16, 17); rne2(18, 19)
    for k in range(4): a(f"v_add_f32 v{16+k}, v{16+k}, v{28+k}")
    a("v_cvt_pk_bf16_f32 v16, v16, v17", "v_cvt_pk_bf16_f32 v17, v18, v19", "ds_write_b64 v105, v[16:17]", "s_waitcnt lgkmcnt(0)", "s_barrier")
    hb = [8, 16, 20, 24, 28, 68, 112, 116, 124]
    for n in range(9): a(f"ds_read_b128 v[{hb[n]}:{hb[n]+3}], v104 offset:{64*n}")
    for n in range(9): a(f"s_waitcnt lgkmcnt({8-n})"); mfma(120, 32+4*n, hb[n], n == 0)
    a("ds_write_b128 v107, v[120:123]", "s_waitcnt lgkmcnt(0)", "s_barrier")
    a("s_cmp_lt_u32 s4, 3", "s_cbranch_scc1 Lfin")
    a("ds_read2st64_b32 v[16:17], v108 offset0:0 offset1:1", "ds_read2st64_b32 v[18:19], v108 offset0:2 offset1:3", "s_waitcnt lgkmcnt(0)", "v_pk_add_f32 v[16:17], v[16:17], v[18:19]")
    rne2(16, 17)
    a("v_mul_f32 v18, v16, v16", "v_mov_b32 v19, 0xc0135761", "v_fmac_f32 v19, 0xbdd2d3e8, v18", "v_mul_f32 v18, v16, v19", "v_exp_f32 v18, v18", "v_add_f32 v18, 1.0, v18", "v_rcp_f32 v18, v18", "v_mul_f32 v16, v16, v18")
    rne("v16", "v16"); a("v_mul_f32 v16, v16, v17", "v_cvt_pk_bf16_f32 v16, v16, v16")
    for n in range(8): bc2(f"v{20+(n&1)}", "v16", n, "v16", 8+n); mkA(112+4*(n&1), f"v{20+(n&1)}"); mfma(120, 112+4*(n&1), 72+4*n, n == 0)
    tagp(range(120, 124)); a(f"buffer_store_dwordx4 v[120:123], v110, {WS}, 0 offen sc1")
    a("Lfin:")
    if TS:
        stamp(10)
        a("s_cmp_eq_u32 s4, 1", "s_cbranch_scc1 Lts1", "s_cmp_eq_u32 s4, 2", "s_cbranch_scc1 Lts2", "s_cmp_eq_u32 s4, 3", "s_cbranch_scc1 Lts3", "s_endpgm")
        a("Lts1:"); a("s_waitcnt lgkmcnt(0)", "s_mov_b64 s[94:95], s[92:93]"); flush_stamps([9, 11, 13]); a("s_endpgm")
        a("Lts2:"); flush_stamps([2, 12, 15]); a("s_endpgm")
        a("Lts3:"); flush_stamps([0, 1, 5, 6, 7, 10, 14])
    a("Lend:")
    hdr = open("adaLN_cond__mha_block_cached__geglu_ffn__decode.s.ref").read().split("; Override launch")[0]
    return (hdr + f"; @launch grid=(256,1,1) block=(1024,1,1) lds={LDSN}\n.amdgcn_target \"amdgcn-amd-amdhsa--gfx950\"\n.text\n.globl {KN}\n.p2align 8\n.type {KN},@function\n{KN}:\n"
        + a.text() + f"""    s_endpgm
.section .rodata,"a"
.p2align 6
.amdhsa_kernel {KN}
  .amdhsa_next_free_vgpr 128
  .amdhsa_next_free_sgpr 102
  .amdhsa_accum_offset 128
  .amdhsa_group_segment_fixed_size 0
  .amdhsa_kernarg_size 112
  .amdhsa_user_sgpr_count 2
  .amdhsa_user_sgpr_kernarg_segment_ptr 1
  .amdhsa_system_sgpr_workgroup_id_x 1
.end_amdhsa_kernel
""")
if __name__ == "__main__":
    out = sys.argv[1]; kw = {}
    for x in sys.argv[2:]:
        k, v = x.split("="); kw[k] = eval(v)
    open(out, "w").write(gen(**kw))
```

```python
import sys
from asmlib import Asm
KN = "adaLN_cond__mha_block_cached__geglu_ffn__decode_kernel"
QP=0; T1=0xC0000; T3=0x150000; ML=0x1F2000; CB=0x1F6000; SB=0x1F7200; EP=0x1F9000; MODP=0x200000; T2=0x240000; PEX=0x300000; WSN=0x400000
OOB=0x40000000
OPART=0; RPART=4096; HTAB=6400; QTAB=7040; WTAB=7296; STAT=7424; FL=7488; H2T=7552; GTAB=9856; DUMP=10880; GU=12288; LDSN=86016
F_Q=FL; F_H=FL+4; F_M=FL+8; F_W=FL+12
def TSR(k): return {13: 100, 14: 90, 12: 74, 15: 78}.get(k, 72+2*k)
def br4(r): return int(f"{r:04b}"[::-1], 2)
def gen(RING=20, DEPTH=2, HDEPTH=1, CATCH=2, TS=False, NT=" nt", NTW=" nt", PPOS=8, PDEPTH=2, PSLEEP=2, WQD=1, BULKWAIT=0, R2=8, MWAIT=1, SKIP='', TSL=0, NTG=' nt', GD=1, GSPL=1, PF=0, PFD=1, NTP='', GULAST=0, PFN=12, GUS=0, GP0=36, GST=3, DSW=64, DEPTH2=4, LV=None, LP0=32, FMAP=0, XM=0, SCOUT=0, IFIRST=0, PRIO=0, VAL=0, PL1=7, PL2=10, PN=(1,1,1), PD=10, RX=0, T3SL=0, QX=0, KRING=20, NTO=' nt'):
    a = Asm()
    def srd(r, p, n): a(f"s_mov_b32 s{r}, s{p}", f"s_and_b32 s{r+1}, s{p+1}, 0xffff", f"s_mov_b32 s{r+2}, {n}", f"s_mov_b32 s{r+3}, 0x20000")
    P = dict(x=16, K=18, V=20, wq=22, wo=24, wg=28, wu=30, wd=32, c=34, wm=36, out=38, dbg=40, ws=42)
    WS = "s[44:47]"
    def stamp(k):
        if TS: a(f"s_memrealtime s[{TSR(k)}:{TSR(k)+1}]")
    def flush_stamps(ks):
        if not TS: return
        a("s_waitcnt lgkmcnt(0)", "s_lshl_b32 s11, s2, 7", "s_add_u32 s11, s11, 0x8000000", "v_mov_b32 v4, s11", "s_mov_b64 exec, 1")
        for k in ks: a(f"v_mov_b32 v6, s{TSR(k)}", f"v_mov_b32 v7, s{TSR(k)+1}", f"global_store_dwordx2 v4, v[6:7], s[42:43] offset:{8*k}", "s_waitcnt vmcnt(0)")
        a("s_mov_b64 exec, -1")
    def spin_lds(flag, t="v4"):
        l = a.label("Lsp"); d = a.label("Lspd")
        a(f"{l}:", f"ds_read_b32 {t}, v5 offset:{flag}", "s_waitcnt lgkmcnt(0)", f"v_readfirstlane_b32 s11, {t}", "s_cmp_lg_u32 s11, 0", f"s_cbranch_scc1 {d}",
          "s_sleep 1", "s_sub_u32 s70, s70, 1", "s_cmp_gt_i32 s70, 0", f"s_cbranch_scc1 {l}", f"{d}:")
    def set_flag(flag, t="v4"):
        a("s_waitcnt lgkmcnt(0)", f"v_mov_b32 {t}, 1", f"ds_write_b32 v5, {t} offset:{flag}")
    def tagp(rs, rnd=False):
        for r in rs:
            if rnd: a(f"v_add_u32 v{r}, 0x200, v{r}")
        for r in rs: a(f"v_bfi_b32 v{r}, s96, v0, v{r}")
    def pollx(loads, rs, t, valid=None, clean=True, sleep=0):
        l = a.label("Lpx"); d = a.label("Lpxd")
        if valid: a(f"s_mov_b64 exec, {valid}")
        a(f"{l}:"); a(*loads); a("s_waitcnt vmcnt(0)")
        rs = list(rs); a(f"v_xor_b32 {t}, v{rs[0]}, v0")
        for r in rs[1:]: a(f"v_bitop3_b32 {t}, {t}, v{r}, v0 bitop3:0xf6")
        a(f"v_and_b32 {t}, s96, {t}", f"v_cmp_ne_u32 vcc, 0, {t}", "s_and_b64 exec, vcc, vcc", f"s_cbranch_scc0 {d}")
        if sleep: a(f"s_sleep {sleep}")
        a("s_sub_u32 s70, s70, 1", "s_cmp_gt_i32 s70, 0", f"s_cbranch_scc1 {l}", f"{d}:", "s_mov_b64 exec, -1")
        if clean:
            for r in rs: a(f"v_and_b32 v{r}, s98, v{r}")
    def pollp(loads, rs, t, n, dst, valid=None):
        l = a.label("Lpp"); d = a.label("Lppd"); nl = sum(x.startswith("buffer") for x in loads)
        if valid: a(f"s_mov_b64 exec, {valid}")
        for k in range(n-1): a(*loads); a(f"s_sleep {PD*2//n}")
        a(f"{l}:"); a(*loads); a(f"s_waitcnt vmcnt({nl*(n-1)})")
        rs = list(rs); a(f"v_xor_b32 {t}, v{rs[0]}, v0")
        for r in rs[1:]: a(f"v_bitop3_b32 {t}, {t}, v{r}, v0 bitop3:0xf6")
        a(f"v_and_b32 {t}, s96, {t}", f"v_cmp_ne_u32 vcc, 0, {t}", "s_and_b64 exec, vcc, vcc", f"s_cbranch_scc0 {d}")
        a("s_sub_u32 s70, s70, 1", "s_cmp_gt_i32 s70, 0", f"s_cbranch_scc1 {l}", f"{d}:", "s_mov_b64 exec, -1")
        for k, r in enumerate(rs): a(f"v_and_b32 v{dst+k}, s98, v{r}")
    def poll(loads, rs, t, sleep=0, first=True, valid=None, clean=True, xm=0):
        if xm: return pollx(loads, rs, t, valid, clean, sleep)
        l = a.label("Lpo"); d = a.label("Lpod"); c = a.label("Lpoc")
        if not first: a(f"s_branch {c}")
        a(f"{l}:"); a(*loads); a("s_waitcnt vmcnt(0)"); a(f"{c}:")
        rs = list(rs); a(f"v_xor_b32 {t}, v{rs[0]}, v0")
        for r in rs[1:]: a(f"v_bitop3_b32 {t}, {t}, v{r}, v0 bitop3:0xf6")
        a(f"v_and_b32 {t}, s96, {t}", f"v_cmp_ne_u32 vcc, 0, {t}")
        if valid: a(f"s_and_b64 vcc, vcc, {valid}", f"s_cbranch_scc0 {d}")
        else: a(f"s_cbranch_vccz {d}")
        if sleep: a(f"s_sleep {sleep}")
        a("s_sub_u32 s70, s70, 1", "s_cmp_gt_i32 s70, 0", f"s_cbranch_scc1 {l}", f"{d}:")
        if clean:
            for r in rs: a(f"v_and_b32 v{r}, s98, v{r}")
    def rne(d, s): a(f"v_cvt_pk_bf16_f32 {d}, {s}, {s}", f"v_and_b32 {d}, 0xffff0000, {d}")
    def rowred(op, rs, steps=(8,4,2,1)):
        for st in steps:
            for r in rs: a(f"{op}_dpp {r}, {r}, {r} row_ror:{st} row_mask:0xf bank_mask:0xf")
    def xrow(op, rs, ts, which=(16,32)):
        for wd in which:
            for r, t in zip(rs, ts): a(f"v_mov_b32 {t}, {r}")
            for r, t in zip(rs, ts): a(f"v_permlane{wd}_swap_b32 {r}, {t}")
            for r, t in zip(rs, ts): a(f"{op} {r}, {r}, {t}")
    def masks():
        a("v_and_b32 v4, 7, v1", "v_and_b32 v6, 1, v1", "v_lshlrev_b32 v6, 4, v6", "v_mov_b32 v7, 0xffff", "v_lshlrev_b32 v6, v6, v7", "v_lshrrev_b32 v4, 1, v4")
        for r in range(4): a(f"v_cmp_eq_u32 vcc, {r}, v4", f"v_cndmask_b32 v{12+r}, 0, v6, vcc")
    def mkA(A, pp):
        for r in range(4): a(f"v_and_b32 v{A+r}, {pp}, v{12+r}")
    def bc2(pp, lo, nlo, hi, nhi):
        a(f"v_mov_b32_dpp {pp}, {lo} row_newbcast:{nlo} row_mask:0xf bank_mask:0x3", f"v_mov_b32_dpp {pp}, {hi} row_newbcast:{nhi} row_mask:0xf bank_mask:0xc")
    def mfma(D, A, B, first): a(f"v_mfma_f32_16x16x32_bf16 v[{D}:{D+3}], v[{A}:{A+3}], v[{B}:{B+3}], " + ("0" if first else f"v[{D}:{D+3}]"))
    a("s_cmp_ge_u32 s2, 256", "s_cbranch_scc1 Lend")
    stamp(0)
    a("s_load_dwordx16 s[16:31], s[0:1], 0", "s_load_dwordx8 s[32:39], s[0:1], 64", "s_load_dwordx4 s[40:43], s[0:1], 96")
    a("v_lshrrev_b32 v2, 6, v0", "v_and_b32 v1, 63, v0", "v_mov_b32 v5, 0", "v_readfirstlane_b32 s4, v2")
    a("s_and_b32 s9, s2, 7", "s_lshr_b32 s8, s2, 3", "s_lshl_b32 s3, s9, 5", "s_or_b32 s3, s3, s8")
    a("s_lshr_b32 s5, s3, 3", "s_bfe_u32 s6, s3, 0x10002", "s_and_b32 s7, s3, 3", "s_mov_b32 s70, 0x100000")
    a("v_and_b32 v2, 15, v1", "v_lshrrev_b32 v3, 4, v1")
    if FMAP:
        pk = lambda q: sum(v << (4*i) for i, v in enumerate(q))
        ce, co, c5 = pk([1,3,5,7,0,2,4,6,8]), pk([0,2,4,8,6,1,3,5,7]), pk([0,2,6,8,4,1,3,5,7])
        a("s_bitcmp1_b32 s9, 0", f"s_cselect_b32 s12, {co & 0xffffffff}, {ce & 0xffffffff}".replace(f", {ce & 0xffffffff}", ", s70"), f"s_cselect_b32 s13, {co >> 32}, {ce >> 32}", "s_cbranch_scc1 Lfm", f"s_mov_b32 s12, {ce & 0xffffffff}", "Lfm:",
          "s_cmp_eq_u32 s9, 5", f"s_cselect_b32 s12, {c5 & 0xffffffff}, s12", "s_and_b32 s10, s8, 1", "s_mul_i32 s10, s10, 9", "s_lshr_b32 s11, s8, 1", "s_add_u32 s10, s10, s11",
          "s_lshr_b32 s11, s10, 1", "s_lshl_b32 s11, s11, 2", "s_lshr_b64 s[12:13], s[12:13], s11", "s_and_b32 s12, s12, 15", "s_mul_i32 s11, s9, 9", "s_add_u32 s12, s12, s11", "s_and_b32 s10, s10, 1", "s_lshl1_add_u32 s10, s12, s10")
    else: a("s_mul_i32 s10, s9, 18", "s_add_u32 s10, s10, s8")
    masks()
    a("s_waitcnt lgkmcnt(0)", f"s_add_u32 s12, s42, {EP}", "s_addc_u32 s13, s43, 0", "s_load_dword s97, s[12:13], 0", "s_movk_i32 s96, 0x3ff", "s_mov_b32 s98, 0xfffffc00")
    srd(44, P["ws"], WSN)
    a("s_cmp_lt_u32 s4, 8", "s_cbranch_scc1 Lhelper")
    a("s_sub_u32 s4, s4, 8")
    if PRIO: a(f"s_setprio {PRIO}")
    srd(48, P["K"], 0x4000000); srd(52, P["V"], 0x4000000)
    a("s_lshl_b32 s11, s6, 5", "s_add_u32 s11, s11, s5", "s_lshl_b32 s11, s11, 20", "s_lshl_b32 s12, s4, 15", "s_add_u32 s11, s11, s12",
      "s_lshl_b32 s12, s7, 18", "s_add_u32 s12, s12, s11", "s_xor_b32 s13, s7, 1", "s_lshl_b32 s13, s13, 18", "s_add_u32 s13, s13, s11")
    a("v_lshl_add_u32 v6, v1, 4, s12")
    a("v_bfe_u32 v4, v1, 3, 1", "v_lshl_add_u32 v4, v4, 2, v3", "v_lshlrev_b32 v4, 8, v4", "v_and_b32 v7, 7, v1", "v_lshl_add_u32 v4, v7, 4, v4",
      "s_and_b32 s14, s7, 1", "s_lshl_b32 s14, s14, 7", "v_add_u32 v4, s14, v4", "v_add_u32 v7, s12, v4", "v_add_u32 v30, s13, v4")
    if VAL: a("s_min_u32 s14, s12, s13", "s_max_u32 s13, s12, s13", "v_add_u32 v7, s14, v4", "v_add_u32 v30, s13, v4")
    a("s_mov_b32 s64, 0xcccccccc", "s_mov_b32 s65, 0xcccccccc", "s_mov_b32 s66, 0xaaaaaaaa", "s_mov_b32 s67, 0xaaaaaaaa")
    a("s_barrier")
    ops = []
    slots = {}; freed = set()
    def freeslot(i):
        busy = {v for k, v in slots.items() if k not in freed}
        c = [x for x in range(KRING if i < 32 else RING) if x not in busy]
        return (c[-1] if i < 32 else c[0]) if c else None
    def slot(i): return 32 + 4*slots[i]
    def issue(i):
        slots[i] = freeslot(i); r = slot(i)
        if i < 32: a(f"s_movk_i32 s15, {i*1024}", f"buffer_load_dwordx4 v[{r}:{r+3}], v6, s[48:51], s15 offen{NT}")
        else:
            n = (i-32) % 16; v = "v7" if i < 48 else "v30"
            a(f"s_movk_i32 s15, {n*2048}", f"buffer_load_dwordx4 v[{r}:{r+3}], {v}, s[52:55], s15 offen{NT}")
        ops.append(i)
    done = [0]
    def waitn(n):
        if len(ops) - n > done[0]: done[0] = len(ops) - n; a(f"s_waitcnt vmcnt({n})")
    def wait_for(tag): waitn(len(ops) - 1 - ops.index(tag))
    def procK(i):
        wait_for(i+1); r0 = slot(i); r1 = slot(i+1)
        for k in range(4):
            a(f"v_dot2_f32_bf16 v20, v{r0+k}, v{8+k}, " + ("0" if k == 0 else "v20"), f"v_dot2_f32_bf16 v21, v{r1+k}, v{8+k}, " + ("0" if k == 0 else "v21"))
        freed.update((i, i+1)); j = i % 16; T = 22 + (j >> 1 & 1)
        a(f"v_add_f32_dpp v{T}, v20, v20 row_ror:8 row_mask:0xf bank_mask:0x3", f"v_add_f32_dpp v{T}, v21, v21 row_ror:8 row_mask:0xf bank_mask:0xc")
        if j & 2:
            U = 24 + (j >> 2 & 1)
            a(f"v_add_f32_dpp v{U}, v22, v22 row_half_mirror row_mask:0xf bank_mask:0x5", f"v_add_f32_dpp v{U}, v23, v23 row_half_mirror row_mask:0xf bank_mask:0xa")
            if j & 4:
                W = 26 + (j >> 3 & 1)
                a("v_cndmask_b32 v28, v24, v25, s[64:65]", "v_cndmask_b32 v29, v25, v24, s[64:65]", f"v_add_f32_dpp v{W}, v29, v28 quad_perm:[2,3,0,1] row_mask:0xf bank_mask:0xf")
                if j & 8:
                    a("v_cndmask_b32 v28, v26, v27, s[66:67]", "v_cndmask_b32 v29, v27, v26, s[66:67]", f"v_add_f32_dpp v{16+i//16}, v29, v28 quad_perm:[1,0,3,2] row_mask:0xf bank_mask:0xf")
    def softmax():
        a("v_cvt_pk_bf16_f32 v20, v16, v17", "s_mov_b32 s11, 0x3db504f3", "v_lshlrev_b32 v16, 16, v20", "v_and_b32 v17, 0xffff0000, v20",
          "v_mul_f32 v16, s11, v16", "v_mul_f32 v17, s11, v17", "v_cvt_pk_bf16_f32 v20, v16, v17", "v_lshlrev_b32 v16, 16, v20", "v_and_b32 v17, 0xffff0000, v20",
          "v_max_f32 v22, v16, v17")
        rowred("v_max_f32", ["v22"]); xrow("v_max_f32", ["v22"], ["v21"])
        a("s_mov_b32 s11, 0x3fb8aa3b", "v_sub_f32 v16, v16, v22", "v_sub_f32 v17, v17, v22", "v_mul_f32 v16, s11, v16", "v_mul_f32 v17, s11, v17",
          "v_exp_f32 v16, v16", "v_exp_f32 v17, v17", "v_add_f32 v23, v16, v17", "v_cvt_pk_bf16_f32 v16, v16, v16", "v_cvt_pk_bf16_f32 v17, v17, v17",
          "s_mov_b32 s14, 0xffff", "v_bfi_b32 v20, s14, v0, v16", "v_bfi_b32 v21, s14, v0, v17")
        a("s_lshl_b32 s11, s3, 3", "s_add_u32 s11, s11, s4", "s_lshl_b32 s12, s11, 9", f"s_add_u32 s12, s12, {PEX}", "v_lshlrev_b32 v31, 3, v1",
          f"buffer_store_dwordx2 v[20:21], v31, {WS}, s12 offen sc1"); ops.append("pst")
        a("s_xor_b32 s13, s12, 0x1000")
        rowred("v_add_f32", ["v23"]); xrow("v_add_f32", ["v23"], ["v25"]); tagp([22, 23])
        a("v_cmp_eq_u32 vcc, 0, v1", f"v_mov_b32 v24, {OOB}", "v_cndmask_b32 v24, v24, v5, vcc", "s_lshl_b32 s11, s11, 3", f"s_add_u32 s11, s11, {ML}",
          f"buffer_store_dwordx2 v[22:23], v24, {WS}, s11 offen sc1"); ops.append("mlst")
    def procV(i):
        n = (i-32) % 16; par = i >= 48; D = 124 if par else 120; A = 112 + 4*(i & 1); u = n >> 3; n1 = n & 7
        src = f"v{(18 if par else 16)+u}"
        if i == (32 if VAL else 48):
            wait_for("pld")
            poll([f"buffer_load_dwordx2 v[26:27], v31, {WS}, s13 offen sc1"], [26, 27], "v28", first=False, clean=False)
            a("s_mov_b32 s14, 0x03020302", "v_perm_b32 v18, v26, v26, s14", "v_perm_b32 v19, v27, v27, s14")
            if VAL:
                l = a.label("Lsw"); a("s_bitcmp0_b32 s7, 0", f"s_cbranch_scc1 {l}", "v_swap_b32 v16, v18", "v_swap_b32 v17, v19", f"{l}:", "s_nop 1")
        bc2(f"v{20+(i&1)}", src, br4(2*n1), src, br4(2*n1+1)); mkA(A, f"v{20+(i&1)}")
        wait_for(i); mfma(D, A, slot(i), n == 0); freed.add(i)
    issued = 0
    for i in range(KRING): issue(i); issued += 1; waitn(PDEPTH)
    a("s_waitcnt lgkmcnt(0)", "s_add_u32 s97, s97, 1", "s_and_b32 s99, s97, s96", "v_mov_b32 v0, s99")
    stamp(8)
    spin_lds(F_Q)
    a(f"v_lshlrev_b32 v4, 4, v2", f"ds_read_b128 v[8:11], v4 offset:{QTAB}", "s_waitcnt lgkmcnt(0)")
    proc = 0
    if LV:
        a("s_and_b32 s63, s7, 1", f"s_mul_i32 s63, s63, {LV[1]}", f"s_add_u32 s63, s63, {LV[0]}", "s_and_b32 s11, s10, 14", "s_cmp_eq_u32 s11, 6",
          f"s_cselect_b32 s11, {LV[2]+LV[3]}, {LV[3]}", "s_cmp_lt_u32 s8, 18", "s_cselect_b32 s11, s11, 0", "s_add_u32 s63, s63, s11")
    def dep(i): return (DEPTH if i < DSW else DEPTH2) + (1 if LV and i >= LP0 else 0)
    ism = [0]
    def procsome(lag):
        nonlocal proc
        cnt = 0
        while proc < 64 and cnt < CATCH and (proc < issued - lag - (1 if proc < 32 else 0) or issued == 64):
            if VAL and proc == 32 and issued < min(ism[0] + PL2, 32 + RING): break
            if proc < 32:
                procK(proc); proc += 2; cnt += 2
                if proc == 32: softmax(); stamp(3); ism[0] = issued
            else: procV(proc); proc += 1; cnt += 1
    while proc < 64:
        if not IFIRST or issued == 64 or freeslot(issued) is None: procsome(dep(issued))
        if issued < 64 and freeslot(issued) is not None:
            issue(issued); issued += 1
            if GUS and issued == 33:
                a("s_cmp_lt_u32 s4, 4", "s_cselect_b32 s56, s28, s30", "s_cselect_b32 s57, s29, s31", "s_and_b32 s57, s57, 0xffff", "s_cmp_lt_u32 s8, 18", f"s_cselect_b32 s58, {576*9216}, 0", "s_mov_b32 s59, 0x20000",
                  "s_lshl_b32 s60, s10, 6", "s_and_b32 s61, s4, 3", f"s_mul_i32 s62, s61, {16*9216}", "s_add_u32 s60, s60, s62",
                  "v_lshrrev_b32 v6, 2, v1", "v_mul_u32_u24 v6, 9216, v6", "v_and_b32 v4, 3, v1", "v_lshl_add_u32 v6, v4, 4, v6", "v_add_u32 v6, s60, v6",
                  "s_lshr_b32 s62, s4, 2", "s_mul_i32 s62, s62, 36864", "s_lshl_b32 s61, s61, 10", "s_add_u32 s61, s61, s62", f"s_add_u32 s61, s61, {GU}", "s_mov_b32 s62, 0")
            if GUS and issued >= GP0 and (issued - GP0) % GST == 0 and (issued - GP0)//GST < 9:
                a("s_mov_b32 m0, s61", "s_add_u32 s61, s61, 4096", f"buffer_load_dwordx4 v6, s[56:59], s62 offen{NTG} lds", f"s_add_u32 s62, s62, {64*9216}"); ops.append(f"gu{issued}")
            if IFIRST: procsome(dep(issued) + 1)
            waitn(dep(issued))
            if LV and issued >= LP0:
                l = a.label("Llv"); a(f"s_cmp_gt_u32 s63, {br4(issued & 15) >> 1}", f"s_cbranch_scc1 {l}", f"s_waitcnt vmcnt({dep(issued)-1})", f"{l}:")
        if "mlst" in ops and "pld" not in ops and (issued >= min(ism[0] + PL1, 31 + RING) if VAL else proc >= 32 + PPOS):
            a(f"buffer_load_dwordx2 v[26:27], v31, {WS}, s13 offen sc1"); ops.append("pld")
    spin_lds(F_W)
    a(f"s_and_b32 s11, s7, {2 if VAL else 3}", "s_lshl_b32 s11, s11, 3", "s_add_u32 s11, s11, s4", "s_lshl_b32 s11, s11, 2", "v_mov_b32 v4, s11", "v_xor_b32 v6, 32, v4",
      f"ds_read_b32 v20, v4 offset:{WTAB}", f"ds_read_b32 v21, v6 offset:{WTAB}")
    a("v_lshrrev_b32 v22, 3, v2", "v_lshrrev_b32 v23, 1, v3", "v_cmp_eq_u32 vcc, v22, v23", "v_and_b32 v23, 7, v1", "v_lshlrev_b32 v23, 5, v23", "v_and_b32 v24, 1, v3",
      "v_lshl_add_u32 v23, v24, 4, v23", "v_lshl_add_u32 v23, v22, 8, v23", "s_lshl_b32 s11, s4, 9", f"s_add_u32 s11, s11, {OPART}", "v_add_u32 v23, s11, v23",
      "v_lshlrev_b32 v24, 4, v1", f"v_add_u32 v24, {DUMP}, v24", "v_cndmask_b32 v23, v24, v23, vcc", "s_waitcnt lgkmcnt(0)")
    for r in range(4): a(f"v_mul_f32 v{120+r}, v20, v{120+r}")
    for r in range(4): a(f"v_fmac_f32 v{120+r}, v21, v{124+r}")
    a("ds_write_b128 v23, v[120:123]", "s_waitcnt lgkmcnt(0)")
    stamp(4)
    a("s_barrier")
    if TS:
        a("s_cmp_lg_u32 s4, 0", "s_cbranch_scc1 Lend"); flush_stamps([3, 4, 8])
    a("s_endpgm")
    a("Lhelper:")
    for r in range(104, 112): a(f"v_mov_b32 v{r}, {OOB}")
    a("s_mul_i32 s68, s9, 9", "s_add_u32 s68, s68, s8", "s_sub_u32 s68, s68, 18")
    a("s_mov_b32 s69, 0", "s_cmp_lt_u32 s8, 27", "s_cselect_b32 s69, 2, 0", "s_cmp_lt_u32 s8, 18", "s_cselect_b32 s69, 1, s69")
    a("s_cmp_ge_u32 s68, 36", "s_cselect_b32 s71, 1, 0")
    a("s_cmp_eq_u32 s4, 1", "s_cbranch_scc1 Lw1", "s_cmp_eq_u32 s4, 2", "s_cbranch_scc1 Lw2", "s_cmp_eq_u32 s4, 3", "s_cbranch_scc1 Lw3")
    a("v_mov_b32 v6, 0", "v_mov_b32 v7, 0", "v_mov_b32 v8, 0", "v_mov_b32 v9, 0", f"ds_write_b128 v5, v[6:9] offset:{FL}", "s_waitcnt lgkmcnt(0)", "s_add_u32 s97, s97, 1", "s_and_b32 s99, s97, s96", "v_mov_b32 v0, s99", "s_barrier", "s_branch Lbulk")
    a("Lw1:")
    srd(48, P["wm"], 576*6912); srd(52, P["c"], 2304); srd(60, P["x"], 2304)
    a("s_mul_i32 s11, s3, 7282", "s_lshr_b32 s11, s11, 16", "s_mul_i32 s12, s11, 9", "s_sub_u32 s12, s3, s12")
    a("s_cmp_lt_u32 s3, 243", "s_cbranch_scc1 Lw1a", "s_waitcnt lgkmcnt(0)", "s_add_u32 s97, s97, 1", "s_and_b32 s99, s97, s96", "v_mov_b32 v0, s99", "s_barrier", "s_branch Lw1clr", "Lw1a:")
    a("s_lshl_b32 s13, s12, 6", "v_lshl_add_u32 v6, v2, 2, v3", "v_add_u32 v6, s13, v6", "v_lshlrev_b32 v6, 1, v6",
      "buffer_load_ushort v16, v6, s[52:55], 0 offen", "buffer_load_ushort v17, v6, s[52:55], 0 offen offset:1152")
    a("v_add_u32 v6, s13, v3", "v_mul_u32_u24 v6, 6912, v6", "s_lshl_b32 s14, s11, 8", "v_lshl_add_u32 v6, v2, 4, v6", "v_add_u32 v6, s14, v6")
    for n in range(16): a(f"s_mov_b32 s15, {n*4*6912}", f"buffer_load_dwordx4 v[{32+4*n}:{35+4*n}], v6, s[48:51], s15 offen{NTW}")
    a("s_barrier", "s_waitcnt lgkmcnt(0)", "s_add_u32 s97, s97, 1", "s_and_b32 s99, s97, s96", "v_mov_b32 v0, s99")
    a("s_waitcnt vmcnt(16)")
    for r in (16, 17):
        a(f"v_lshlrev_b32 v{r}, 16, v{r}", f"v_mul_f32 v18, 0xbfb8aa3b, v{r}", "v_exp_f32 v18, v18", "v_add_f32 v18, 1.0, v18", "v_rcp_f32 v18, v18", f"v_mul_f32 v{r}, v{r}, v18", f"v_cvt_pk_bf16_f32 v{r}, v{r}, v{r}")
    for n in range(16):
        bc2(f"v{20+(n&1)}", "v16", n, "v17", n); mkA(112+4*(n&1), f"v{20+(n&1)}"); a(f"s_waitcnt vmcnt({15-n})"); mfma(120, 112+4*(n&1), 32+4*n, n == 0)
    a("v_lshrrev_b32 v6, 1, v3", "v_mul_u32_u24 v6, 13824, v6", "v_and_b32 v7, 1, v3", "v_lshl_add_u32 v6, v7, 4, v6", "v_lshl_add_u32 v6, v2, 5, v6",
      "s_mul_i32 s13, s12, 27648", "s_lshl_b32 s14, s11, 9", "s_add_u32 s13, s13, s14", f"s_add_u32 s13, s13, {MODP}")
    tagp(range(120, 124), True)
    a(f"buffer_store_dwordx4 v[120:123], v6, {WS}, s13 offen sc1"); stamp(13)
    if MWAIT: a("s_waitcnt vmcnt(0)")
    a("Lw1clr:"); set_flag(F_M); stamp(9)
    a("s_cmp_lg_u32 s69, 2", "s_cbranch_scc1 Lbulk")
    spin_lds(F_H)
    a("s_mul_i32 s12, s71, 36", "s_sub_u32 s12, s68, s12", "s_lshl_b32 s12, s12, 4")
    a("v_mul_u32_u24 v6, 576, v3", "v_add3_u32 v6, v6, v2, s12", "v_lshlrev_b32 v6, 2, v6", "s_mul_i32 s13, s71, 13824", f"s_add_u32 s13, s13, {MODP+1152*4}")
    a("s_mul_i32 s14, s71, 576", "s_add_u32 s14, s14, s12", "v_add_u32 v7, s14, v2", "v_lshlrev_b32 v8, 1, v7", "buffer_load_ushort v107, v8, s[60:63], 0 offen")
    poll(sum([[f"s_add_u32 s14, s13, {27648*k}", f"buffer_load_dword v{32+k}, v6, {WS}, s14 offen sc1"] for k in range(9)], []), range(32, 41), "v9", sleep=8)
    for k in range(1, 9): a(f"v_add_f32 v32, v32, v{32+k}")
    rne("v32", "v32"); a("v_add_f32 v33, 1.0, v32"); rne("v33", "v33")
    a("v_cmp_eq_u32 vcc, 2, v3", "v_cndmask_b32 v32, v32, v33, vcc", f"v_mov_b32 v9, {OOB}", f"v_mov_b32 v10, {CB}", "v_cndmask_b32 v9, v9, v10, vcc",
      "v_cmp_eq_u32 vcc, 1, v3", f"v_mov_b32 v10, {SB}", "v_cndmask_b32 v9, v9, v10, vcc", "v_lshl_add_u32 v9, v7, 2, v9", "v_or_b32 v33, v32, v0", f"buffer_store_dword v33, v9, {WS}, 0 offen sc1",
      "v_lshlrev_b32 v10, 2, v2", "v_add_u32 v11, 192, v10", "ds_bpermute_b32 v108, v10, v32", "ds_bpermute_b32 v109, v11, v32", "v_lshlrev_b32 v107, 16, v107",
      "v_cmp_gt_u32 vcc, 16, v1", f"v_mov_b32 v9, {OOB}", "v_cndmask_b32 v110, v9, v8, vcc", "v_mul_u32_u24 v111, 4608, v3", "v_add_u32 v111, v111, v10", "s_waitcnt lgkmcnt(0)", "s_branch Lbulk")
    a("Lw2:")
    srd(48, P["wq"], 576*8192)
    a("s_mov_b32 s11, s9" if QX else "s_and_b32 s11, s3, 7", "s_mul_i32 s11, s11, 72", "v_add_u32 v6, s11, v3", "v_lshlrev_b32 v6, 13, v6", f"s_lshl_b32 s12, {'s8' if QX else 's5'}, 8", "v_lshl_add_u32 v6, v2, 4, v6", "v_add_u32 v6, s12, v6")
    for n in range(18):
        if WQD < 18 and n == 0: a("s_barrier")
        a(f"s_mov_b32 s15, {n*32768}", f"buffer_load_dwordx4 v[{32+4*n}:{35+4*n}], v6, s[48:51], s15 offen{NTW}")
        if WQD < 18: a(f"s_waitcnt vmcnt({WQD})")
    if WQD >= 18: a("s_barrier")
    a("v_lshrrev_b32 v6, 3, v2", "v_lshl_add_u32 v6, v6, 2, v3", "v_mul_u32_u24 v6, 80, v6")
    a("s_waitcnt lgkmcnt(0)", "s_add_u32 s97, s97, 1", "s_and_b32 s99, s97, s96", "v_mov_b32 v0, s99")
    if TS: a("s_waitcnt vmcnt(0)"); stamp(12)
    spin_lds(F_H)
    hr = [16, 20, 24, 104, 108]
    for k in range(5): a(f"ds_read_b128 v[{hr[k]}:{hr[k]+3}], v6 offset:{HTAB+16*k}")
    a("s_waitcnt vmcnt(0) lgkmcnt(0)")
    for n in range(18): mkA(112+4*(n&1), f"v{hr[n>>2]+(n&3)}"); mfma(120, 112+4*(n&1), 32+4*n, n == 0)
    a("v_lshrrev_b32 v6, 1, v3", "v_lshlrev_b32 v6, 9, v6", "v_and_b32 v7, 1, v3", "v_lshl_add_u32 v6, v7, 4, v6", "v_lshl_add_u32 v6, v2, 5, v6", *(["s_lshl3_add_u32 s13, s8, s9", "s_lshl_b32 s13, s13, 10"] if QX else ["s_lshl_b32 s13, s3, 10"]))
    tagp(range(120, 124), True); a(f"buffer_store_dwordx4 v[120:123], v6, {WS}, s13 offen sc1"); stamp(15)
    a("v_lshrrev_b32 v6, 5, v1", "v_lshlrev_b32 v6, 12, v6", "v_and_b32 v7, 31, v1", "v_lshl_add_u32 v6, v7, 4, v6", "s_lshl_b32 s13, s5, 13", "s_lshl_b32 s14, s6, 9", "s_add_u32 s13, s13, s14")
    poll([f"buffer_load_dwordx4 v[{32+4*t}:{35+4*t}], v6, {WS}, s13 offen offset:{1024*t} sc1" for t in range(4)], range(32, 48), "v8", xm=XM&8)
    for k in range(4): a(f"v_add_f32 v{32+k}, v{32+k}, v{36+k}", f"v_add_f32 v{40+k}, v{40+k}, v{44+k}")
    for k in range(4): a(f"v_add_f32 v{32+k}, v{32+k}, v{40+k}")
    xrow("v_add_f32", [f"v{32+k}" for k in range(4)], [f"v{36+k}" for k in range(4)], which=(32,))
    a("v_cvt_pk_bf16_f32 v32, v32, v33", "v_cvt_pk_bf16_f32 v33, v34, v35", "v_lshlrev_b32 v7, 3, v7", f"ds_write_b64 v7, v[32:33] offset:{QTAB}")
    set_flag(F_Q); stamp(2)
    a("s_branch Lbulk")
    a("Lw3:")
    srd(48, P["x"], 2304)
    a("v_lshrrev_b32 v6, 5, v1", "v_and_b32 v7, 31, v1", "v_mul_u32_u24 v8, 1152, v6", "v_mul_u32_u24 v9, 36, v7", "v_add_u32 v9, v8, v9",
      "buffer_load_dwordx4 v[32:35], v9, s[48:51], 0 offen", "buffer_load_dwordx4 v[36:39], v9, s[48:51], 0 offen offset:16", "buffer_load_dword v40, v9, s[48:51], 0 offen offset:32")
    a("s_mov_b32 s11, s9" if QX else "s_and_b32 s11, s3, 7", "s_mul_i32 s11, s11, 72", "v_lshl_add_u32 v10, v7, 2, s11", "v_lshl_add_u32 v11, v10, 1, v8", "v_cmp_gt_u32 s[12:13], 18, v7", f"v_mov_b32 v9, {OOB}",
      "v_cndmask_b32 v11, v9, v11, s[12:13]", "buffer_load_dwordx2 v[104:105], v11, s[48:51], 0 offen")
    a("s_barrier")
    a("v_mul_u32_u24 v8, 3456, v6", "v_add_lshl_u32 v10, v10, v8, 2", "v_cndmask_b32 v10, v9, v10, s[12:13]")
    a("v_mul_u32_u24 v8, 320, v6", "v_lshl_add_u32 v8, v7, 2, v8", f"v_add_u32 v8, {HTAB}, v8", f"v_mov_b32 v9, {DUMP}", "v_cndmask_b32 v111, v9, v8, s[12:13]")
    a("s_waitcnt vmcnt(1)")
    for k in range(9): a(f"v_lshlrev_b32 v{44+2*k}, 16, v{32+k}", f"v_and_b32 v{45+2*k}, 0xffff0000, v{32+k}")
    a("v_add_f32 v16, v44, v45")
    for k in range(2, 18): a(f"v_add_f32 v16, v16, v{44+k}")
    rowred("v_add_f32", ["v16"]); xrow("v_add_f32", ["v16"], ["v17"], which=(16,))
    a("v_mul_f32 v16, 0x3ae38e39, v16", "v_mov_b32 v17, 0")
    for k in range(18): a(f"v_sub_f32 v18, v{44+k}, v16", "v_fmac_f32 v17, v18, v18")
    rowred("v_add_f32", ["v17"]); xrow("v_add_f32", ["v17"], ["v18"], which=(16,))
    def lnstats(m, v):
        rne(m, m); rne(v, v); a(f"v_add_f32 {v}, 0x3727c5ac, {v}"); rne(v, v); a(f"v_sqrt_f32 {v}, {v}"); rne(v, v); a(f"v_rcp_f32 {v}, {v}")
    a("v_mul_f32 v17, 0x3ae38e39, v17"); lnstats("v16", "v17")
    a("s_waitcnt vmcnt(0)", "v_lshlrev_b32 v20, 16, v104", "v_and_b32 v21, 0xffff0000, v104", "v_lshlrev_b32 v22, 16, v105", "v_and_b32 v23, 0xffff0000, v105")
    for k in range(4): a(f"v_sub_f32 v{20+k}, v{20+k}, v16"); rne(f"v{20+k}", f"v{20+k}"); a(f"v_mul_f32 v{20+k}, v{20+k}, v17"); rne(f"v{20+k}", f"v{20+k}")
    a("s_waitcnt lgkmcnt(0)", "s_add_u32 s97, s97, 1", "s_and_b32 s99, s97, s96", "v_mov_b32 v0, s99")
    spin_lds(F_M)
    poll(sum([[f"s_mov_b32 s15, {MODP+k*27648}", f"buffer_load_dwordx4 v[{32+8*k}:{35+8*k}], v10, {WS}, s15 offen sc1", f"buffer_load_dwordx4 v[{36+8*k}:{39+8*k}], v10, {WS}, s15 offen offset:2304 sc1"] for k in range(9)], []), range(32, 104), "v9", valid="s[12:13]", sleep=PSLEEP)
    stamp(14)
    for k in range(1, 9):
        for e in range(0, 8, 2): a(f"v_pk_add_f32 v[{32+e}:{33+e}], v[{32+e}:{33+e}], v[{32+8*k+e}:{33+8*k+e}]")
    for k in range(4):
        rne(f"v{32+k}", f"v{32+k}"); rne(f"v{36+k}", f"v{36+k}"); a(f"v_add_f32 v{36+k}, 1.0, v{36+k}"); rne(f"v{36+k}", f"v{36+k}")
        a(f"v_mul_f32 v{20+k}, v{20+k}, v{36+k}"); rne(f"v{20+k}", f"v{20+k}"); a(f"v_add_f32 v{20+k}, v{20+k}, v{32+k}", f"v_cvt_pk_bf16_f32 v{20+k}, v{20+k}, v{20+k}", f"ds_write_b32 v111, v{20+k} offset:{80*k}")
    set_flag(F_H)
    a("Lbulk:")
    if BULKWAIT == 1: spin_lds(F_M)
    if BULKWAIT == 2: spin_lds(F_H)
    if BULKWAIT == 3: spin_lds(F_Q)
    if PF:
        a("s_cmp_eq_u32 s69, 1", "s_cbranch_scc1 Lpf1")
        srd(52, P["wg"], 576*9216); srd(56, P["wu"], 576*9216)
        a("s_sub_u32 s11, s8, 18", "s_lshl_b32 s11, s11, 3", "s_add_u32 s11, s11, s4", "s_lshl_b32 s11, s11, 3", "v_lshrrev_b32 v6, 3, v1", "v_add_u32 v6, s11, v6",
          "s_mul_i32 s12, s9, 1152", "v_and_b32 v7, 7, v1", "v_lshl_add_u32 v7, v7, 4, s12")
        for n in range(PFN//2):
            a("v_mul_u32_u24 v8, 7282, v6", "v_lshrrev_b32 v8, 16, v8", "v_mul_u32_u24 v9, 9, v8", "v_sub_u32 v9, v6, v9", "v_mul_u32_u24 v8, 9216, v8", "v_lshl_add_u32 v8, v9, 7, v8", "v_add_u32 v8, v8, v7",
              f"buffer_load_dwordx4 v[32:35], v8, s[52:55], 0 offen{NTP}", f"s_waitcnt vmcnt({PFD})", f"buffer_load_dwordx4 v[36:39], v8, s[56:59], 0 offen{NTP}", f"s_waitcnt vmcnt({PFD})", "v_add_u32 v6, 896, v6")
        a("Lpf1:")
    srd(48, P["wo"], 4096*1152)
    a("s_lshl_b32 s11, s5, 7", "s_and_b32 s12, s7, 1", "s_lshl_b32 s12, s12, 6", "s_add_u32 s11, s11, s12", "v_lshrrev_b32 v6, 3, v2", "v_lshl_add_u32 v6, v3, 4, v6", "v_add_u32 v6, s11, v6",
      "v_mul_u32_u24 v6, 1152, v6", "v_and_b32 v7, 7, v1", "v_lshl_add_u32 v6, v7, 4, v6", "s_lshl_b32 s15, s4, 7")
    for n in range(8): a(f"buffer_load_dwordx4 v[{32+4*n}:{35+4*n}], v6, s[48:51], s15 offen{NTO}", "s_add_u32 s15, s15, 2304", f"s_waitcnt vmcnt({HDEPTH})")
    a("s_cmp_lg_u32 s4, 0", "s_cbranch_scc1 Lb1", "s_movk_i32 s15, 1024")
    for n in range(8): a(f"buffer_load_dwordx4 v[{64+4*n}:{67+4*n}], v6, s[48:51], s15 offen{NTO}", "s_add_u32 s15, s15, 2304", f"s_waitcnt vmcnt({HDEPTH})")
    a("Lb1:", "s_cmp_lg_u32 s69, 1", "s_cbranch_scc1 Lb3")
    def guload():
        a("s_cmp_lt_u32 s4, 4", "s_cselect_b32 s52, s28, s30", "s_cselect_b32 s53, s29, s31", "s_and_b32 s53, s53, 0xffff", f"s_mov_b32 s54, {576*9216}", "s_mov_b32 s55, 0x20000")
        a("v_lshrrev_b32 v6, 2, v1", "v_mul_u32_u24 v6, 9216, v6", "v_and_b32 v7, 3, v1", "v_lshl_add_u32 v6, v7, 4, v6", "s_lshl_b32 s11, s10, 6", "v_add_u32 v6, s11, v6",
          "s_and_b32 s11, s4, 3", f"s_mul_i32 s15, s11, {9*16*9216}", "s_mul_i32 s12, s4, 9216", f"s_add_u32 s12, s12, {GU}")
        if 'sh' in SKIP: a("v_add_u32 v6, 128, v6")
        for n in range(0 if 'gu' in SKIP else 9):
            a("s_mov_b32 m0, s12", "s_add_u32 s12, s12, 1024")
            for g in range(GSPL):
                if GSPL > 1:
                    m = ((1 << (64//GSPL)) - 1) << (g*64//GSPL)
                    a(f"s_mov_b32 exec_lo, {m & 0xffffffff}", f"s_mov_b32 exec_hi, {m >> 32}")
                a(f"buffer_load_dwordx4 v6, s[52:55], s15 offen{NTG} lds", f"s_waitcnt vmcnt({GD})")
            a(f"s_add_u32 s15, s15, {16*9216}")
        if GSPL > 1: a("s_mov_b64 exec, -1")
    if not GULAST and not GUS: guload()
    a("s_cmp_lt_u32 s4, 3", "s_cbranch_scc1 Lb2")
    srd(56, P["wd"], 4608*1152)
    a("s_lshl_b32 s11, s10, 5", "v_add_u32 v6, s11, v3", "v_mul_u32_u24 v6, 1152, v6", "s_sub_u32 s12, s4, 3", "s_lshl_b32 s12, s12, 8", "v_lshl_add_u32 v7, v2, 4, s12",
      "v_cmp_gt_u32 vcc, 1152, v7", "v_add_u32 v6, v6, v7", f"v_mov_b32 v8, {OOB}", "v_cndmask_b32 v6, v8, v6, vcc", "s_mov_b32 s15, 0")
    for n in range(0 if 'wd' in SKIP else 8): a(f"buffer_load_dwordx4 v[{72+4*n}:{75+4*n}], v6, s[56:59], s15 offen{NTW}", "s_add_u32 s15, s15, 4608", f"s_waitcnt vmcnt({HDEPTH})")
    a("v_lshrrev_b32 v6, 1, v3", "v_mul_u32_u24 v6, 36, v6", "v_lshrrev_b32 v7, 5, v7", "v_add_u32 v6, v6, v7", "v_mul_u32_u24 v6, 9216, v6", "v_and_b32 v7, 1, v2", "v_lshl_add_u32 v6, v7, 5, v6",
      "v_and_b32 v7, 1, v3", "v_lshl_add_u32 v6, v7, 4, v6", "s_lshl_b32 s11, s10, 6", f"s_add_u32 s11, s11, {T3}", "v_add_u32 v6, s11, v6", "v_cndmask_b32 v110, v8, v6, vcc")
    a("Lb2:")
    if GULAST == 1 and not GUS: guload()
    a("v_cmp_gt_u32 vcc, 36, v1", "s_mul_i32 s11, s4, 576", "v_lshl_add_u32 v6, v1, 4, s11", f"v_mov_b32 v8, {OOB}", "v_cndmask_b32 v111, v8, v6, vcc", f"s_mov_b32 s12, {CB}", f"s_mov_b32 s13, {SB}", "s_mov_b64 s[14:15], vcc")
    spin_lds(F_Q)
    poll([f"buffer_load_dwordx4 v[24:27], v111, {WS}, s12 offen sc1", f"buffer_load_dwordx4 v[28:31], v111, {WS}, s13 offen sc1"], range(24, 32), "v8", sleep=8, valid="s[14:15]")
    a("Lb3:")
    a("s_cmp_lg_u32 s4, 1", "s_cbranch_scc1 Lb4")
    spin_lds(F_Q)
    a("v_cmp_gt_u32 vcc, 32, v1", "v_lshlrev_b32 v6, 3, v1", f"v_mov_b32 v8, {OOB}", "v_cndmask_b32 v6, v8, v6, vcc", "s_and_b32 s11, s3, 0xfc", "s_lshl_b32 s11, s11, 6", f"s_add_u32 s12, s11, {ML}", "s_mov_b64 s[14:15], vcc")
    poll([f"buffer_load_dwordx2 v[16:17], v6, {WS}, s12 offen sc1"], [16, 17], "v8", sleep=16, valid="s[14:15]")
    a("v_mov_b32 v18, v16"); rowred("v_max_f32", ["v18"]); xrow("v_max_f32", ["v18"], ["v19"], which=(16,))
    a("v_sub_f32 v16, v16, v18", "v_mul_f32 v16, 0x3fb8aa3b, v16", "v_exp_f32 v16, v16", "v_mul_f32 v17, v16, v17")
    rowred("v_add_f32", ["v17"]); xrow("v_add_f32", ["v17"], ["v19"], which=(16,))
    a("v_rcp_f32 v17, v17", "v_lshlrev_b32 v6, 2, v1", f"v_add_u32 v7, {WTAB}, v6", f"v_add_u32 v6, {DUMP}, v6", "v_cmp_gt_u32 vcc, 32, v1", "v_cndmask_b32 v6, v6, v7, vcc", "v_mul_f32 v16, v16, v17", "ds_write_b32 v6, v16")
    set_flag(F_W)
    a("Lb4:")
    a("v_lshrrev_b32 v6, 1, v2", "v_lshlrev_b32 v6, 13, v6", "v_and_b32 v7, 1, v2", "v_lshl_add_u32 v6, v7, 5, v6", "v_lshl_add_u32 v6, v3, 4, v6",
      "v_and_b32 v7, 40, v1", "v_cmp_eq_u32 vcc, 0, v7", f"v_mov_b32 v8, {OOB}", "v_cndmask_b32 v106, v8, v6, vcc",
      "s_mul_i32 s11, s6, 36", "s_lshl_b32 s11, s11, 13", "s_lshl_b32 s12, s5, 2", "s_add_u32 s12, s12, s7", "s_lshl_b32 s12, s12, 6", "s_add_u32 s11, s11, s12", f"s_add_u32 s11, s11, {T1}",
      "s_lshl_b32 s12, s4, 15", "s_add_u32 s12, s12, s11", f"s_add_u32 s13, s11, {8<<15}", "v_lshlrev_b32 v6, 2, v1")
    a("s_waitcnt vmcnt(0) lgkmcnt(0)"); stamp(1); a("s_barrier")
    stamp(5)
    for k in range(8): a(f"ds_read2st64_b32 v[{112+2*k}:{113+2*k}], v6 offset0:{OPART//256+2*k} offset1:{OPART//256+2*k+1}")
    for k in range(0, 8, 2): a(f"s_waitcnt lgkmcnt({6-k})", f"v_pk_add_f32 v[{112+2*k}:{113+2*k}], v[{112+2*k}:{113+2*k}], v[{114+2*k}:{115+2*k}]")
    a("v_pk_add_f32 v[112:113], v[112:113], v[116:117]", "v_pk_add_f32 v[120:121], v[120:121], v[124:125]", "v_pk_add_f32 v[112:113], v[112:113], v[120:121]", "v_add_f32 v16, v112, v113", "v_cvt_pk_bf16_f32 v16, v16, v16")
    def womerge(D, T, so):
        for k in range(4): a(f"v_permlane32_swap_b32 v{D+k}, v{T+k}")
        for k in range(4): a(f"v_add_f32_dpp v{D+k}, v{T+k}, v{D+k} row_ror:8 row_mask:0xf bank_mask:0xf")
        tagp(range(D, D+4))
        a(f"buffer_store_dwordx4 v[{D}:{D+3}], v106, {WS}, {so} offen sc1")
    a("s_cmp_eq_u32 s4, 0", "s_cbranch_scc1 Lwo0")
    for n in range(8): bc2(f"v{20+(n&1)}", "v16", 2*n, "v16", 2*n+1); mkA(112+4*(n&1), f"v{20+(n&1)}"); mfma(120, 112+4*(n&1), 32+4*n, n == 0)
    womerge(120, 8, "s12")
    a("s_branch Lwod", "Lwo0:")
    for n in range(8): bc2(f"v{20+(n&1)}", "v16", 2*n, "v16", 2*n+1); mkA(112+4*(n&1), f"v{20+(n&1)}"); mfma(120, 112+4*(n&1), 32+4*n, n == 0); mfma(124, 112+4*(n&1), 64+4*n, n == 0)
    womerge(120, 8, "s12"); womerge(124, 16, "s13")
    a("Lwod:")
    stamp(6)
    a("s_cmp_eq_u32 s69, 1", "s_cbranch_scc1 Lffn", "s_cmp_eq_u32 s69, 2", "s_cbranch_scc1 Lred", "s_branch Lfin")
    a("Lred:")
    srd(48, P["out"], 2304)
    a("v_lshlrev_b32 v6, 4, v1", "s_lshl_b32 s12, s68, 13", "s_lshl_b32 s11, s4, 10", "s_add_u32 s12, s12, s11", f"s_add_u32 s12, s12, {T1}",
      "s_mul_i32 s13, s68, 9216", "s_add_u32 s13, s13, s11", f"s_add_u32 s13, s13, {T3}", "s_add_u32 s14, s13, 8192", "s_cmp_eq_u32 s4, 0", f"s_cselect_b32 s14, s14, {OOB}",
      "v_and_b32 v7, 12, v1", "v_cmp_eq_u32 vcc, 0, v7", "v_and_b32 v7, 3, v1", "v_lshlrev_b32 v7, 4, v7", "v_lshl_add_u32 v7, v3, 6, v7", "s_lshl_b32 s11, s4, 8", f"s_add_u32 s11, s11, {RPART}",
      "v_add_u32 v7, s11, v7", f"v_add_u32 v8, {DUMP}, v6", "v_cndmask_b32 v7, v8, v7, vcc", "v_lshlrev_b32 v9, 2, v2", "v_lshl_add_u32 v9, v3, 9, v9", f"v_add_u32 v9, {RPART}, v9")
    def final_sum():
        for k in range(4): a(f"ds_read2_b32 v[{40+2*k}:{41+2*k}], v9 offset0:{32*k} offset1:{32*k+16}")
        a("s_waitcnt lgkmcnt(2)", "v_pk_add_f32 v[40:41], v[40:41], v[42:43]", "s_waitcnt lgkmcnt(0)", "v_pk_add_f32 v[44:45], v[44:45], v[46:47]", "v_pk_add_f32 v[40:41], v[40:41], v[44:45]", "v_add_f32 v40, v40, v41")
        xrow("v_add_f32", ["v40"], ["v41"]); rne("v40", "v40")
    if PN[0] > 1: pollp([f"buffer_load_dwordx4 v[48:51], v6, {WS}, s12 offen sc1"], range(48, 52), "v8", PN[0], 32)
    else: poll([f"buffer_load_dwordx4 v[32:35], v6, {WS}, s12 offen sc1"], range(32, 36), "v8", sleep=TSL, xm=XM&1)
    rowred("v_add_f32", [f"v{32+k}" for k in range(4)], steps=(8, 4))
    a("ds_write_b128 v7, v[32:35]", "s_waitcnt lgkmcnt(0)", "s_barrier")
    stamp(7)
    a("s_cmp_lg_u32 s4, 1", "s_cbranch_scc1 Lred2")
    final_sum(); a("v_mul_f32 v40, v40, v108"); rne("v40", "v40"); a("v_add_f32 v107, v107, v40"); rne("v107", "v107")
    a("s_lshl_b32 s11, s68, 6", f"s_add_u32 s11, s11, {T2}", "v_or_b32 v40, v107, v0")
    for k in range(R2//4): a(f"buffer_store_dword v40, v111, {WS}, s11 offen sc1", f"s_add_u32 s11, s11, {4*4608}")
    a("Lred2:")
    a("s_cmp_eq_u32 s4, 0", "s_cbranch_scc1 Lred3")
    if PN[2] > 1: pollp([f"buffer_load_dwordx4 v[52:55], v6, {WS}, s13 offen sc1"], range(52, 56), "v8", PN[2], 32)
    else: poll([f"buffer_load_dwordx4 v[32:35], v6, {WS}, s13 offen sc1"], range(32, 36), "v8", xm=XM&4, sleep=T3SL)
    a("s_branch Lred4", "Lred3:")
    if PN[2] > 1: pollp([f"buffer_load_dwordx4 v[52:55], v6, {WS}, s13 offen sc1", f"buffer_load_dwordx4 v[56:59], v6, {WS}, s14 offen sc1"], range(52, 60), "v8", PN[2], 32)
    else: poll([f"buffer_load_dwordx4 v[32:35], v6, {WS}, s13 offen sc1", f"buffer_load_dwordx4 v[36:39], v6, {WS}, s14 offen sc1"], range(32, 40), "v8", xm=XM&4, sleep=T3SL)
    a("v_pk_add_f32 v[32:33], v[32:33], v[36:37]", "v_pk_add_f32 v[34:35], v[34:35], v[38:39]", "Lred4:")
    rowred("v_add_f32", [f"v{32+k}" for k in range(4)], steps=(8, 4))
    a("ds_write_b128 v7, v[32:35]", "s_waitcnt lgkmcnt(0)", "s_barrier")
    a("s_cmp_lg_u32 s4, 1", "s_cbranch_scc1 Lfin")
    final_sum(); a("v_mul_f32 v40, v40, v109"); rne("v40", "v40"); a("v_add_f32 v40, v107, v40", "v_cvt_pk_bf16_f32 v40, v40, v40", "buffer_store_short v40, v110, s[48:51], 0 offen")
    a("s_cmp_lg_u32 s68, 0", "s_cbranch_scc1 Lfin", "v_mov_b32 v41, s97", f"s_mov_b32 s11, {EP}", "s_mov_b64 exec, 1", f"buffer_store_dword v41, v5, {WS}, s11 offen sc1", "s_mov_b64 exec, -1")
    a("s_branch Lfin")
    a("Lffn:")
    a("v_lshrrev_b32 v6, 2, v2", "v_lshl_add_u32 v6, v3, 3, v6", "v_lshlrev_b32 v6, 6, v6", "v_and_b32 v7, 3, v1", "v_lshl_add_u32 v6, v7, 3, v6",
      "s_bfe_u32 s11, s4, 0x10001", "s_mul_i32 s11, s11, 36864", "s_and_b32 s12, s4, 1", "s_lshl_b32 s12, s12, 5", "s_add_u32 s11, s11, s12", "s_lshr_b32 s12, s4, 2", f"s_mul_i32 s13, s12, {9*2048}",
      "s_add_u32 s11, s11, s13", f"s_add_u32 s11, s11, {GU}", "v_add_u32 v6, s11, v6")
    for n in range(9): a(f"ds_read_b64_tr_b16 v[{32+4*n}:{33+4*n}], v6 offset:{2048*n}", f"ds_read_b64_tr_b16 v[{34+4*n}:{35+4*n}], v6 offset:{2048*n+256}")
    a("v_and_b32 v7, 1, v1", "v_mul_u32_u24 v7, 1152, v7", "v_lshl_add_u32 v7, v3, 4, v7", "s_mul_i32 s13, s12, 576", f"s_add_u32 s13, s13, {H2T}", "v_add_u32 v104, s13, v7")
    a("s_mul_i32 s13, s4, 288", f"s_add_u32 s13, s13, {H2T}", "v_lshl_add_u32 v7, v1, 3, s13", "v_lshlrev_b32 v8, 3, v1", f"v_add_u32 v8, {DUMP}, v8", "v_cmp_gt_u32 s[14:15], 36, v1", "v_cndmask_b32 v105, v8, v7, s[14:15]")
    a("s_lshl_b32 s13, s4, 7", f"s_add_u32 s13, s13, {GTAB}", "v_lshlrev_b32 v7, 6, v2", "v_lshl_add_u32 v7, v3, 4, v7", "v_add_u32 v7, s13, v7", "v_lshlrev_b32 v8, 4, v1", f"v_add_u32 v8, {DUMP}, v8",
      "v_cmp_gt_u32 vcc, 2, v2", "v_cndmask_b32 v107, v8, v7, vcc")
    a("v_and_b32 v7, 7, v2", "v_lshl_add_u32 v7, v7, 2, v3", "v_lshrrev_b32 v8, 4, v7", "v_and_b32 v7, 15, v7", "v_lshlrev_b32 v7, 2, v7", "v_lshl_add_u32 v7, v8, 7, v7", "v_lshrrev_b32 v8, 3, v2",
      "v_lshl_add_u32 v7, v8, 6, v7", f"v_add_u32 v108, {GTAB}, v7")
    a("s_lshl_b32 s13, s4, 3", f"s_add_u32 s13, s13, {STAT}", "v_mov_b32 v109, s13", "s_lshl_b32 s13, s12, 5", f"s_add_u32 s13, s13, {STAT}", "v_mov_b32 v9, s13", *([f"s_and_b32 s12, s8, {R2//8-1}", f"s_mul_i32 s13, s9, {R2//8}", "s_add_u32 s12, s12, s13"] if RX else [f"s_and_b32 s12, s10, {R2-1}"]), "s_mul_i32 s12, s12, 4608", f"s_add_u32 s12, s12, {T2}")
    if SCOUT: pollx([f"buffer_load_dword v16, v111, {WS}, s12 offen sc1"], [16], "v8", valid="1", clean=False)
    if PN[1] > 1: pollp([f"buffer_load_dwordx4 v[120:123], v111, {WS}, s12 offen sc1"], range(120, 124), "v8", PN[1], 16, valid="s[14:15]")
    else: poll([f"buffer_load_dwordx4 v[16:19], v111, {WS}, s12 offen sc1"], range(16, 20), "v8", valid="s[14:15]", sleep=TSL, xm=XM&2)
    stamp(7)
    a("v_readfirstlane_b32 s11, v16")
    for k in range(4): a(f"v_subrev_f32 v{20+k}, s11, v{16+k}")
    a("v_add_f32 v10, v20, v21", "v_mul_f32 v11, v20, v20", "v_add_f32 v10, v10, v22", "v_fmac_f32 v11, v21, v21", "v_add_f32 v10, v10, v23", "v_fmac_f32 v11, v22, v22", "v_fmac_f32 v11, v23, v23",
      "v_cndmask_b32 v10, 0, v10, s[14:15]", "v_cndmask_b32 v11, 0, v11, s[14:15]")
    rowred("v_add_f32", ["v10", "v11"]); xrow("v_add_f32", ["v10", "v11"], ["v20", "v21"])
    a("v_mul_f32 v20, 0x3be38e39, v10", "v_fma_f32 v11, -v20, v10, v11", "v_add_f32 v10, s11, v20", "ds_write_b64 v109, v[10:11]", "s_waitcnt lgkmcnt(0)", "s_barrier",
      "ds_read_b128 v[112:115], v9", "ds_read_b128 v[116:119], v9 offset:16", "s_waitcnt lgkmcnt(0)",
      "v_add_f32 v10, v112, v114", "v_add_f32 v11, v116, v118", "v_add_f32 v20, v113, v115", "v_add_f32 v21, v117, v119", "v_add_f32 v10, v10, v11", "v_add_f32 v11, v20, v21", "v_mul_f32 v10, 0x3e800000, v10",
      "v_sub_f32 v112, v112, v10", "v_sub_f32 v114, v114, v10", "v_sub_f32 v116, v116, v10", "v_sub_f32 v118, v118, v10",
      "v_mul_f32 v20, v112, v112", "v_fmac_f32 v20, v114, v114", "v_fmac_f32 v20, v116, v116", "v_fmac_f32 v20, v118, v118", "v_mul_f32 v11, 0x3ae38e39, v11", "v_fmac_f32 v11, 0x3e800000, v20")
    lnstats("v10", "v11")
    for k in range(4): a(f"v_sub_f32 v{16+k}, v{16+k}, v10")
    def rne2(x, y): a(f"v_cvt_pk_bf16_f32 v{y}, v{x}, v{y}", f"v_lshlrev_b32 v{x}, 16, v{y}", f"v_and_b32 v{y}, 0xffff0000, v{y}")
    rne2(16, 17); rne2(18, 19)
    for k in range(4): a(f"v_mul_f32 v{16+k}, v{16+k}, v11")
    rne2(16, 17); rne2(18, 19)
    for k in range(4): a(f"v_mul_f32 v{16+k}, v{16+k}, v{24+k}")
    rne2(16, 17); rne2(18, 19)
    for k in range(4): a(f"v_add_f32 v{16+k}, v{16+k}, v{28+k}")
    a("v_cvt_pk_bf16_f32 v16, v16, v17", "v_cvt_pk_bf16_f32 v17, v18, v19", "ds_write_b64 v105, v[16:17]", "s_waitcnt lgkmcnt(0)", "s_barrier")
    if PN[1] > 1: a("s_waitcnt vmcnt(0)")
    hb = [8, 16, 20, 24, 28, 68, 112, 116, 124]
    for n in range(9): a(f"ds_read_b128 v[{hb[n]}:{hb[n]+3}], v104 offset:{64*n}")
    for n in range(9): a(f"s_waitcnt lgkmcnt({8-n})"); mfma(120, 32+4*n, hb[n], n == 0)
    a("ds_write_b128 v107, v[120:123]", "s_waitcnt lgkmcnt(0)", "s_barrier")
    a("s_cmp_lt_u32 s4, 3", "s_cbranch_scc1 Lfin")
    a("ds_read2st64_b32 v[16:17], v108 offset0:0 offset1:1", "ds_read2st64_b32 v[18:19], v108 offset0:2 offset1:3", "s_waitcnt lgkmcnt(0)", "v_pk_add_f32 v[16:17], v[16:17], v[18:19]")
    rne2(16, 17)
    a("v_mul_f32 v18, v16, v16", "v_mov_b32 v19, 0xc0135761", "v_fmac_f32 v19, 0xbdd2d3e8, v18", "v_mul_f32 v18, v16, v19", "v_exp_f32 v18, v18", "v_add_f32 v18, 1.0, v18", "v_rcp_f32 v18, v18", "v_mul_f32 v16, v16, v18")
    rne("v16", "v16"); a("v_mul_f32 v16, v16, v17", "v_cvt_pk_bf16_f32 v16, v16, v16")
    for n in range(8): bc2(f"v{20+(n&1)}", "v16", n, "v16", 8+n); mkA(112+4*(n&1), f"v{20+(n&1)}"); mfma(120, 112+4*(n&1), 72+4*n, n == 0)
    tagp(range(120, 124)); a(f"buffer_store_dwordx4 v[120:123], v110, {WS}, 0 offen sc1")
    a("Lfin:")
    if TS:
        stamp(10)
        a("s_cmp_eq_u32 s4, 1", "s_cbranch_scc1 Lts1", "s_cmp_eq_u32 s4, 2", "s_cbranch_scc1 Lts2", "s_cmp_eq_u32 s4, 3", "s_cbranch_scc1 Lts3", "s_endpgm")
        a("Lts1:"); a("s_waitcnt lgkmcnt(0)", "s_mov_b64 s[94:95], s[92:93]"); flush_stamps([9, 11, 13]); a("s_endpgm")
        a("Lts2:"); flush_stamps([2, 12, 15]); a("s_endpgm")
        a("Lts3:"); flush_stamps([0, 1, 5, 6, 7, 10, 14])
    a("Lend:")
    hdr = open("adaLN_cond__mha_block_cached__geglu_ffn__decode.s.ref").read().split("; Override launch")[0]
    return (hdr + f"; @launch grid=(256,1,1) block=(1024,1,1) lds={LDSN}\n.amdgcn_target \"amdgcn-amd-amdhsa--gfx950\"\n.text\n.globl {KN}\n.p2align 8\n.type {KN},@function\n{KN}:\n"
        + a.text() + f"""    s_endpgm
.section .rodata,"a"
.p2align 6
.amdhsa_kernel {KN}
  .amdhsa_next_free_vgpr 128
  .amdhsa_next_free_sgpr 102
  .amdhsa_accum_offset 128
  .amdhsa_group_segment_fixed_size 0
  .amdhsa_kernarg_size 112
  .amdhsa_user_sgpr_count 2
  .amdhsa_user_sgpr_kernarg_segment_ptr 1
  .amdhsa_system_sgpr_workgroup_id_x 1
.end_amdhsa_kernel
""")
if __name__ == "__main__":
    out = sys.argv[1]; kw = {}
    for x in sys.argv[2:]:
        k, v = x.split("="); kw[k] = eval(v)
    open(out, "w").write(gen(**kw))
```

```python
import sys
from asmlib import Asm
KN = "adaLN_cond__mha_block_cached__geglu_ffn__decode_kernel"
QP=0; T1=0xC0000; T3=0x150000; ML=0x1F2000; CB=0x1F6000; SB=0x1F7200; EP=0x1F9000; MODP=0x200000; T2=0x240000; PEX=0x300000; WSN=0x400000
OOB=0x40000000
OPART=0; RPART=4096; HTAB=6400; QTAB=7040; WTAB=7296; STAT=7424; FL=7488; H2T=7552; GTAB=9856; DUMP=10880; GU=12288; LDSN=86016
F_Q=FL; F_H=FL+4; F_M=FL+8; F_W=FL+12
def TSR(k): return {13: 100, 14: 90, 12: 74, 15: 78}.get(k, 72+2*k)
def br4(r): return int(f"{r:04b}"[::-1], 2)
def gen(RING=20, DEPTH=2, HDEPTH=1, CATCH=2, TS=False, NT=" nt", NTW=" nt", PPOS=8, PDEPTH=2, PSLEEP=2, WQD=1, BULKWAIT=0, R2=8, MWAIT=1, SKIP='', TSL=0, NTG=' nt', GD=1, GSPL=1, PF=0, PFD=1, NTP='', GULAST=0, PFN=12, GUS=0, GP0=36, GST=3, DSW=64, DEPTH2=4, LV=None, LP0=32, FMAP=0, XM=0, SCOUT=0, IFIRST=0, PRIO=0, VAL=0, PL1=7, PL2=10, PN=(1,1,1), PD=10, RX=0, T3SL=0, QX=0, KRING=20, NTO=' nt', RK=None, RKD=4, GH=0, SB_=0, HOIST=0, FAST=0):
    a = Asm()
    def srd(r, p, n): a(f"s_mov_b32 s{r}, s{p}", f"s_and_b32 s{r+1}, s{p+1}, 0xffff", f"s_mov_b32 s{r+2}, {n}", f"s_mov_b32 s{r+3}, 0x20000")
    P = dict(x=16, K=18, V=20, wq=22, wo=24, wg=28, wu=30, wd=32, c=34, wm=36, out=38, dbg=40, ws=42)
    WS = "s[44:47]"
    def stamp(k):
        if TS: a(f"s_memrealtime s[{TSR(k)}:{TSR(k)+1}]")
    def flush_stamps(ks):
        if not TS: return
        a("s_waitcnt lgkmcnt(0)", "s_lshl_b32 s11, s2, 7", "s_add_u32 s11, s11, 0x8000000", "v_mov_b32 v4, s11", "s_mov_b64 exec, 1")
        for k in ks: a(f"v_mov_b32 v6, s{TSR(k)}", f"v_mov_b32 v7, s{TSR(k)+1}", f"global_store_dwordx2 v4, v[6:7], s[42:43] offset:{8*k}", "s_waitcnt vmcnt(0)")
        a("s_mov_b64 exec, -1")
    def spin_lds(flag, t="v4"):
        l = a.label("Lsp"); d = a.label("Lspd")
        a(f"{l}:", f"ds_read_b32 {t}, v5 offset:{flag}", "s_waitcnt lgkmcnt(0)", f"v_readfirstlane_b32 s11, {t}", "s_cmp_lg_u32 s11, 0", f"s_cbranch_scc1 {d}",
          "s_sleep 1", "s_sub_u32 s70, s70, 1", "s_cmp_gt_i32 s70, 0", f"s_cbranch_scc1 {l}", f"{d}:")
    def set_flag(flag, t="v4"):
        a("s_waitcnt lgkmcnt(0)", f"v_mov_b32 {t}, 1", f"ds_write_b32 v5, {t} offset:{flag}")
    def tagp(rs, rnd=False):
        for r in rs:
            if rnd: a(f"v_add_u32 v{r}, 0x200, v{r}")
        for r in rs: a(f"v_bfi_b32 v{r}, s96, v0, v{r}")
    def pollx(loads, rs, t, valid=None, clean=True, sleep=0):
        l = a.label("Lpx"); d = a.label("Lpxd")
        if valid: a(f"s_mov_b64 exec, {valid}")
        a(f"{l}:"); a(*loads); a("s_waitcnt vmcnt(0)")
        rs = list(rs); a(f"v_xor_b32 {t}, v{rs[0]}, v0")
        for r in rs[1:]: a(f"v_bitop3_b32 {t}, {t}, v{r}, v0 bitop3:0xf6")
        a(f"v_and_b32 {t}, s96, {t}", f"v_cmp_ne_u32 vcc, 0, {t}", "s_and_b64 exec, vcc, vcc", f"s_cbranch_scc0 {d}")
        if sleep: a(f"s_sleep {sleep}")
        a("s_sub_u32 s70, s70, 1", "s_cmp_gt_i32 s70, 0", f"s_cbranch_scc1 {l}", f"{d}:", "s_mov_b64 exec, -1")
        if clean:
            for r in rs: a(f"v_and_b32 v{r}, s98, v{r}")
    def pollp(loads, rs, t, n, dst, valid=None):
        l = a.label("Lpp"); d = a.label("Lppd"); nl = sum(x.startswith("buffer") for x in loads)
        if valid: a(f"s_mov_b64 exec, {valid}")
        for k in range(n-1): a(*loads); a(f"s_sleep {PD*2//n}")
        a(f"{l}:"); a(*loads); a(f"s_waitcnt vmcnt({nl*(n-1)})")
        rs = list(rs); a(f"v_xor_b32 {t}, v{rs[0]}, v0")
        for r in rs[1:]: a(f"v_bitop3_b32 {t}, {t}, v{r}, v0 bitop3:0xf6")
        a(f"v_and_b32 {t}, s96, {t}", f"v_cmp_ne_u32 vcc, 0, {t}", "s_and_b64 exec, vcc, vcc", f"s_cbranch_scc0 {d}")
        a("s_sub_u32 s70, s70, 1", "s_cmp_gt_i32 s70, 0", f"s_cbranch_scc1 {l}", f"{d}:", "s_mov_b64 exec, -1")
        for k, r in enumerate(rs): a(f"v_and_b32 v{dst+k}, s98, v{r}")
    def poll(loads, rs, t, sleep=0, first=True, valid=None, clean=True, xm=0):
        if xm: return pollx(loads, rs, t, valid, clean, sleep)
        l = a.label("Lpo"); d = a.label("Lpod"); c = a.label("Lpoc")
        if not first: a(f"s_branch {c}")
        a(f"{l}:"); a(*loads); a("s_waitcnt vmcnt(0)"); a(f"{c}:")
        rs = list(rs); a(f"v_xor_b32 {t}, v{rs[0]}, v0")
        for r in rs[1:]: a(f"v_bitop3_b32 {t}, {t}, v{r}, v0 bitop3:0xf6")
        a(f"v_and_b32 {t}, s96, {t}", f"v_cmp_ne_u32 vcc, 0, {t}")
        if valid: a(f"s_and_b64 vcc, vcc, {valid}", f"s_cbranch_scc0 {d}")
        else: a(f"s_cbranch_vccz {d}")
        if sleep: a(f"s_sleep {sleep}")
        a("s_sub_u32 s70, s70, 1", "s_cmp_gt_i32 s70, 0", f"s_cbranch_scc1 {l}", f"{d}:")
        if clean:
            for r in rs: a(f"v_and_b32 v{r}, s98, v{r}")
    def rne(d, s): a(f"v_cvt_pk_bf16_f32 {d}, {s}, {s}", f"v_and_b32 {d}, 0xffff0000, {d}")
    def rowred(op, rs, steps=(8,4,2,1)):
        for st in steps:
            for r in rs: a(f"{op}_dpp {r}, {r}, {r} row_ror:{st} row_mask:0xf bank_mask:0xf")
    def xrow(op, rs, ts, which=(16,32)):
        for wd in which:
            for r, t in zip(rs, ts): a(f"v_mov_b32 {t}, {r}")
            for r, t in zip(rs, ts): a(f"v_permlane{wd}_swap_b32 {r}, {t}")
            for r, t in zip(rs, ts): a(f"{op} {r}, {r}, {t}")
    def masks():
        a("v_and_b32 v4, 7, v1", "v_and_b32 v6, 1, v1", "v_lshlrev_b32 v6, 4, v6", "v_mov_b32 v7, 0xffff", "v_lshlrev_b32 v6, v6, v7", "v_lshrrev_b32 v4, 1, v4")
        for r in range(4): a(f"v_cmp_eq_u32 vcc, {r}, v4", f"v_cndmask_b32 v{12+r}, 0, v6, vcc")
    def mkA(A, pp):
        for r in range(4): a(f"v_and_b32 v{A+r}, {pp}, v{12+r}")
    def bc2(pp, lo, nlo, hi, nhi):
        a(f"v_mov_b32_dpp {pp}, {lo} row_newbcast:{nlo} row_mask:0xf bank_mask:0x3", f"v_mov_b32_dpp {pp}, {hi} row_newbcast:{nhi} row_mask:0xf bank_mask:0xc")
    def mfma(D, A, B, first): a(f"v_mfma_f32_16x16x32_bf16 v[{D}:{D+3}], v[{A}:{A+3}], v[{B}:{B+3}], " + ("0" if first else f"v[{D}:{D+3}]"))
    a("s_cmp_ge_u32 s2, 256", "s_cbranch_scc1 Lend")
    stamp(0)
    a("s_load_dwordx16 s[16:31], s[0:1], 0", "s_load_dwordx8 s[32:39], s[0:1], 64", "s_load_dwordx4 s[40:43], s[0:1], 96")
    a("v_lshrrev_b32 v2, 6, v0", "v_and_b32 v1, 63, v0", "v_mov_b32 v5, 0", "v_readfirstlane_b32 s4, v2")
    a("s_and_b32 s9, s2, 7", "s_lshr_b32 s8, s2, 3", "s_lshl_b32 s3, s9, 5", "s_or_b32 s3, s3, s8")
    a("s_lshr_b32 s5, s3, 3", "s_bfe_u32 s6, s3, 0x10002", "s_and_b32 s7, s3, 3", "s_mov_b32 s70, 0x100000")
    a("v_and_b32 v2, 15, v1", "v_lshrrev_b32 v3, 4, v1")
    if FMAP:
        pk = lambda q: sum(v << (4*i) for i, v in enumerate(q))
        ce, co, c5 = pk([1,3,5,7,0,2,4,6,8]), pk([0,2,4,8,6,1,3,5,7]), pk([0,2,6,8,4,1,3,5,7])
        a("s_bitcmp1_b32 s9, 0", f"s_cselect_b32 s12, {co & 0xffffffff}, {ce & 0xffffffff}".replace(f", {ce & 0xffffffff}", ", s70"), f"s_cselect_b32 s13, {co >> 32}, {ce >> 32}", "s_cbranch_scc1 Lfm", f"s_mov_b32 s12, {ce & 0xffffffff}", "Lfm:",
          "s_cmp_eq_u32 s9, 5", f"s_cselect_b32 s12, {c5 & 0xffffffff}, s12", "s_and_b32 s10, s8, 1", "s_mul_i32 s10, s10, 9", "s_lshr_b32 s11, s8, 1", "s_add_u32 s10, s10, s11",
          "s_lshr_b32 s11, s10, 1", "s_lshl_b32 s11, s11, 2", "s_lshr_b64 s[12:13], s[12:13], s11", "s_and_b32 s12, s12, 15", "s_mul_i32 s11, s9, 9", "s_add_u32 s12, s12, s11", "s_and_b32 s10, s10, 1", "s_lshl1_add_u32 s10, s12, s10")
    else: a("s_mul_i32 s10, s9, 18", "s_add_u32 s10, s10, s8")
    masks()
    a("s_waitcnt lgkmcnt(0)", f"s_add_u32 s12, s42, {EP}", "s_addc_u32 s13, s43, 0", "s_load_dword s97, s[12:13], 0", "s_movk_i32 s96, 0x3ff", "s_mov_b32 s98, 0xfffffc00")
    srd(44, P["ws"], WSN)
    a("s_cmp_lt_u32 s4, 8", "s_cbranch_scc1 Lhelper")
    a("s_sub_u32 s4, s4, 8")
    if PRIO: a(f"s_setprio {PRIO}")
    srd(48, P["K"], 0x4000000); srd(52, P["V"], 0x4000000)
    a("s_lshl_b32 s11, s6, 5", "s_add_u32 s11, s11, s5", "s_lshl_b32 s11, s11, 20", "s_lshl_b32 s12, s4, 15", "s_add_u32 s11, s11, s12",
      "s_lshl_b32 s12, s7, 18", "s_add_u32 s12, s12, s11", "s_xor_b32 s13, s7, 1", "s_lshl_b32 s13, s13, 18", "s_add_u32 s13, s13, s11")
    a("v_lshl_add_u32 v6, v1, 4, s12")
    a("v_bfe_u32 v4, v1, 3, 1", "v_lshl_add_u32 v4, v4, 2, v3", "v_lshlrev_b32 v4, 8, v4", "v_and_b32 v7, 7, v1", "v_lshl_add_u32 v4, v7, 4, v4",
      "s_and_b32 s14, s7, 1", "s_lshl_b32 s14, s14, 7", "v_add_u32 v4, s14, v4", "v_add_u32 v7, s12, v4", "v_add_u32 v30, s13, v4")
    if VAL: a("s_min_u32 s14, s12, s13", "s_max_u32 s13, s12, s13", "v_add_u32 v7, s14, v4", "v_add_u32 v30, s13, v4")
    a("s_mov_b32 s64, 0xcccccccc", "s_mov_b32 s65, 0xcccccccc", "s_mov_b32 s66, 0xaaaaaaaa", "s_mov_b32 s67, 0xaaaaaaaa")
    if not SB_: a("s_barrier")
    ops = []
    slots = {}; freed = set()
    def freeslot(i):
        busy = {v for k, v in slots.items() if k not in freed}
        c = [x for x in range(KRING if i < 32 else RING) if x not in busy]
        return (c[-1] if i < 32 else c[0]) if c else None
    def slot(i): return 32 + 4*slots[i]
    def issue(i):
        slots[i] = freeslot(i); r = slot(i)
        if i < 32: a(f"s_movk_i32 s15, {i*1024}", f"buffer_load_dwordx4 v[{r}:{r+3}], v6, s[48:51], s15 offen{NT}")
        else:
            n = (i-32) % 16; v = "v7" if i < 48 else "v30"
            a(f"s_movk_i32 s15, {n*2048}", f"buffer_load_dwordx4 v[{r}:{r+3}], {v}, s[52:55], s15 offen{NT}")
        ops.append(i)
    done = [0]
    def waitn(n):
        if len(ops) - n > done[0]: done[0] = len(ops) - n; a(f"s_waitcnt vmcnt({n})")
    def wait_for(tag): waitn(len(ops) - 1 - ops.index(tag))
    def procK(i):
        wait_for(i+1); r0 = slot(i); r1 = slot(i+1)
        for k in range(4):
            a(f"v_dot2_f32_bf16 v20, v{r0+k}, v{8+k}, " + ("0" if k == 0 else "v20"), f"v_dot2_f32_bf16 v21, v{r1+k}, v{8+k}, " + ("0" if k == 0 else "v21"))
        freed.update((i, i+1)); j = i % 16; T = 22 + (j >> 1 & 1)
        a(f"v_add_f32_dpp v{T}, v20, v20 row_ror:8 row_mask:0xf bank_mask:0x3", f"v_add_f32_dpp v{T}, v21, v21 row_ror:8 row_mask:0xf bank_mask:0xc")
        if j & 2:
            U = 24 + (j >> 2 & 1)
            a(f"v_add_f32_dpp v{U}, v22, v22 row_half_mirror row_mask:0xf bank_mask:0x5", f"v_add_f32_dpp v{U}, v23, v23 row_half_mirror row_mask:0xf bank_mask:0xa")
            if j & 4:
                W = 26 + (j >> 3 & 1)
                a("v_cndmask_b32 v28, v24, v25, s[64:65]", "v_cndmask_b32 v29, v25, v24, s[64:65]", f"v_add_f32_dpp v{W}, v29, v28 quad_perm:[2,3,0,1] row_mask:0xf bank_mask:0xf")
                if j & 8:
                    a("v_cndmask_b32 v28, v26, v27, s[66:67]", "v_cndmask_b32 v29, v27, v26, s[66:67]", f"v_add_f32_dpp v{16+i//16}, v29, v28 quad_perm:[1,0,3,2] row_mask:0xf bank_mask:0xf")
    def softmax():
        a("v_cvt_pk_bf16_f32 v20, v16, v17", "s_mov_b32 s11, 0x3db504f3", "v_lshlrev_b32 v16, 16, v20", "v_and_b32 v17, 0xffff0000, v20",
          "v_mul_f32 v16, s11, v16", "v_mul_f32 v17, s11, v17", "v_cvt_pk_bf16_f32 v20, v16, v17", "v_lshlrev_b32 v16, 16, v20", "v_and_b32 v17, 0xffff0000, v20",
          "v_max_f32 v22, v16, v17")
        rowred("v_max_f32", ["v22"]); xrow("v_max_f32", ["v22"], ["v21"])
        a("s_mov_b32 s11, 0x3fb8aa3b", "v_sub_f32 v16, v16, v22", "v_sub_f32 v17, v17, v22", "v_mul_f32 v16, s11, v16", "v_mul_f32 v17, s11, v17",
          "v_exp_f32 v16, v16", "v_exp_f32 v17, v17", "v_add_f32 v23, v16, v17", "v_cvt_pk_bf16_f32 v16, v16, v16", "v_cvt_pk_bf16_f32 v17, v17, v17",
          "s_mov_b32 s14, 0xffff", "v_bfi_b32 v20, s14, v0, v16", "v_bfi_b32 v21, s14, v0, v17")
        a("s_lshl_b32 s11, s3, 3", "s_add_u32 s11, s11, s4", "s_lshl_b32 s12, s11, 9", f"s_add_u32 s12, s12, {PEX}", "v_lshlrev_b32 v31, 3, v1",
          f"buffer_store_dwordx2 v[20:21], v31, {WS}, s12 offen sc1"); ops.append("pst")
        a("s_xor_b32 s13, s12, 0x1000")
        rowred("v_add_f32", ["v23"]); xrow("v_add_f32", ["v23"], ["v25"]); tagp([22, 23])
        a("v_cmp_eq_u32 vcc, 0, v1", f"v_mov_b32 v24, {OOB}", "v_cndmask_b32 v24, v24, v5, vcc", "s_lshl_b32 s11, s11, 3", f"s_add_u32 s11, s11, {ML}",
          f"buffer_store_dwordx2 v[22:23], v24, {WS}, s11 offen sc1"); ops.append("mlst")
        if RK:
            a("v_and_b32 v24, 7, v1", "v_lshlrev_b32 v24, 5, v24", "v_bfe_u32 v25, v1, 3, 1", "v_lshl_add_u32 v25, v25, 4, s8", "v_and_b32 v25, 31, v25", "v_add_u32 v24, v24, v25",
              "v_lshl_add_u32 v24, v24, 3, s4", "v_lshlrev_b32 v24, 3, v24", "v_cmp_gt_u32 vcc, 16, v1", f"v_mov_b32 v25, {OOB}", "v_cndmask_b32 v24, v25, v24, vcc", f"s_mov_b32 s11, {ML}",
              f"buffer_load_dword v29, v24, {WS}, s11 offen sc1"); ops.append("rk")
    def procV(i):
        n = (i-32) % 16; par = i >= 48; D = 124 if par else 120; A = 112 + 4*(i & 1); u = n >> 3; n1 = n & 7
        src = f"v{(18 if par else 16)+u}"
        if i == (32 if VAL else 48):
            wait_for("pld")
            poll([f"buffer_load_dwordx2 v[26:27], v31, {WS}, s13 offen sc1"], [26, 27], "v28", first=False, clean=False)
            a("s_mov_b32 s14, 0x03020302", "v_perm_b32 v18, v26, v26, s14", "v_perm_b32 v19, v27, v27, s14")
            if VAL:
                l = a.label("Lsw"); a("s_bitcmp0_b32 s7, 0", f"s_cbranch_scc1 {l}", "v_swap_b32 v16, v18", "v_swap_b32 v17, v19", f"{l}:", "s_nop 1")
        bc2(f"v{20+(i&1)}", src, br4(2*n1), src, br4(2*n1+1)); mkA(A, f"v{20+(i&1)}")
        wait_for(i); mfma(D, A, slot(i), n == 0); freed.add(i)
    issued = 0
    for i in range(KRING):
        issue(i); issued += 1
        if issued == SB_: a("s_barrier")
        waitn(PDEPTH)
    a("s_waitcnt lgkmcnt(0)", "s_add_u32 s97, s97, 1", "s_and_b32 s99, s97, s96", "v_mov_b32 v0, s99")
    stamp(8)
    spin_lds(F_Q)
    a(f"v_lshlrev_b32 v4, 4, v2", f"ds_read_b128 v[8:11], v4 offset:{QTAB}", "s_waitcnt lgkmcnt(0)")
    proc = 0
    if LV:
        a("s_and_b32 s63, s7, 1", f"s_mul_i32 s63, s63, {LV[1]}", f"s_add_u32 s63, s63, {LV[0]}", "s_and_b32 s11, s10, 14", "s_cmp_eq_u32 s11, 6",
          f"s_cselect_b32 s11, {LV[2]+LV[3]}, {LV[3]}", "s_cmp_lt_u32 s8, 18", "s_cselect_b32 s11, s11, 0", "s_add_u32 s63, s63, s11")
    rkon = [False]
    def dep(i): return (DEPTH if i < DSW else DEPTH2) + (1 if LV and i >= LP0 else 0) + (2 if rkon[0] else 0)
    def endprep():
        spin_lds(F_W)
        a(f"s_and_b32 s11, s7, {2 if VAL else 3}", "s_lshl_b32 s11, s11, 3", "s_add_u32 s11, s11, s4", "s_lshl_b32 s11, s11, 2", "v_mov_b32 v4, s11", "v_xor_b32 v29, 32, v4",
          f"ds_read_b32 v26, v4 offset:{WTAB}", f"ds_read_b32 v27, v29 offset:{WTAB}")
        a("v_lshrrev_b32 v22, 3, v2", "v_lshrrev_b32 v23, 1, v3", "v_cmp_eq_u32 vcc, v22, v23", "v_and_b32 v23, 7, v1", "v_lshlrev_b32 v23, 5, v23", "v_and_b32 v24, 1, v3",
          "v_lshl_add_u32 v23, v24, 4, v23", "v_lshl_add_u32 v23, v22, 8, v23", "s_lshl_b32 s11, s4, 9", f"s_add_u32 s11, s11, {OPART}", "v_add_u32 v23, s11, v23",
          "v_lshlrev_b32 v24, 4, v1", f"v_add_u32 v24, {DUMP}, v24", "v_cndmask_b32 v23, v24, v23, vcc", "s_waitcnt lgkmcnt(0)")
    ism = [0]
    def procsome(lag):
        nonlocal proc
        cnt = 0
        while proc < 64 and cnt < CATCH and (proc < issued - lag - (1 if proc < 32 else 0) or issued == 64):
            if VAL and proc == 32 and issued < min(ism[0] + PL2, 32 + RING): break
            if proc < 32:
                procK(proc); proc += 2; cnt += 2
                if proc == 32: softmax(); stamp(3); ism[0] = issued
            else:
                if proc == HOIST: endprep()
                procV(proc); proc += 1; cnt += 1
    while proc < 64:
        if not IFIRST or issued == 64 or freeslot(issued) is None: procsome(dep(issued))
        if issued < 64 and freeslot(issued) is not None:
            issue(issued); issued += 1
            if GUS and issued == 33:
                a("s_cmp_lt_u32 s4, 4", "s_cselect_b32 s56, s28, s30", "s_cselect_b32 s57, s29, s31", "s_and_b32 s57, s57, 0xffff", "s_cmp_lt_u32 s8, 18", f"s_cselect_b32 s58, {576*9216}, 0", "s_mov_b32 s59, 0x20000",
                  "s_lshl_b32 s60, s10, 6", "s_and_b32 s61, s4, 3", f"s_mul_i32 s62, s61, {16*9216}", "s_add_u32 s60, s60, s62",
                  "v_lshrrev_b32 v6, 2, v1", "v_mul_u32_u24 v6, 9216, v6", "v_and_b32 v4, 3, v1", "v_lshl_add_u32 v6, v4, 4, v6", "v_add_u32 v6, s60, v6",
                  "s_lshr_b32 s62, s4, 2", "s_mul_i32 s62, s62, 36864", "s_lshl_b32 s61, s61, 10", "s_add_u32 s61, s61, s62", f"s_add_u32 s61, s61, {GU}", "s_mov_b32 s62, 0")
            if GUS and GH:
                for n in [n for n in range(18) if GP0 + (n*GST)//2 == issued]:
                    a("s_mov_b32 m0, s61", f"s_mov_b32 exec_{'lo' if n & 1 else 'hi'}, 0", f"buffer_load_dwordx4 v6, s[56:59], s62 offen{NTG} lds", "s_mov_b64 exec, -1"); ops.append(f"gu{n}")
                    if n & 1: a("s_add_u32 s61, s61, 4096", f"s_add_u32 s62, s62, {64*9216}")
            elif GUS and issued >= GP0 and (issued - GP0) % GST == 0 and (issued - GP0)//GST < 9:
                a("s_mov_b32 m0, s61", "s_add_u32 s61, s61, 4096", f"buffer_load_dwordx4 v6, s[56:59], s62 offen{NTG} lds", f"s_add_u32 s62, s62, {64*9216}"); ops.append(f"gu{issued}")
            if IFIRST: procsome(dep(issued) + 1)
            waitn(dep(issued))
            if rkon[0]:
                l = a.label("Lrk"); th = br4(issued & 15)
                a(f"s_cmp_gt_i32 s63, {th+16}", f"s_cbranch_scc1 {l}", f"s_waitcnt vmcnt({dep(issued)-1})", f"s_cmp_gt_i32 s63, {th}", f"s_cbranch_scc1 {l}", f"s_waitcnt vmcnt({dep(issued)-2})", f"{l}:")
            if RK and not rkon[0] and "rk" in ops and issued >= ism[0] + RKD:
                wait_for("rk"); rkon[0] = True
                a("v_xor_b32 v29, v29, v0", "v_and_b32 v29, s96, v29", "v_cmp_eq_u32 vcc, 0, v29", "s_and_b32 s63, vcc_lo, 0xffff", "s_bcnt1_i32_b32 s63, s63", f"s_mul_i32 s63, s63, {RK[0]}", f"s_add_i32 s63, s63, {RK[1]}")
            if LV and issued >= LP0:
                l = a.label("Llv"); a(f"s_cmp_gt_u32 s63, {br4(issued & 15) >> 1}", f"s_cbranch_scc1 {l}", f"s_waitcnt vmcnt({dep(issued)-1})", f"{l}:")
        if "mlst" in ops and "pld" not in ops and (issued >= min(ism[0] + PL1, 31 + RING) if VAL else proc >= 32 + PPOS):
            a(f"buffer_load_dwordx2 v[26:27], v31, {WS}, s13 offen sc1"); ops.append("pld")
    if not HOIST: endprep()
    for r in range(4): a(f"v_mul_f32 v{120+r}, v26, v{120+r}")
    for r in range(4): a(f"v_fmac_f32 v{120+r}, v27, v{124+r}")
    a("ds_write_b128 v23, v[120:123]", "s_waitcnt lgkmcnt(0)")
    stamp(4)
    a("s_barrier")
    if TS:
        a("s_cmp_lg_u32 s4, 0", "s_cbranch_scc1 Lend"); flush_stamps([3, 4, 8])
    a("s_endpgm")
    a("Lhelper:")
    for r in range(104, 112): a(f"v_mov_b32 v{r}, {OOB}")
    a("s_mul_i32 s68, s9, 9", "s_add_u32 s68, s68, s8", "s_sub_u32 s68, s68, 18")
    a("s_mov_b32 s69, 0", "s_cmp_lt_u32 s8, 27", "s_cselect_b32 s69, 2, 0", "s_cmp_lt_u32 s8, 18", "s_cselect_b32 s69, 1, s69")
    a("s_cmp_ge_u32 s68, 36", "s_cselect_b32 s71, 1, 0")
    a("s_cmp_eq_u32 s4, 1", "s_cbranch_scc1 Lw1", "s_cmp_eq_u32 s4, 2", "s_cbranch_scc1 Lw2", "s_cmp_eq_u32 s4, 3", "s_cbranch_scc1 Lw3")
    a("v_mov_b32 v6, 0", "v_mov_b32 v7, 0", "v_mov_b32 v8, 0", "v_mov_b32 v9, 0", f"ds_write_b128 v5, v[6:9] offset:{FL}", "s_waitcnt lgkmcnt(0)", "s_add_u32 s97, s97, 1", "s_and_b32 s99, s97, s96", "v_mov_b32 v0, s99", "s_barrier", "s_branch Lbulk")
    a("Lw1:")
    srd(48, P["wm"], 576*6912); srd(52, P["c"], 2304); srd(60, P["x"], 2304)
    a("s_mul_i32 s11, s3, 7282", "s_lshr_b32 s11, s11, 16", "s_mul_i32 s12, s11, 9", "s_sub_u32 s12, s3, s12")
    a("s_cmp_lt_u32 s3, 243", "s_cbranch_scc1 Lw1a", "s_waitcnt lgkmcnt(0)", "s_add_u32 s97, s97, 1", "s_and_b32 s99, s97, s96", "v_mov_b32 v0, s99", "s_barrier", "s_branch Lw1clr", "Lw1a:")
    a("s_lshl_b32 s13, s12, 6", "v_lshl_add_u32 v6, v2, 2, v3", "v_add_u32 v6, s13, v6", "v_lshlrev_b32 v6, 1, v6",
      "buffer_load_ushort v16, v6, s[52:55], 0 offen", "buffer_load_ushort v17, v6, s[52:55], 0 offen offset:1152")
    a("v_add_u32 v6, s13, v3", "v_mul_u32_u24 v6, 6912, v6", "s_lshl_b32 s14, s11, 8", "v_lshl_add_u32 v6, v2, 4, v6", "v_add_u32 v6, s14, v6")
    for n in range(16): a(f"s_mov_b32 s15, {n*4*6912}", f"buffer_load_dwordx4 v[{32+4*n}:{35+4*n}], v6, s[48:51], s15 offen{NTW}")
    a("s_barrier", "s_waitcnt lgkmcnt(0)", "s_add_u32 s97, s97, 1", "s_and_b32 s99, s97, s96", "v_mov_b32 v0, s99")
    a("s_waitcnt vmcnt(16)")
    for r in (16, 17):
        a(f"v_lshlrev_b32 v{r}, 16, v{r}", f"v_mul_f32 v18, 0xbfb8aa3b, v{r}", "v_exp_f32 v18, v18", "v_add_f32 v18, 1.0, v18", "v_rcp_f32 v18, v18", f"v_mul_f32 v{r}, v{r}, v18", f"v_cvt_pk_bf16_f32 v{r}, v{r}, v{r}")
    for n in range(16):
        bc2(f"v{20+(n&1)}", "v16", n, "v17", n); mkA(112+4*(n&1), f"v{20+(n&1)}"); a(f"s_waitcnt vmcnt({15-n})"); mfma(120, 112+4*(n&1), 32+4*n, n == 0)
    a("v_lshrrev_b32 v6, 1, v3", "v_mul_u32_u24 v6, 13824, v6", "v_and_b32 v7, 1, v3", "v_lshl_add_u32 v6, v7, 4, v6", "v_lshl_add_u32 v6, v2, 5, v6",
      "s_mul_i32 s13, s12, 27648", "s_lshl_b32 s14, s11, 9", "s_add_u32 s13, s13, s14", f"s_add_u32 s13, s13, {MODP}")
    tagp(range(120, 124), True)
    a(f"buffer_store_dwordx4 v[120:123], v6, {WS}, s13 offen sc1"); stamp(13)
    if MWAIT: a("s_waitcnt vmcnt(0)")
    a("Lw1clr:"); set_flag(F_M); stamp(9)
    a("s_cmp_lg_u32 s69, 2", "s_cbranch_scc1 Lbulk")
    spin_lds(F_H)
    a("s_mul_i32 s12, s71, 36", "s_sub_u32 s12, s68, s12", "s_lshl_b32 s12, s12, 4")
    a("v_mul_u32_u24 v6, 576, v3", "v_add3_u32 v6, v6, v2, s12", "v_lshlrev_b32 v6, 2, v6", "s_mul_i32 s13, s71, 13824", f"s_add_u32 s13, s13, {MODP+1152*4}")
    a("s_mul_i32 s14, s71, 576", "s_add_u32 s14, s14, s12", "v_add_u32 v7, s14, v2", "v_lshlrev_b32 v8, 1, v7", "buffer_load_ushort v107, v8, s[60:63], 0 offen")
    poll(sum([[f"s_add_u32 s14, s13, {27648*k}", f"buffer_load_dword v{32+k}, v6, {WS}, s14 offen sc1"] for k in range(9)], []), range(32, 41), "v9", sleep=8)
    for k in range(1, 9): a(f"v_add_f32 v32, v32, v{32+k}")
    rne("v32", "v32"); a("v_add_f32 v33, 1.0, v32"); rne("v33", "v33")
    a("v_cmp_eq_u32 vcc, 2, v3", "v_cndmask_b32 v32, v32, v33, vcc", f"v_mov_b32 v9, {OOB}", f"v_mov_b32 v10, {CB}", "v_cndmask_b32 v9, v9, v10, vcc",
      "v_cmp_eq_u32 vcc, 1, v3", f"v_mov_b32 v10, {SB}", "v_cndmask_b32 v9, v9, v10, vcc", "v_lshl_add_u32 v9, v7, 2, v9", "v_or_b32 v33, v32, v0", f"buffer_store_dword v33, v9, {WS}, 0 offen sc1",
      "v_lshlrev_b32 v10, 2, v2", "v_add_u32 v11, 192, v10", "ds_bpermute_b32 v108, v10, v32", "ds_bpermute_b32 v109, v11, v32", "v_lshlrev_b32 v107, 16, v107",
      "v_cmp_gt_u32 vcc, 16, v1", f"v_mov_b32 v9, {OOB}", "v_cndmask_b32 v110, v9, v8, vcc", "v_mul_u32_u24 v111, 4608, v3", "v_add_u32 v111, v111, v10", "s_waitcnt lgkmcnt(0)", "s_branch Lbulk")
    a("Lw2:")
    srd(48, P["wq"], 576*8192)
    a("s_mov_b32 s11, s9" if QX else "s_and_b32 s11, s3, 7", "s_mul_i32 s11, s11, 72", "v_add_u32 v6, s11, v3", "v_lshlrev_b32 v6, 13, v6", f"s_lshl_b32 s12, {'s8' if QX else 's5'}, 8", "v_lshl_add_u32 v6, v2, 4, v6", "v_add_u32 v6, s12, v6")
    for n in range(18):
        if WQD < 18 and n == 0: a("s_barrier")
        a(f"s_mov_b32 s15, {n*32768}", f"buffer_load_dwordx4 v[{32+4*n}:{35+4*n}], v6, s[48:51], s15 offen{NTW}")
        if WQD < 18: a(f"s_waitcnt vmcnt({WQD})")
    if WQD >= 18: a("s_barrier")
    a("v_lshrrev_b32 v6, 3, v2", "v_lshl_add_u32 v6, v6, 2, v3", "v_mul_u32_u24 v6, 80, v6")
    a("s_waitcnt lgkmcnt(0)", "s_add_u32 s97, s97, 1", "s_and_b32 s99, s97, s96", "v_mov_b32 v0, s99")
    if TS: a("s_waitcnt vmcnt(0)"); stamp(12)
    spin_lds(F_H)
    hr = [16, 20, 24, 104, 108]
    for k in range(5): a(f"ds_read_b128 v[{hr[k]}:{hr[k]+3}], v6 offset:{HTAB+16*k}")
    a("s_waitcnt vmcnt(0) lgkmcnt(0)")
    for n in range(18): mkA(112+4*(n&1), f"v{hr[n>>2]+(n&3)}"); mfma(120, 112+4*(n&1), 32+4*n, n == 0)
    a("v_lshrrev_b32 v6, 1, v3", "v_lshlrev_b32 v6, 9, v6", "v_and_b32 v7, 1, v3", "v_lshl_add_u32 v6, v7, 4, v6", "v_lshl_add_u32 v6, v2, 5, v6", *(["s_lshl3_add_u32 s13, s8, s9", "s_lshl_b32 s13, s13, 10"] if QX else ["s_lshl_b32 s13, s3, 10"]))
    tagp(range(120, 124), True); a(f"buffer_store_dwordx4 v[120:123], v6, {WS}, s13 offen sc1"); stamp(15)
    a("v_lshrrev_b32 v6, 5, v1", "v_lshlrev_b32 v6, 12, v6", "v_and_b32 v7, 31, v1", "v_lshl_add_u32 v6, v7, 4, v6", "s_lshl_b32 s13, s5, 13", "s_lshl_b32 s14, s6, 9", "s_add_u32 s13, s13, s14")
    poll([f"buffer_load_dwordx4 v[{32+4*t}:{35+4*t}], v6, {WS}, s13 offen offset:{1024*t} sc1" for t in range(4)], range(32, 48), "v8", xm=XM&8)
    for k in range(4): a(f"v_add_f32 v{32+k}, v{32+k}, v{36+k}", f"v_add_f32 v{40+k}, v{40+k}, v{44+k}")
    for k in range(4): a(f"v_add_f32 v{32+k}, v{32+k}, v{40+k}")
    xrow("v_add_f32", [f"v{32+k}" for k in range(4)], [f"v{36+k}" for k in range(4)], which=(32,))
    a("v_cvt_pk_bf16_f32 v32, v32, v33", "v_cvt_pk_bf16_f32 v33, v34, v35", "v_lshlrev_b32 v7, 3, v7", f"ds_write_b64 v7, v[32:33] offset:{QTAB}")
    set_flag(F_Q); stamp(2)
    a("s_branch Lbulk")
    a("Lw3:")
    srd(48, P["x"], 2304)
    a("v_lshrrev_b32 v6, 5, v1", "v_and_b32 v7, 31, v1", "v_mul_u32_u24 v8, 1152, v6", "v_mul_u32_u24 v9, 36, v7", "v_add_u32 v9, v8, v9",
      "buffer_load_dwordx4 v[32:35], v9, s[48:51], 0 offen", "buffer_load_dwordx4 v[36:39], v9, s[48:51], 0 offen offset:16", "buffer_load_dword v40, v9, s[48:51], 0 offen offset:32")
    a("s_mov_b32 s11, s9" if QX else "s_and_b32 s11, s3, 7", "s_mul_i32 s11, s11, 72", "v_lshl_add_u32 v10, v7, 2, s11", "v_lshl_add_u32 v11, v10, 1, v8", "v_cmp_gt_u32 s[12:13], 18, v7", f"v_mov_b32 v9, {OOB}",
      "v_cndmask_b32 v11, v9, v11, s[12:13]", "buffer_load_dwordx2 v[104:105], v11, s[48:51], 0 offen")
    a("s_barrier")
    a("v_mul_u32_u24 v8, 3456, v6", "v_add_lshl_u32 v10, v10, v8, 2", "v_cndmask_b32 v10, v9, v10, s[12:13]")
    a("v_mul_u32_u24 v8, 320, v6", "v_lshl_add_u32 v8, v7, 2, v8", f"v_add_u32 v8, {HTAB}, v8", f"v_mov_b32 v9, {DUMP}", "v_cndmask_b32 v111, v9, v8, s[12:13]")
    a("s_waitcnt vmcnt(1)")
    for k in range(9): a(f"v_lshlrev_b32 v{44+2*k}, 16, v{32+k}", f"v_and_b32 v{45+2*k}, 0xffff0000, v{32+k}")
    a("v_add_f32 v16, v44, v45")
    for k in range(2, 18): a(f"v_add_f32 v16, v16, v{44+k}")
    rowred("v_add_f32", ["v16"]); xrow("v_add_f32", ["v16"], ["v17"], which=(16,))
    a("v_mul_f32 v16, 0x3ae38e39, v16", "v_mov_b32 v17, 0")
    for k in range(18): a(f"v_sub_f32 v18, v{44+k}, v16", "v_fmac_f32 v17, v18, v18")
    rowred("v_add_f32", ["v17"]); xrow("v_add_f32", ["v17"], ["v18"], which=(16,))
    def lnstats(m, v):
        rne(m, m); rne(v, v); a(f"v_add_f32 {v}, 0x3727c5ac, {v}"); rne(v, v); a(f"v_sqrt_f32 {v}, {v}"); rne(v, v); a(f"v_rcp_f32 {v}, {v}")
    a("v_mul_f32 v17, 0x3ae38e39, v17"); lnstats("v16", "v17")
    a("s_waitcnt vmcnt(0)", "v_lshlrev_b32 v20, 16, v104", "v_and_b32 v21, 0xffff0000, v104", "v_lshlrev_b32 v22, 16, v105", "v_and_b32 v23, 0xffff0000, v105")
    for k in range(4): a(f"v_sub_f32 v{20+k}, v{20+k}, v16"); rne(f"v{20+k}", f"v{20+k}"); a(f"v_mul_f32 v{20+k}, v{20+k}, v17"); rne(f"v{20+k}", f"v{20+k}")
    a("s_waitcnt lgkmcnt(0)", "s_add_u32 s97, s97, 1", "s_and_b32 s99, s97, s96", "v_mov_b32 v0, s99")
    spin_lds(F_M)
    poll(sum([[f"s_mov_b32 s15, {MODP+k*27648}", f"buffer_load_dwordx4 v[{32+8*k}:{35+8*k}], v10, {WS}, s15 offen sc1", f"buffer_load_dwordx4 v[{36+8*k}:{39+8*k}], v10, {WS}, s15 offen offset:2304 sc1"] for k in range(9)], []), range(32, 104), "v9", valid="s[12:13]", sleep=PSLEEP)
    stamp(14)
    for k in range(1, 9):
        for e in range(0, 8, 2): a(f"v_pk_add_f32 v[{32+e}:{33+e}], v[{32+e}:{33+e}], v[{32+8*k+e}:{33+8*k+e}]")
    for k in range(4):
        rne(f"v{32+k}", f"v{32+k}"); rne(f"v{36+k}", f"v{36+k}"); a(f"v_add_f32 v{36+k}, 1.0, v{36+k}"); rne(f"v{36+k}", f"v{36+k}")
        a(f"v_mul_f32 v{20+k}, v{20+k}, v{36+k}"); rne(f"v{20+k}", f"v{20+k}"); a(f"v_add_f32 v{20+k}, v{20+k}, v{32+k}", f"v_cvt_pk_bf16_f32 v{20+k}, v{20+k}, v{20+k}", f"ds_write_b32 v111, v{20+k} offset:{80*k}")
    set_flag(F_H)
    a("Lbulk:")
    if BULKWAIT == 1: spin_lds(F_M)
    if BULKWAIT == 2: spin_lds(F_H)
    if BULKWAIT == 3: spin_lds(F_Q)
    if PF:
        a("s_cmp_eq_u32 s69, 1", "s_cbranch_scc1 Lpf1")
        srd(52, P["wg"], 576*9216); srd(56, P["wu"], 576*9216)
        a("s_sub_u32 s11, s8, 18", "s_lshl_b32 s11, s11, 3", "s_add_u32 s11, s11, s4", "s_lshl_b32 s11, s11, 3", "v_lshrrev_b32 v6, 3, v1", "v_add_u32 v6, s11, v6",
          "s_mul_i32 s12, s9, 1152", "v_and_b32 v7, 7, v1", "v_lshl_add_u32 v7, v7, 4, s12")
        for n in range(PFN//2):
            a("v_mul_u32_u24 v8, 7282, v6", "v_lshrrev_b32 v8, 16, v8", "v_mul_u32_u24 v9, 9, v8", "v_sub_u32 v9, v6, v9", "v_mul_u32_u24 v8, 9216, v8", "v_lshl_add_u32 v8, v9, 7, v8", "v_add_u32 v8, v8, v7",
              f"buffer_load_dwordx4 v[32:35], v8, s[52:55], 0 offen{NTP}", f"s_waitcnt vmcnt({PFD})", f"buffer_load_dwordx4 v[36:39], v8, s[56:59], 0 offen{NTP}", f"s_waitcnt vmcnt({PFD})", "v_add_u32 v6, 896, v6")
        a("Lpf1:")
    srd(48, P["wo"], 4096*1152)
    a("s_lshl_b32 s11, s5, 7", "s_and_b32 s12, s7, 1", "s_lshl_b32 s12, s12, 6", "s_add_u32 s11, s11, s12", "v_lshrrev_b32 v6, 3, v2", "v_lshl_add_u32 v6, v3, 4, v6", "v_add_u32 v6, s11, v6",
      "v_mul_u32_u24 v6, 1152, v6", "v_and_b32 v7, 7, v1", "v_lshl_add_u32 v6, v7, 4, v6", "s_lshl_b32 s15, s4, 7")
    for n in range(8): a(f"buffer_load_dwordx4 v[{32+4*n}:{35+4*n}], v6, s[48:51], s15 offen{NTO}", "s_add_u32 s15, s15, 2304", f"s_waitcnt vmcnt({HDEPTH})")
    a("s_cmp_lg_u32 s4, 0", "s_cbranch_scc1 Lb1", "s_movk_i32 s15, 1024")
    for n in range(8): a(f"buffer_load_dwordx4 v[{64+4*n}:{67+4*n}], v6, s[48:51], s15 offen{NTO}", "s_add_u32 s15, s15, 2304", f"s_waitcnt vmcnt({HDEPTH})")
    a("Lb1:", "s_cmp_lg_u32 s69, 1", "s_cbranch_scc1 Lb3")
    def guload():
        a("s_cmp_lt_u32 s4, 4", "s_cselect_b32 s52, s28, s30", "s_cselect_b32 s53, s29, s31", "s_and_b32 s53, s53, 0xffff", f"s_mov_b32 s54, {576*9216}", "s_mov_b32 s55, 0x20000")
        a("v_lshrrev_b32 v6, 2, v1", "v_mul_u32_u24 v6, 9216, v6", "v_and_b32 v7, 3, v1", "v_lshl_add_u32 v6, v7, 4, v6", "s_lshl_b32 s11, s10, 6", "v_add_u32 v6, s11, v6",
          "s_and_b32 s11, s4, 3", f"s_mul_i32 s15, s11, {9*16*9216}", "s_mul_i32 s12, s4, 9216", f"s_add_u32 s12, s12, {GU}")
        if 'sh' in SKIP: a("v_add_u32 v6, 128, v6")
        for n in range(0 if 'gu' in SKIP else 9):
            a("s_mov_b32 m0, s12", "s_add_u32 s12, s12, 1024")
            for g in range(GSPL):
                if GSPL > 1:
                    m = ((1 << (64//GSPL)) - 1) << (g*64//GSPL)
                    a(f"s_mov_b32 exec_lo, {m & 0xffffffff}", f"s_mov_b32 exec_hi, {m >> 32}")
                a(f"buffer_load_dwordx4 v6, s[52:55], s15 offen{NTG} lds", f"s_waitcnt vmcnt({GD})")
            a(f"s_add_u32 s15, s15, {16*9216}")
        if GSPL > 1: a("s_mov_b64 exec, -1")
    if not GULAST and not GUS: guload()
    a("s_cmp_lt_u32 s4, 3", "s_cbranch_scc1 Lb2")
    srd(56, P["wd"], 4608*1152)
    a("s_lshl_b32 s11, s10, 5", "v_add_u32 v6, s11, v3", "v_mul_u32_u24 v6, 1152, v6", "s_sub_u32 s12, s4, 3", "s_lshl_b32 s12, s12, 8", "v_lshl_add_u32 v7, v2, 4, s12",
      "v_cmp_gt_u32 vcc, 1152, v7", "v_add_u32 v6, v6, v7", f"v_mov_b32 v8, {OOB}", "v_cndmask_b32 v6, v8, v6, vcc", "s_mov_b32 s15, 0")
    for n in range(0 if 'wd' in SKIP else 8): a(f"buffer_load_dwordx4 v[{72+4*n}:{75+4*n}], v6, s[56:59], s15 offen{NTW}", "s_add_u32 s15, s15, 4608", f"s_waitcnt vmcnt({HDEPTH})")
    a("v_lshrrev_b32 v6, 1, v3", "v_mul_u32_u24 v6, 36, v6", "v_lshrrev_b32 v7, 5, v7", "v_add_u32 v6, v6, v7", "v_mul_u32_u24 v6, 9216, v6", "v_and_b32 v7, 1, v2", "v_lshl_add_u32 v6, v7, 5, v6",
      "v_and_b32 v7, 1, v3", "v_lshl_add_u32 v6, v7, 4, v6", "s_lshl_b32 s11, s10, 6", f"s_add_u32 s11, s11, {T3}", "v_add_u32 v6, s11, v6", "v_cndmask_b32 v110, v8, v6, vcc")
    a("Lb2:")
    if GULAST == 1 and not GUS: guload()
    a("v_cmp_gt_u32 vcc, 36, v1", "s_mul_i32 s11, s4, 576", "v_lshl_add_u32 v6, v1, 4, s11", f"v_mov_b32 v8, {OOB}", "v_cndmask_b32 v111, v8, v6, vcc", f"s_mov_b32 s12, {CB}", f"s_mov_b32 s13, {SB}", "s_mov_b64 s[14:15], vcc")
    spin_lds(F_Q)
    poll([f"buffer_load_dwordx4 v[24:27], v111, {WS}, s12 offen sc1", f"buffer_load_dwordx4 v[28:31], v111, {WS}, s13 offen sc1"], range(24, 32), "v8", sleep=8, valid="s[14:15]")
    a("Lb3:")
    a("s_cmp_lg_u32 s4, 1", "s_cbranch_scc1 Lb4")
    spin_lds(F_Q)
    a("v_cmp_gt_u32 vcc, 32, v1", "v_lshlrev_b32 v6, 3, v1", f"v_mov_b32 v8, {OOB}", "v_cndmask_b32 v6, v8, v6, vcc", "s_and_b32 s11, s3, 0xfc", "s_lshl_b32 s11, s11, 6", f"s_add_u32 s12, s11, {ML}", "s_mov_b64 s[14:15], vcc")
    poll([f"buffer_load_dwordx2 v[16:17], v6, {WS}, s12 offen sc1"], [16, 17], "v8", sleep=16, valid="s[14:15]")
    a("v_mov_b32 v18, v16"); rowred("v_max_f32", ["v18"]); xrow("v_max_f32", ["v18"], ["v19"], which=(16,))
    a("v_sub_f32 v16, v16, v18", "v_mul_f32 v16, 0x3fb8aa3b, v16", "v_exp_f32 v16, v16", "v_mul_f32 v17, v16, v17")
    rowred("v_add_f32", ["v17"]); xrow("v_add_f32", ["v17"], ["v19"], which=(16,))
    a("v_rcp_f32 v17, v17", "v_lshlrev_b32 v6, 2, v1", f"v_add_u32 v7, {WTAB}, v6", f"v_add_u32 v6, {DUMP}, v6", "v_cmp_gt_u32 vcc, 32, v1", "v_cndmask_b32 v6, v6, v7, vcc", "v_mul_f32 v16, v16, v17", "ds_write_b32 v6, v16")
    set_flag(F_W)
    a("Lb4:")
    a("v_lshrrev_b32 v6, 1, v2", "v_lshlrev_b32 v6, 13, v6", "v_and_b32 v7, 1, v2", "v_lshl_add_u32 v6, v7, 5, v6", "v_lshl_add_u32 v6, v3, 4, v6",
      "v_and_b32 v7, 40, v1", "v_cmp_eq_u32 vcc, 0, v7", f"v_mov_b32 v8, {OOB}", "v_cndmask_b32 v106, v8, v6, vcc",
      "s_mul_i32 s11, s6, 36", "s_lshl_b32 s11, s11, 13", "s_lshl_b32 s12, s5, 2", "s_add_u32 s12, s12, s7", "s_lshl_b32 s12, s12, 6", "s_add_u32 s11, s11, s12", f"s_add_u32 s11, s11, {T1}",
      "s_lshl_b32 s12, s4, 15", "s_add_u32 s12, s12, s11", f"s_add_u32 s13, s11, {8<<15}", "v_lshlrev_b32 v6, 2, v1")
    a("s_waitcnt vmcnt(0) lgkmcnt(0)"); stamp(1); a("s_barrier")
    stamp(5)
    for k in range(8): a(f"ds_read2st64_b32 v[{112+2*k}:{113+2*k}], v6 offset0:{OPART//256+2*k} offset1:{OPART//256+2*k+1}")
    for k in range(0, 8, 2): a(f"s_waitcnt lgkmcnt({6-k})", f"v_pk_add_f32 v[{112+2*k}:{113+2*k}], v[{112+2*k}:{113+2*k}], v[{114+2*k}:{115+2*k}]")
    a("v_pk_add_f32 v[112:113], v[112:113], v[116:117]", "v_pk_add_f32 v[120:121], v[120:121], v[124:125]", "v_pk_add_f32 v[112:113], v[112:113], v[120:121]", "v_add_f32 v16, v112, v113", "v_cvt_pk_bf16_f32 v16, v16, v16")
    def womerge(D, T, so):
        for k in range(4): a(f"v_permlane32_swap_b32 v{D+k}, v{T+k}")
        for k in range(4): a(f"v_add_f32_dpp v{D+k}, v{T+k}, v{D+k} row_ror:8 row_mask:0xf bank_mask:0xf")
        tagp(range(D, D+4))
        a(f"buffer_store_dwordx4 v[{D}:{D+3}], v106, {WS}, {so} offen sc1")
    a("s_cmp_eq_u32 s4, 0", "s_cbranch_scc1 Lwo0")
    for n in range(8): bc2(f"v{20+(n&1)}", "v16", 2*n, "v16", 2*n+1); mkA(112+4*(n&1), f"v{20+(n&1)}"); mfma(120, 112+4*(n&1), 32+4*n, n == 0)
    womerge(120, 8, "s12")
    a("s_branch Lwod", "Lwo0:")
    for n in range(8): bc2(f"v{20+(n&1)}", "v16", 2*n, "v16", 2*n+1); mkA(112+4*(n&1), f"v{20+(n&1)}"); mfma(120, 112+4*(n&1), 32+4*n, n == 0); mfma(124, 112+4*(n&1), 64+4*n, n == 0)
    womerge(120, 8, "s12"); womerge(124, 16, "s13")
    a("Lwod:")
    stamp(6)
    a("s_cmp_eq_u32 s69, 1", "s_cbranch_scc1 Lffn", "s_cmp_eq_u32 s69, 2", "s_cbranch_scc1 Lred", "s_branch Lfin")
    a("Lred:")
    srd(48, P["out"], 2304)
    a("v_lshlrev_b32 v6, 4, v1", "s_lshl_b32 s12, s68, 13", "s_lshl_b32 s11, s4, 10", "s_add_u32 s12, s12, s11", f"s_add_u32 s12, s12, {T1}",
      "s_mul_i32 s13, s68, 9216", "s_add_u32 s13, s13, s11", f"s_add_u32 s13, s13, {T3}", "s_add_u32 s14, s13, 8192", "s_cmp_eq_u32 s4, 0", f"s_cselect_b32 s14, s14, {OOB}",
      "v_and_b32 v7, 12, v1", "v_cmp_eq_u32 vcc, 0, v7", "v_and_b32 v7, 3, v1", "v_lshlrev_b32 v7, 4, v7", "v_lshl_add_u32 v7, v3, 6, v7", "s_lshl_b32 s11, s4, 8", f"s_add_u32 s11, s11, {RPART}",
      "v_add_u32 v7, s11, v7", f"v_add_u32 v8, {DUMP}, v6", "v_cndmask_b32 v7, v8, v7, vcc", "v_lshlrev_b32 v9, 2, v2", "v_lshl_add_u32 v9, v3, 9, v9", f"v_add_u32 v9, {RPART}, v9")
    def final_sum():
        for k in range(4): a(f"ds_read2_b32 v[{40+2*k}:{41+2*k}], v9 offset0:{32*k} offset1:{32*k+16}")
        a("s_waitcnt lgkmcnt(2)", "v_pk_add_f32 v[40:41], v[40:41], v[42:43]", "s_waitcnt lgkmcnt(0)", "v_pk_add_f32 v[44:45], v[44:45], v[46:47]", "v_pk_add_f32 v[40:41], v[40:41], v[44:45]", "v_add_f32 v40, v40, v41")
        xrow("v_add_f32", ["v40"], ["v41"])
        if not FAST: rne("v40", "v40")
    if PN[0] > 1: pollp([f"buffer_load_dwordx4 v[48:51], v6, {WS}, s12 offen sc1"], range(48, 52), "v8", PN[0], 32)
    else: poll([f"buffer_load_dwordx4 v[32:35], v6, {WS}, s12 offen sc1"], range(32, 36), "v8", sleep=TSL, xm=XM&1)
    rowred("v_add_f32", [f"v{32+k}" for k in range(4)], steps=(8, 4))
    a("ds_write_b128 v7, v[32:35]", "s_waitcnt lgkmcnt(0)", "s_barrier")
    stamp(7)
    a("s_cmp_lg_u32 s4, 1", "s_cbranch_scc1 Lred2")
    final_sum()
    if FAST: a("v_fmac_f32 v107, v40, v108")
    else: a("v_mul_f32 v40, v40, v108"); rne("v40", "v40"); a("v_add_f32 v107, v107, v40")
    rne("v107", "v107")
    a("s_lshl_b32 s11, s68, 6", f"s_add_u32 s11, s11, {T2}", "v_or_b32 v40, v107, v0")
    for k in range(R2//4): a(f"buffer_store_dword v40, v111, {WS}, s11 offen sc1", f"s_add_u32 s11, s11, {4*4608}")
    a("Lred2:")
    a("s_cmp_eq_u32 s4, 0", "s_cbranch_scc1 Lred3")
    if PN[2] > 1: pollp([f"buffer_load_dwordx4 v[52:55], v6, {WS}, s13 offen sc1"], range(52, 56), "v8", PN[2], 32)
    else: poll([f"buffer_load_dwordx4 v[32:35], v6, {WS}, s13 offen sc1"], range(32, 36), "v8", xm=XM&4, sleep=T3SL)
    a("s_branch Lred4", "Lred3:")
    if PN[2] > 1: pollp([f"buffer_load_dwordx4 v[52:55], v6, {WS}, s13 offen sc1", f"buffer_load_dwordx4 v[56:59], v6, {WS}, s14 offen sc1"], range(52, 60), "v8", PN[2], 32)
    else: poll([f"buffer_load_dwordx4 v[32:35], v6, {WS}, s13 offen sc1", f"buffer_load_dwordx4 v[36:39], v6, {WS}, s14 offen sc1"], range(32, 40), "v8", xm=XM&4, sleep=T3SL)
    a("v_pk_add_f32 v[32:33], v[32:33], v[36:37]", "v_pk_add_f32 v[34:35], v[34:35], v[38:39]", "Lred4:")
    rowred("v_add_f32", [f"v{32+k}" for k in range(4)], steps=(8, 4))
    a("ds_write_b128 v7, v[32:35]", "s_waitcnt lgkmcnt(0)", "s_barrier")
    a("s_cmp_lg_u32 s4, 1", "s_cbranch_scc1 Lfin")
    final_sum()
    if FAST: a("v_fma_f32 v40, v40, v109, v107")
    else: a("v_mul_f32 v40, v40, v109"); rne("v40", "v40"); a("v_add_f32 v40, v107, v40")
    a("v_cvt_pk_bf16_f32 v40, v40, v40", "buffer_store_short v40, v110, s[48:51], 0 offen")
    a("s_cmp_lg_u32 s68, 0", "s_cbranch_scc1 Lfin", "v_mov_b32 v41, s97", f"s_mov_b32 s11, {EP}", "s_mov_b64 exec, 1", f"buffer_store_dword v41, v5, {WS}, s11 offen sc1", "s_mov_b64 exec, -1")
    a("s_branch Lfin")
    a("Lffn:")
    a("v_lshrrev_b32 v6, 2, v2", "v_lshl_add_u32 v6, v3, 3, v6", "v_lshlrev_b32 v6, 6, v6", "v_and_b32 v7, 3, v1", "v_lshl_add_u32 v6, v7, 3, v6",
      "s_bfe_u32 s11, s4, 0x10001", "s_mul_i32 s11, s11, 36864", "s_and_b32 s12, s4, 1", "s_lshl_b32 s12, s12, 5", "s_add_u32 s11, s11, s12", "s_lshr_b32 s12, s4, 2", f"s_mul_i32 s13, s12, {9*2048}",
      "s_add_u32 s11, s11, s13", f"s_add_u32 s11, s11, {GU}", "v_add_u32 v6, s11, v6")
    for n in range(9): a(f"ds_read_b64_tr_b16 v[{32+4*n}:{33+4*n}], v6 offset:{2048*n}", f"ds_read_b64_tr_b16 v[{34+4*n}:{35+4*n}], v6 offset:{2048*n+256}")
    a("v_and_b32 v7, 1, v1", "v_mul_u32_u24 v7, 1152, v7", "v_lshl_add_u32 v7, v3, 4, v7", "s_mul_i32 s13, s12, 576", f"s_add_u32 s13, s13, {H2T}", "v_add_u32 v104, s13, v7")
    a("s_mul_i32 s13, s4, 288", f"s_add_u32 s13, s13, {H2T}", "v_lshl_add_u32 v7, v1, 3, s13", "v_lshlrev_b32 v8, 3, v1", f"v_add_u32 v8, {DUMP}, v8", "v_cmp_gt_u32 s[14:15], 36, v1", "v_cndmask_b32 v105, v8, v7, s[14:15]")
    a("s_lshl_b32 s13, s4, 7", f"s_add_u32 s13, s13, {GTAB}", "v_lshlrev_b32 v7, 6, v2", "v_lshl_add_u32 v7, v3, 4, v7", "v_add_u32 v7, s13, v7", "v_lshlrev_b32 v8, 4, v1", f"v_add_u32 v8, {DUMP}, v8",
      "v_cmp_gt_u32 vcc, 2, v2", "v_cndmask_b32 v107, v8, v7, vcc")
    a("v_and_b32 v7, 7, v2", "v_lshl_add_u32 v7, v7, 2, v3", "v_lshrrev_b32 v8, 4, v7", "v_and_b32 v7, 15, v7", "v_lshlrev_b32 v7, 2, v7", "v_lshl_add_u32 v7, v8, 7, v7", "v_lshrrev_b32 v8, 3, v2",
      "v_lshl_add_u32 v7, v8, 6, v7", f"v_add_u32 v108, {GTAB}, v7")
    a("s_lshl_b32 s13, s4, 3", f"s_add_u32 s13, s13, {STAT}", "v_mov_b32 v109, s13", "s_lshl_b32 s13, s12, 5", f"s_add_u32 s13, s13, {STAT}", "v_mov_b32 v9, s13", *([f"s_and_b32 s12, s8, {R2//8-1}", f"s_mul_i32 s13, s9, {R2//8}", "s_add_u32 s12, s12, s13"] if RX else [f"s_and_b32 s12, s10, {R2-1}"]), "s_mul_i32 s12, s12, 4608", f"s_add_u32 s12, s12, {T2}")
    if SCOUT: pollx([f"buffer_load_dword v16, v111, {WS}, s12 offen sc1"], [16], "v8", valid="1", clean=False)
    if PN[1] > 1: pollp([f"buffer_load_dwordx4 v[120:123], v111, {WS}, s12 offen sc1"], range(120, 124), "v8", PN[1], 16, valid="s[14:15]")
    else: poll([f"buffer_load_dwordx4 v[16:19], v111, {WS}, s12 offen sc1"], range(16, 20), "v8", valid="s[14:15]", sleep=TSL, xm=XM&2)
    stamp(7)
    a("v_readfirstlane_b32 s11, v16")
    for k in range(4): a(f"v_subrev_f32 v{20+k}, s11, v{16+k}")
    a("v_add_f32 v10, v20, v21", "v_mul_f32 v11, v20, v20", "v_add_f32 v10, v10, v22", "v_fmac_f32 v11, v21, v21", "v_add_f32 v10, v10, v23", "v_fmac_f32 v11, v22, v22", "v_fmac_f32 v11, v23, v23",
      "v_cndmask_b32 v10, 0, v10, s[14:15]", "v_cndmask_b32 v11, 0, v11, s[14:15]")
    rowred("v_add_f32", ["v10", "v11"]); xrow("v_add_f32", ["v10", "v11"], ["v20", "v21"])
    a("v_mul_f32 v20, 0x3be38e39, v10", "v_fma_f32 v11, -v20, v10, v11", "v_add_f32 v10, s11, v20", "ds_write_b64 v109, v[10:11]", "s_waitcnt lgkmcnt(0)", "s_barrier",
      "ds_read_b128 v[112:115], v9", "ds_read_b128 v[116:119], v9 offset:16", "s_waitcnt lgkmcnt(0)",
      "v_add_f32 v10, v112, v114", "v_add_f32 v11, v116, v118", "v_add_f32 v20, v113, v115", "v_add_f32 v21, v117, v119", "v_add_f32 v10, v10, v11", "v_add_f32 v11, v20, v21", "v_mul_f32 v10, 0x3e800000, v10",
      "v_sub_f32 v112, v112, v10", "v_sub_f32 v114, v114, v10", "v_sub_f32 v116, v116, v10", "v_sub_f32 v118, v118, v10",
      "v_mul_f32 v20, v112, v112", "v_fmac_f32 v20, v114, v114", "v_fmac_f32 v20, v116, v116", "v_fmac_f32 v20, v118, v118", "v_mul_f32 v11, 0x3ae38e39, v11", "v_fmac_f32 v11, 0x3e800000, v20")
    def rne2(x, y): a(f"v_cvt_pk_bf16_f32 v{y}, v{x}, v{y}", f"v_lshlrev_b32 v{x}, 16, v{y}", f"v_and_b32 v{y}, 0xffff0000, v{y}")
    if FAST:
        a("v_add_f32 v11, 0x3727c5ac, v11", "v_rsq_f32 v11, v11")
        for k in range(4): a(f"v_sub_f32 v{16+k}, v{16+k}, v10")
        for k in range(4): a(f"v_mul_f32 v{24+k}, v{24+k}, v11")
        for k in range(4): a(f"v_fma_f32 v{16+k}, v{16+k}, v{24+k}, v{28+k}")
    else:
        lnstats("v10", "v11")
        for k in range(4): a(f"v_sub_f32 v{16+k}, v{16+k}, v10")
        rne2(16, 17); rne2(18, 19)
        for k in range(4): a(f"v_mul_f32 v{16+k}, v{16+k}, v11")
        rne2(16, 17); rne2(18, 19)
        for k in range(4): a(f"v_mul_f32 v{16+k}, v{16+k}, v{24+k}")
        rne2(16, 17); rne2(18, 19)
        for k in range(4): a(f"v_add_f32 v{16+k}, v{16+k}, v{28+k}")
    a("v_cvt_pk_bf16_f32 v16, v16, v17", "v_cvt_pk_bf16_f32 v17, v18, v19", "ds_write_b64 v105, v[16:17]", "s_waitcnt lgkmcnt(0)", "s_barrier")
    if PN[1] > 1: a("s_waitcnt vmcnt(0)")
    hb = [8, 16, 20, 24, 28, 68, 112, 116, 124]
    for n in range(9): a(f"ds_read_b128 v[{hb[n]}:{hb[n]+3}], v104 offset:{64*n}")
    for n in range(9): a(f"s_waitcnt lgkmcnt({8-n})"); mfma(120, 32+4*n, hb[n], n == 0)
    a("ds_write_b128 v107, v[120:123]", "s_waitcnt lgkmcnt(0)", "s_barrier")
    a("s_cmp_lt_u32 s4, 3", "s_cbranch_scc1 Lfin")
    a("ds_read2st64_b32 v[16:17], v108 offset0:0 offset1:1", "ds_read2st64_b32 v[18:19], v108 offset0:2 offset1:3", "s_waitcnt lgkmcnt(0)", "v_pk_add_f32 v[16:17], v[16:17], v[18:19]")
    if not FAST: rne2(16, 17)
    a("v_mul_f32 v18, v16, v16", "v_mov_b32 v19, 0xc0135761", "v_fmac_f32 v19, 0xbdd2d3e8, v18", "v_mul_f32 v18, v16, v19", "v_exp_f32 v18, v18", "v_add_f32 v18, 1.0, v18", "v_rcp_f32 v18, v18", "v_mul_f32 v16, v16, v18")
    if not FAST: rne("v16", "v16")
    a("v_mul_f32 v16, v16, v17", "v_cvt_pk_bf16_f32 v16, v16, v16")
    for n in range(8): bc2(f"v{20+(n&1)}", "v16", n, "v16", 8+n); mkA(112+4*(n&1), f"v{20+(n&1)}"); mfma(120, 112+4*(n&1), 72+4*n, n == 0)
    tagp(range(120, 124)); a(f"buffer_store_dwordx4 v[120:123], v110, {WS}, 0 offen sc1")
    a("Lfin:")
    if TS:
        stamp(10)
        a("s_cmp_eq_u32 s4, 1", "s_cbranch_scc1 Lts1", "s_cmp_eq_u32 s4, 2", "s_cbranch_scc1 Lts2", "s_cmp_eq_u32 s4, 3", "s_cbranch_scc1 Lts3", "s_endpgm")
        a("Lts1:"); a("s_waitcnt lgkmcnt(0)", "s_mov_b64 s[94:95], s[92:93]"); flush_stamps([9, 11, 13]); a("s_endpgm")
        a("Lts2:"); flush_stamps([2, 12, 15]); a("s_endpgm")
        a("Lts3:"); flush_stamps([0, 1, 5, 6, 7, 10, 14])
    a("Lend:")
    hdr = open("adaLN_cond__mha_block_cached__geglu_ffn__decode.s.ref").read().split("; Override launch")[0]
    return (hdr + f"; @launch grid=(256,1,1) block=(1024,1,1) lds={LDSN}\n.amdgcn_target \"amdgcn-amd-amdhsa--gfx950\"\n.text\n.globl {KN}\n.p2align 8\n.type {KN},@function\n{KN}:\n"
        + a.text() + f"""    s_endpgm
.section .rodata,"a"
.p2align 6
.amdhsa_kernel {KN}
  .amdhsa_next_free_vgpr 128
  .amdhsa_next_free_sgpr 102
  .amdhsa_accum_offset 128
  .amdhsa_group_segment_fixed_size 0
  .amdhsa_kernarg_size 112
  .amdhsa_user_sgpr_count 2
  .amdhsa_user_sgpr_kernarg_segment_ptr 1
  .amdhsa_system_sgpr_workgroup_id_x 1
.end_amdhsa_kernel
""")
if __name__ == "__main__":
    out = sys.argv[1]; kw = {}
    for x in sys.argv[2:]:
        k, v = x.split("="); kw[k] = eval(v)
    open(out, "w").write(gen(**kw))
```

```python
import sys
from asmlib import Asm
KN = "adaLN_cond__mha_block_cached__geglu_ffn__decode_kernel"
QP=0; T1=0xC0000; T3=0x150000; ML=0x1F2000; CB=0x1F6000; SB=0x1F7200; EP=0x1F9000; MODP=0x200000; T2=0x240000; PEX=0x300000; WSN=0x400000
OOB=0x40000000
OPART=0; RPART=4096; HTAB=6400; QTAB=7040; WTAB=7296; STAT=7424; FL=7488; H2T=7552; GTAB=9856; DUMP=10880; GU=12288; LDSN=86016
F_Q=FL; F_H=FL+4; F_M=FL+8; F_W=FL+12
def TSR(k): return {13: 100, 14: 90, 12: 74, 15: 78}.get(k, 72+2*k)
def br4(r): return int(f"{r:04b}"[::-1], 2)
def gen(RING=20, DEPTH=2, HDEPTH=1, CATCH=2, TS=False, NT=" nt", NTW=" nt", PPOS=8, PDEPTH=2, PSLEEP=2, WQD=1, BULKWAIT=0, R2=8, MWAIT=1, SKIP='', TSL=0, NTG=' nt', GD=1, GSPL=1, PF=0, PFD=1, NTP='', GULAST=0, PFN=12, GUS=0, GP0=36, GST=3, DSW=64, DEPTH2=4, LV=None, LP0=32, FMAP=0, XM=0, SCOUT=0, IFIRST=0, PRIO=0, VAL=0, PL1=7, PL2=10, PN=(1,1,1), PD=10, RX=0, T3SL=0, QX=0, KRING=20, NTO=' nt', RK=None, RKD=4, GH=0, SB_=0, HOIST=0, FAST=0, PT=0):
    a = Asm()
    def srd(r, p, n): a(f"s_mov_b32 s{r}, s{p}", f"s_and_b32 s{r+1}, s{p+1}, 0xffff", f"s_mov_b32 s{r+2}, {n}", f"s_mov_b32 s{r+3}, 0x20000")
    P = dict(x=16, K=18, V=20, wq=22, wo=24, wg=28, wu=30, wd=32, c=34, wm=36, out=38, dbg=40, ws=42)
    WS = "s[44:47]"
    def stamp(k):
        if TS: a(f"s_memrealtime s[{TSR(k)}:{TSR(k)+1}]")
    def flush_stamps(ks):
        if not TS: return
        a("s_waitcnt lgkmcnt(0)", "s_lshl_b32 s11, s2, 7", "s_add_u32 s11, s11, 0x8000000", "v_mov_b32 v4, s11", "s_mov_b64 exec, 1")
        for k in ks: a(f"v_mov_b32 v6, s{TSR(k)}", f"v_mov_b32 v7, s{TSR(k)+1}", f"global_store_dwordx2 v4, v[6:7], s[42:43] offset:{8*k}", "s_waitcnt vmcnt(0)")
        a("s_mov_b64 exec, -1")
    def spin_lds(flag, t="v4"):
        l = a.label("Lsp"); d = a.label("Lspd")
        a(f"{l}:", f"ds_read_b32 {t}, v5 offset:{flag}", "s_waitcnt lgkmcnt(0)", f"v_readfirstlane_b32 s11, {t}", "s_cmp_lg_u32 s11, 0", f"s_cbranch_scc1 {d}",
          "s_sleep 1", "s_sub_u32 s70, s70, 1", "s_cmp_gt_i32 s70, 0", f"s_cbranch_scc1 {l}", f"{d}:")
    def set_flag(flag, t="v4"):
        a("s_waitcnt lgkmcnt(0)", f"v_mov_b32 {t}, 1", f"ds_write_b32 v5, {t} offset:{flag}")
    def tagp(rs, rnd=False):
        for r in rs:
            if rnd: a(f"v_add_u32 v{r}, 0x200, v{r}")
        for r in rs: a(f"v_bfi_b32 v{r}, s96, v0, v{r}")
    def pollx(loads, rs, t, valid=None, clean=True, sleep=0):
        l = a.label("Lpx"); d = a.label("Lpxd")
        if valid: a(f"s_mov_b64 exec, {valid}")
        a(f"{l}:"); a(*loads); a("s_waitcnt vmcnt(0)")
        rs = list(rs); a(f"v_xor_b32 {t}, v{rs[0]}, v0")
        for r in rs[1:]: a(f"v_bitop3_b32 {t}, {t}, v{r}, v0 bitop3:0xf6")
        a(f"v_and_b32 {t}, s96, {t}", f"v_cmp_ne_u32 vcc, 0, {t}", "s_and_b64 exec, vcc, vcc", f"s_cbranch_scc0 {d}")
        if sleep: a(f"s_sleep {sleep}")
        a("s_sub_u32 s70, s70, 1", "s_cmp_gt_i32 s70, 0", f"s_cbranch_scc1 {l}", f"{d}:", "s_mov_b64 exec, -1")
        if clean:
            for r in rs: a(f"v_and_b32 v{r}, s98, v{r}")
    def pollp(loads, rs, t, n, dst, valid=None):
        l = a.label("Lpp"); d = a.label("Lppd"); nl = sum(x.startswith("buffer") for x in loads)
        if valid: a(f"s_mov_b64 exec, {valid}")
        for k in range(n-1): a(*loads); a(f"s_sleep {PD*2//n}")
        a(f"{l}:"); a(*loads); a(f"s_waitcnt vmcnt({nl*(n-1)})")
        rs = list(rs); a(f"v_xor_b32 {t}, v{rs[0]}, v0")
        for r in rs[1:]: a(f"v_bitop3_b32 {t}, {t}, v{r}, v0 bitop3:0xf6")
        a(f"v_and_b32 {t}, s96, {t}", f"v_cmp_ne_u32 vcc, 0, {t}", "s_and_b64 exec, vcc, vcc", f"s_cbranch_scc0 {d}")
        a("s_sub_u32 s70, s70, 1", "s_cmp_gt_i32 s70, 0", f"s_cbranch_scc1 {l}", f"{d}:", "s_mov_b64 exec, -1")
        for k, r in enumerate(rs): a(f"v_and_b32 v{dst+k}, s98, v{r}")
    def poll(loads, rs, t, sleep=0, first=True, valid=None, clean=True, xm=0):
        if xm: return pollx(loads, rs, t, valid, clean, sleep)
        l = a.label("Lpo"); d = a.label("Lpod"); c = a.label("Lpoc")
        if not first: a(f"s_branch {c}")
        a(f"{l}:"); a(*loads); a("s_waitcnt vmcnt(0)"); a(f"{c}:")
        rs = list(rs); a(f"v_xor_b32 {t}, v{rs[0]}, v0")
        for r in rs[1:]: a(f"v_bitop3_b32 {t}, {t}, v{r}, v0 bitop3:0xf6")
        a(f"v_and_b32 {t}, s96, {t}", f"v_cmp_ne_u32 vcc, 0, {t}")
        if valid: a(f"s_and_b64 vcc, vcc, {valid}", f"s_cbranch_scc0 {d}")
        else: a(f"s_cbranch_vccz {d}")
        if sleep: a(f"s_sleep {sleep}")
        a("s_sub_u32 s70, s70, 1", "s_cmp_gt_i32 s70, 0", f"s_cbranch_scc1 {l}", f"{d}:")
        if clean:
            for r in rs: a(f"v_and_b32 v{r}, s98, v{r}")
    def rne(d, s): a(f"v_cvt_pk_bf16_f32 {d}, {s}, {s}", f"v_and_b32 {d}, 0xffff0000, {d}")
    def rowred(op, rs, steps=(8,4,2,1)):
        for st in steps:
            for r in rs: a(f"{op}_dpp {r}, {r}, {r} row_ror:{st} row_mask:0xf bank_mask:0xf")
    def xrow(op, rs, ts, which=(16,32)):
        for wd in which:
            for r, t in zip(rs, ts): a(f"v_mov_b32 {t}, {r}")
            for r, t in zip(rs, ts): a(f"v_permlane{wd}_swap_b32 {r}, {t}")
            for r, t in zip(rs, ts): a(f"{op} {r}, {r}, {t}")
    def masks():
        a("v_and_b32 v4, 7, v1", "v_and_b32 v6, 1, v1", "v_lshlrev_b32 v6, 4, v6", "v_mov_b32 v7, 0xffff", "v_lshlrev_b32 v6, v6, v7", "v_lshrrev_b32 v4, 1, v4")
        for r in range(4): a(f"v_cmp_eq_u32 vcc, {r}, v4", f"v_cndmask_b32 v{12+r}, 0, v6, vcc")
    def mkA(A, pp):
        for r in range(4): a(f"v_and_b32 v{A+r}, {pp}, v{12+r}")
    def bc2(pp, lo, nlo, hi, nhi):
        a(f"v_mov_b32_dpp {pp}, {lo} row_newbcast:{nlo} row_mask:0xf bank_mask:0x3", f"v_mov_b32_dpp {pp}, {hi} row_newbcast:{nhi} row_mask:0xf bank_mask:0xc")
    def mfma(D, A, B, first): a(f"v_mfma_f32_16x16x32_bf16 v[{D}:{D+3}], v[{A}:{A+3}], v[{B}:{B+3}], " + ("0" if first else f"v[{D}:{D+3}]"))
    a("s_cmp_ge_u32 s2, 256", "s_cbranch_scc1 Lend")
    stamp(0)
    a("s_load_dwordx16 s[16:31], s[0:1], 0", "s_load_dwordx8 s[32:39], s[0:1], 64", "s_load_dwordx4 s[40:43], s[0:1], 96")
    a("v_lshrrev_b32 v2, 6, v0", "v_and_b32 v1, 63, v0", "v_mov_b32 v5, 0", "v_readfirstlane_b32 s4, v2")
    a("s_and_b32 s9, s2, 7", "s_lshr_b32 s8, s2, 3", "s_lshl_b32 s3, s9, 5", "s_or_b32 s3, s3, s8")
    a("s_lshr_b32 s5, s3, 3", "s_bfe_u32 s6, s3, 0x10002", "s_and_b32 s7, s3, 3", "s_mov_b32 s70, 0x100000")
    a("v_and_b32 v2, 15, v1", "v_lshrrev_b32 v3, 4, v1")
    if FMAP:
        pk = lambda q: sum(v << (4*i) for i, v in enumerate(q))
        ce, co, c5 = pk([1,3,5,7,0,2,4,6,8]), pk([0,2,4,8,6,1,3,5,7]), pk([0,2,6,8,4,1,3,5,7])
        a("s_bitcmp1_b32 s9, 0", f"s_cselect_b32 s12, {co & 0xffffffff}, {ce & 0xffffffff}".replace(f", {ce & 0xffffffff}", ", s70"), f"s_cselect_b32 s13, {co >> 32}, {ce >> 32}", "s_cbranch_scc1 Lfm", f"s_mov_b32 s12, {ce & 0xffffffff}", "Lfm:",
          "s_cmp_eq_u32 s9, 5", f"s_cselect_b32 s12, {c5 & 0xffffffff}, s12", "s_and_b32 s10, s8, 1", "s_mul_i32 s10, s10, 9", "s_lshr_b32 s11, s8, 1", "s_add_u32 s10, s10, s11",
          "s_lshr_b32 s11, s10, 1", "s_lshl_b32 s11, s11, 2", "s_lshr_b64 s[12:13], s[12:13], s11", "s_and_b32 s12, s12, 15", "s_mul_i32 s11, s9, 9", "s_add_u32 s12, s12, s11", "s_and_b32 s10, s10, 1", "s_lshl1_add_u32 s10, s12, s10")
    else: a("s_mul_i32 s10, s9, 18", "s_add_u32 s10, s10, s8")
    masks()
    a("s_waitcnt lgkmcnt(0)", f"s_add_u32 s12, s42, {EP}", "s_addc_u32 s13, s43, 0", "s_load_dword s97, s[12:13], 0", "s_movk_i32 s96, 0x3ff", "s_mov_b32 s98, 0xfffffc00")
    srd(44, P["ws"], WSN)
    a("s_cmp_lt_u32 s4, 8", "s_cbranch_scc1 Lhelper")
    a("s_sub_u32 s4, s4, 8")
    if PRIO: a(f"s_setprio {PRIO}")
    srd(48, P["K"], 0x4000000); srd(52, P["V"], 0x4000000)
    a("s_lshl_b32 s11, s6, 5", "s_add_u32 s11, s11, s5", "s_lshl_b32 s11, s11, 20", "s_lshl_b32 s12, s4, 15", "s_add_u32 s11, s11, s12",
      "s_lshl_b32 s12, s7, 18", "s_add_u32 s12, s12, s11", "s_xor_b32 s13, s7, 1", "s_lshl_b32 s13, s13, 18", "s_add_u32 s13, s13, s11")
    a("v_lshl_add_u32 v6, v1, 4, s12")
    a("v_bfe_u32 v4, v1, 3, 1", "v_lshl_add_u32 v4, v4, 2, v3", "v_lshlrev_b32 v4, 8, v4", "v_and_b32 v7, 7, v1", "v_lshl_add_u32 v4, v7, 4, v4",
      "s_and_b32 s14, s7, 1", "s_lshl_b32 s14, s14, 7", "v_add_u32 v4, s14, v4", "v_add_u32 v7, s12, v4", "v_add_u32 v30, s13, v4")
    if VAL: a("s_min_u32 s14, s12, s13", "s_max_u32 s13, s12, s13", "v_add_u32 v7, s14, v4", "v_add_u32 v30, s13, v4")
    a("s_mov_b32 s64, 0xcccccccc", "s_mov_b32 s65, 0xcccccccc", "s_mov_b32 s66, 0xaaaaaaaa", "s_mov_b32 s67, 0xaaaaaaaa")
    if not SB_: a("s_barrier")
    ops = []
    slots = {}; freed = set()
    def freeslot(i):
        busy = {v for k, v in slots.items() if k not in freed}
        c = [x for x in range(KRING if i < 32 else RING) if x not in busy]
        return (c[-1] if i < 32 else c[0]) if c else None
    def slot(i): return 32 + 4*slots[i]
    def issue(i):
        slots[i] = freeslot(i); r = slot(i)
        if i < 32: a(f"s_movk_i32 s15, {i*1024}", f"buffer_load_dwordx4 v[{r}:{r+3}], v6, s[48:51], s15 offen{NT}")
        else:
            n = (i-32) % 16; v = "v7" if i < 48 else "v30"
            a(f"s_movk_i32 s15, {n*2048}", f"buffer_load_dwordx4 v[{r}:{r+3}], {v}, s[52:55], s15 offen{NT}")
        ops.append(i)
    done = [0]
    def waitn(n):
        if len(ops) - n > done[0]: done[0] = len(ops) - n; a(f"s_waitcnt vmcnt({n})")
    def wait_for(tag): waitn(len(ops) - 1 - ops.index(tag))
    def procK(i):
        wait_for(i+1); r0 = slot(i); r1 = slot(i+1)
        for k in range(4):
            a(f"v_dot2_f32_bf16 v20, v{r0+k}, v{8+k}, " + ("0" if k == 0 else "v20"), f"v_dot2_f32_bf16 v21, v{r1+k}, v{8+k}, " + ("0" if k == 0 else "v21"))
        freed.update((i, i+1)); j = i % 16; T = 22 + (j >> 1 & 1)
        a(f"v_add_f32_dpp v{T}, v20, v20 row_ror:8 row_mask:0xf bank_mask:0x3", f"v_add_f32_dpp v{T}, v21, v21 row_ror:8 row_mask:0xf bank_mask:0xc")
        if j & 2:
            U = 24 + (j >> 2 & 1)
            a(f"v_add_f32_dpp v{U}, v22, v22 row_half_mirror row_mask:0xf bank_mask:0x5", f"v_add_f32_dpp v{U}, v23, v23 row_half_mirror row_mask:0xf bank_mask:0xa")
            if j & 4:
                W = 26 + (j >> 3 & 1)
                a("v_cndmask_b32 v28, v24, v25, s[64:65]", "v_cndmask_b32 v29, v25, v24, s[64:65]", f"v_add_f32_dpp v{W}, v29, v28 quad_perm:[2,3,0,1] row_mask:0xf bank_mask:0xf")
                if j & 8:
                    a("v_cndmask_b32 v28, v26, v27, s[66:67]", "v_cndmask_b32 v29, v27, v26, s[66:67]", f"v_add_f32_dpp v{16+i//16}, v29, v28 quad_perm:[1,0,3,2] row_mask:0xf bank_mask:0xf")
    def softmax():
        a("v_cvt_pk_bf16_f32 v20, v16, v17", "s_mov_b32 s11, 0x3db504f3", "v_lshlrev_b32 v16, 16, v20", "v_and_b32 v17, 0xffff0000, v20",
          "v_mul_f32 v16, s11, v16", "v_mul_f32 v17, s11, v17", "v_cvt_pk_bf16_f32 v20, v16, v17", "v_lshlrev_b32 v16, 16, v20", "v_and_b32 v17, 0xffff0000, v20",
          "v_max_f32 v22, v16, v17")
        rowred("v_max_f32", ["v22"]); xrow("v_max_f32", ["v22"], ["v21"])
        a("s_mov_b32 s11, 0x3fb8aa3b", "v_sub_f32 v16, v16, v22", "v_sub_f32 v17, v17, v22", "v_mul_f32 v16, s11, v16", "v_mul_f32 v17, s11, v17",
          "v_exp_f32 v16, v16", "v_exp_f32 v17, v17", "v_add_f32 v23, v16, v17", "v_cvt_pk_bf16_f32 v16, v16, v16", "v_cvt_pk_bf16_f32 v17, v17, v17",
          "s_mov_b32 s14, 0xffff", "v_bfi_b32 v20, s14, v0, v16", "v_bfi_b32 v21, s14, v0, v17")
        a("s_lshl_b32 s11, s3, 3", "s_add_u32 s11, s11, s4", "s_lshl_b32 s12, s11, 9", f"s_add_u32 s12, s12, {PEX}", "v_lshlrev_b32 v31, 3, v1",
          f"buffer_store_dwordx2 v[20:21], v31, {WS}, s12 offen sc1"); ops.append("pst")
        a("s_xor_b32 s13, s12, 0x1000")
        rowred("v_add_f32", ["v23"]); xrow("v_add_f32", ["v23"], ["v25"]); tagp([22, 23])
        a("v_cmp_eq_u32 vcc, 0, v1", f"v_mov_b32 v24, {OOB}", "v_cndmask_b32 v24, v24, v5, vcc", "s_lshl_b32 s11, s11, 3", f"s_add_u32 s11, s11, {ML}",
          f"buffer_store_dwordx2 v[22:23], v24, {WS}, s11 offen sc1"); ops.append("mlst")
        if RK:
            a("v_and_b32 v24, 7, v1", "v_lshlrev_b32 v24, 5, v24", "v_bfe_u32 v25, v1, 3, 1", "v_lshl_add_u32 v25, v25, 4, s8", "v_and_b32 v25, 31, v25", "v_add_u32 v24, v24, v25",
              "v_lshl_add_u32 v24, v24, 3, s4", "v_lshlrev_b32 v24, 3, v24", "v_cmp_gt_u32 vcc, 16, v1", f"v_mov_b32 v25, {OOB}", "v_cndmask_b32 v24, v25, v24, vcc", f"s_mov_b32 s11, {ML}",
              f"buffer_load_dword v29, v24, {WS}, s11 offen sc1"); ops.append("rk")
    def procV(i):
        n = (i-32) % 16; par = i >= 48; D = 124 if par else 120; A = 112 + 4*(i & 1); u = n >> 3; n1 = n & 7
        src = f"v{(18 if par else 16)+u}"
        if i == (32 if VAL else 48):
            wait_for("pld")
            poll([f"buffer_load_dwordx2 v[26:27], v31, {WS}, s13 offen sc1"], [26, 27], "v28", first=False, clean=False)
            a("s_mov_b32 s14, 0x03020302", "v_perm_b32 v18, v26, v26, s14", "v_perm_b32 v19, v27, v27, s14")
            if VAL:
                l = a.label("Lsw"); a("s_bitcmp0_b32 s7, 0", f"s_cbranch_scc1 {l}", "v_swap_b32 v16, v18", "v_swap_b32 v17, v19", f"{l}:", "s_nop 1")
        bc2(f"v{20+(i&1)}", src, br4(2*n1), src, br4(2*n1+1)); mkA(A, f"v{20+(i&1)}")
        wait_for(i); mfma(D, A, slot(i), n == 0); freed.add(i)
    issued = 0
    for i in range(KRING):
        issue(i); issued += 1
        if issued == SB_: a("s_barrier")
        waitn(PDEPTH)
    a("s_waitcnt lgkmcnt(0)", "s_add_u32 s97, s97, 1", "s_and_b32 s99, s97, s96", "v_mov_b32 v0, s99")
    stamp(8)
    spin_lds(F_Q)
    a(f"v_lshlrev_b32 v4, 4, v2", f"ds_read_b128 v[8:11], v4 offset:{QTAB}", "s_waitcnt lgkmcnt(0)")
    proc = 0
    if LV:
        a("s_and_b32 s63, s7, 1", f"s_mul_i32 s63, s63, {LV[1]}", f"s_add_u32 s63, s63, {LV[0]}", "s_and_b32 s11, s10, 14", "s_cmp_eq_u32 s11, 6",
          f"s_cselect_b32 s11, {LV[2]+LV[3]}, {LV[3]}", "s_cmp_lt_u32 s8, 18", "s_cselect_b32 s11, s11, 0", "s_add_u32 s63, s63, s11")
    rkon = [False]
    def dep(i): return (DEPTH if i < DSW else DEPTH2) + (1 if LV and i >= LP0 else 0) + (2 if rkon[0] else 0)
    def endprep():
        spin_lds(F_W)
        a(f"s_and_b32 s11, s7, {2 if VAL else 3}", "s_lshl_b32 s11, s11, 3", "s_add_u32 s11, s11, s4", "s_lshl_b32 s11, s11, 2", "v_mov_b32 v4, s11", "v_xor_b32 v29, 32, v4",
          f"ds_read_b32 v26, v4 offset:{WTAB}", f"ds_read_b32 v27, v29 offset:{WTAB}")
        a("v_lshrrev_b32 v22, 3, v2", "v_lshrrev_b32 v23, 1, v3", "v_cmp_eq_u32 vcc, v22, v23", "v_and_b32 v23, 7, v1", "v_lshlrev_b32 v23, 5, v23", "v_and_b32 v24, 1, v3",
          "v_lshl_add_u32 v23, v24, 4, v23", "v_lshl_add_u32 v23, v22, 8, v23", "s_lshl_b32 s11, s4, 9", f"s_add_u32 s11, s11, {OPART}", "v_add_u32 v23, s11, v23",
          "v_lshlrev_b32 v24, 4, v1", f"v_add_u32 v24, {DUMP}, v24", "v_cndmask_b32 v23, v24, v23, vcc", "s_waitcnt lgkmcnt(0)")
    ism = [0]
    def procsome(lag):
        nonlocal proc
        cnt = 0
        while proc < 64 and cnt < CATCH and (proc < issued - lag - (1 if proc < 32 else 0) or issued == 64):
            if VAL and proc == 32 and issued < min(ism[0] + PL2, 32 + RING): break
            if proc < 32:
                procK(proc); proc += 2; cnt += 2
                if proc == 32: softmax(); stamp(3); ism[0] = issued
            else:
                if proc == HOIST: endprep()
                procV(proc); proc += 1; cnt += 1
    while proc < 64:
        if not IFIRST or issued == 64 or freeslot(issued) is None: procsome(dep(issued))
        if issued < 64 and freeslot(issued) is not None:
            issue(issued); issued += 1
            if GUS and issued == 33:
                a("s_cmp_lt_u32 s4, 4", "s_cselect_b32 s56, s28, s30", "s_cselect_b32 s57, s29, s31", "s_and_b32 s57, s57, 0xffff", "s_cmp_lt_u32 s8, 18", f"s_cselect_b32 s58, {576*9216}, 0", "s_mov_b32 s59, 0x20000",
                  "s_lshl_b32 s60, s10, 6", "s_and_b32 s61, s4, 3", f"s_mul_i32 s62, s61, {16*9216}", "s_add_u32 s60, s60, s62",
                  "v_lshrrev_b32 v6, 2, v1", "v_mul_u32_u24 v6, 9216, v6", "v_and_b32 v4, 3, v1", "v_lshl_add_u32 v6, v4, 4, v6", "v_add_u32 v6, s60, v6",
                  "s_lshr_b32 s62, s4, 2", "s_mul_i32 s62, s62, 36864", "s_lshl_b32 s61, s61, 10", "s_add_u32 s61, s61, s62", f"s_add_u32 s61, s61, {GU}", "s_mov_b32 s62, 0")
            if GUS and GH:
                for n in [n for n in range(18) if GP0 + (n*GST)//2 == issued]:
                    a("s_mov_b32 m0, s61", f"s_mov_b32 exec_{'lo' if n & 1 else 'hi'}, 0", f"buffer_load_dwordx4 v6, s[56:59], s62 offen{NTG} lds", "s_mov_b64 exec, -1"); ops.append(f"gu{n}")
                    if n & 1: a("s_add_u32 s61, s61, 4096", f"s_add_u32 s62, s62, {64*9216}")
            elif GUS and issued >= GP0 and (issued - GP0) % GST == 0 and (issued - GP0)//GST < 9:
                a("s_mov_b32 m0, s61", "s_add_u32 s61, s61, 4096", f"buffer_load_dwordx4 v6, s[56:59], s62 offen{NTG} lds", f"s_add_u32 s62, s62, {64*9216}"); ops.append(f"gu{issued}")
            if IFIRST: procsome(dep(issued) + 1)
            waitn(dep(issued))
            if rkon[0]:
                l = a.label("Lrk"); th = br4(issued & 15)
                a(f"s_cmp_gt_i32 s63, {th+16}", f"s_cbranch_scc1 {l}", f"s_waitcnt vmcnt({dep(issued)-1})", f"s_cmp_gt_i32 s63, {th}", f"s_cbranch_scc1 {l}", f"s_waitcnt vmcnt({dep(issued)-2})", f"{l}:")
            if RK and not rkon[0] and "rk" in ops and issued >= ism[0] + RKD:
                wait_for("rk"); rkon[0] = True
                a("v_xor_b32 v29, v29, v0", "v_and_b32 v29, s96, v29", "v_cmp_eq_u32 vcc, 0, v29", "s_and_b32 s63, vcc_lo, 0xffff", "s_bcnt1_i32_b32 s63, s63", f"s_mul_i32 s63, s63, {RK[0]}", f"s_add_i32 s63, s63, {RK[1]}")
            if LV and issued >= LP0:
                l = a.label("Llv"); a(f"s_cmp_gt_u32 s63, {br4(issued & 15) >> 1}", f"s_cbranch_scc1 {l}", f"s_waitcnt vmcnt({dep(issued)-1})", f"{l}:")
        if "mlst" in ops and "pld" not in ops and (issued >= min(ism[0] + PL1, 31 + RING) if VAL else proc >= 32 + PPOS):
            a(f"buffer_load_dwordx2 v[26:27], v31, {WS}, s13 offen sc1"); ops.append("pld")
    if not HOIST: endprep()
    for r in range(4): a(f"v_mul_f32 v{120+r}, v26, v{120+r}")
    for r in range(4): a(f"v_fmac_f32 v{120+r}, v27, v{124+r}")
    a("ds_write_b128 v23, v[120:123]", "s_waitcnt lgkmcnt(0)")
    stamp(4)
    a("s_barrier")
    if TS:
        a("s_cmp_lg_u32 s4, 0", "s_cbranch_scc1 Lend"); flush_stamps([3, 4, 8])
    a("s_endpgm")
    a("Lhelper:")
    for r in range(104, 112): a(f"v_mov_b32 v{r}, {OOB}")
    a("s_mul_i32 s68, s9, 9", "s_add_u32 s68, s68, s8", "s_sub_u32 s68, s68, 18")
    a("s_mov_b32 s69, 0", "s_cmp_lt_u32 s8, 27", "s_cselect_b32 s69, 2, 0", "s_cmp_lt_u32 s8, 18", "s_cselect_b32 s69, 1, s69")
    a("s_cmp_ge_u32 s68, 36", "s_cselect_b32 s71, 1, 0")
    a("s_cmp_eq_u32 s4, 1", "s_cbranch_scc1 Lw1", "s_cmp_eq_u32 s4, 2", "s_cbranch_scc1 Lw2", "s_cmp_eq_u32 s4, 3", "s_cbranch_scc1 Lw3")
    if PT:
        a("s_cmp_lg_u32 s4, 4", "s_cbranch_scc1 Lpt", "s_mov_b64 exec, 15", "v_lshlrev_b32 v10, 21, v1", f"v_min_u32 v11, {4096*1152-4}, v10", f"v_min_u32 v10, {576*9216-4}, v10",
          "s_lshl_b32 s11, s6, 5", "s_add_u32 s11, s11, s5", "s_lshl_b32 s11, s11, 20", "v_lshl_add_u32 v16, v1, 18, s11", "v_lshlrev_b32 v17, 9, v1")
        if PT & 1: a("global_load_dword v18, v17, s[38:39]")
        if PT & 2: a("global_load_dword v19, v16, s[20:21] nt")
        if PT & 4: a("global_load_dword v20, v11, s[24:25]", "global_load_dword v21, v10, s[28:29]", "global_load_dword v22, v10, s[30:31]", "global_load_dword v23, v10, s[32:33]")
        a("s_mov_b64 exec, -1", "Lpt:")
    a("v_mov_b32 v6, 0", "v_mov_b32 v7, 0", "v_mov_b32 v8, 0", "v_mov_b32 v9, 0", f"ds_write_b128 v5, v[6:9] offset:{FL}", "s_waitcnt lgkmcnt(0)", "s_add_u32 s97, s97, 1", "s_and_b32 s99, s97, s96", "v_mov_b32 v0, s99", "s_barrier", "s_branch Lbulk")
    a("Lw1:")
    srd(48, P["wm"], 576*6912); srd(52, P["c"], 2304); srd(60, P["x"], 2304)
    a("s_mul_i32 s11, s3, 7282", "s_lshr_b32 s11, s11, 16", "s_mul_i32 s12, s11, 9", "s_sub_u32 s12, s3, s12")
    a("s_cmp_lt_u32 s3, 243", "s_cbranch_scc1 Lw1a", "s_waitcnt lgkmcnt(0)", "s_add_u32 s97, s97, 1", "s_and_b32 s99, s97, s96", "v_mov_b32 v0, s99", "s_barrier", "s_branch Lw1clr", "Lw1a:")
    a("s_lshl_b32 s13, s12, 6", "v_lshl_add_u32 v6, v2, 2, v3", "v_add_u32 v6, s13, v6", "v_lshlrev_b32 v6, 1, v6",
      "buffer_load_ushort v16, v6, s[52:55], 0 offen", "buffer_load_ushort v17, v6, s[52:55], 0 offen offset:1152")
    a("v_add_u32 v6, s13, v3", "v_mul_u32_u24 v6, 6912, v6", "s_lshl_b32 s14, s11, 8", "v_lshl_add_u32 v6, v2, 4, v6", "v_add_u32 v6, s14, v6")
    for n in range(16): a(f"s_mov_b32 s15, {n*4*6912}", f"buffer_load_dwordx4 v[{32+4*n}:{35+4*n}], v6, s[48:51], s15 offen{NTW}")
    a("s_barrier", "s_waitcnt lgkmcnt(0)", "s_add_u32 s97, s97, 1", "s_and_b32 s99, s97, s96", "v_mov_b32 v0, s99")
    a("s_waitcnt vmcnt(16)")
    for r in (16, 17):
        a(f"v_lshlrev_b32 v{r}, 16, v{r}", f"v_mul_f32 v18, 0xbfb8aa3b, v{r}", "v_exp_f32 v18, v18", "v_add_f32 v18, 1.0, v18", "v_rcp_f32 v18, v18", f"v_mul_f32 v{r}, v{r}, v18", f"v_cvt_pk_bf16_f32 v{r}, v{r}, v{r}")
    for n in range(16):
        bc2(f"v{20+(n&1)}", "v16", n, "v17", n); mkA(112+4*(n&1), f"v{20+(n&1)}"); a(f"s_waitcnt vmcnt({15-n})"); mfma(120, 112+4*(n&1), 32+4*n, n == 0)
    a("v_lshrrev_b32 v6, 1, v3", "v_mul_u32_u24 v6, 13824, v6", "v_and_b32 v7, 1, v3", "v_lshl_add_u32 v6, v7, 4, v6", "v_lshl_add_u32 v6, v2, 5, v6",
      "s_mul_i32 s13, s12, 27648", "s_lshl_b32 s14, s11, 9", "s_add_u32 s13, s13, s14", f"s_add_u32 s13, s13, {MODP}")
    tagp(range(120, 124), True)
    a(f"buffer_store_dwordx4 v[120:123], v6, {WS}, s13 offen sc1"); stamp(13)
    if MWAIT: a("s_waitcnt vmcnt(0)")
    a("Lw1clr:"); set_flag(F_M); stamp(9)
    a("s_cmp_lg_u32 s69, 2", "s_cbranch_scc1 Lbulk")
    spin_lds(F_H)
    a("s_mul_i32 s12, s71, 36", "s_sub_u32 s12, s68, s12", "s_lshl_b32 s12, s12, 4")
    a("v_mul_u32_u24 v6, 576, v3", "v_add3_u32 v6, v6, v2, s12", "v_lshlrev_b32 v6, 2, v6", "s_mul_i32 s13, s71, 13824", f"s_add_u32 s13, s13, {MODP+1152*4}")
    a("s_mul_i32 s14, s71, 576", "s_add_u32 s14, s14, s12", "v_add_u32 v7, s14, v2", "v_lshlrev_b32 v8, 1, v7", "buffer_load_ushort v107, v8, s[60:63], 0 offen")
    poll(sum([[f"s_add_u32 s14, s13, {27648*k}", f"buffer_load_dword v{32+k}, v6, {WS}, s14 offen sc1"] for k in range(9)], []), range(32, 41), "v9", sleep=8)
    for k in range(1, 9): a(f"v_add_f32 v32, v32, v{32+k}")
    rne("v32", "v32"); a("v_add_f32 v33, 1.0, v32"); rne("v33", "v33")
    a("v_cmp_eq_u32 vcc, 2, v3", "v_cndmask_b32 v32, v32, v33, vcc", f"v_mov_b32 v9, {OOB}", f"v_mov_b32 v10, {CB}", "v_cndmask_b32 v9, v9, v10, vcc",
      "v_cmp_eq_u32 vcc, 1, v3", f"v_mov_b32 v10, {SB}", "v_cndmask_b32 v9, v9, v10, vcc", "v_lshl_add_u32 v9, v7, 2, v9", "v_or_b32 v33, v32, v0", f"buffer_store_dword v33, v9, {WS}, 0 offen sc1",
      "v_lshlrev_b32 v10, 2, v2", "v_add_u32 v11, 192, v10", "ds_bpermute_b32 v108, v10, v32", "ds_bpermute_b32 v109, v11, v32", "v_lshlrev_b32 v107, 16, v107",
      "v_cmp_gt_u32 vcc, 16, v1", f"v_mov_b32 v9, {OOB}", "v_cndmask_b32 v110, v9, v8, vcc", "v_mul_u32_u24 v111, 4608, v3", "v_add_u32 v111, v111, v10", "s_waitcnt lgkmcnt(0)", "s_branch Lbulk")
    a("Lw2:")
    srd(48, P["wq"], 576*8192)
    a("s_mov_b32 s11, s9" if QX else "s_and_b32 s11, s3, 7", "s_mul_i32 s11, s11, 72", "v_add_u32 v6, s11, v3", "v_lshlrev_b32 v6, 13, v6", f"s_lshl_b32 s12, {'s8' if QX else 's5'}, 8", "v_lshl_add_u32 v6, v2, 4, v6", "v_add_u32 v6, s12, v6")
    for n in range(18):
        if WQD < 18 and n == 0: a("s_barrier")
        a(f"s_mov_b32 s15, {n*32768}", f"buffer_load_dwordx4 v[{32+4*n}:{35+4*n}], v6, s[48:51], s15 offen{NTW}")
        if WQD < 18: a(f"s_waitcnt vmcnt({WQD})")
    if WQD >= 18: a("s_barrier")
    a("v_lshrrev_b32 v6, 3, v2", "v_lshl_add_u32 v6, v6, 2, v3", "v_mul_u32_u24 v6, 80, v6")
    a("s_waitcnt lgkmcnt(0)", "s_add_u32 s97, s97, 1", "s_and_b32 s99, s97, s96", "v_mov_b32 v0, s99")
    if TS: a("s_waitcnt vmcnt(0)"); stamp(12)
    spin_lds(F_H)
    hr = [16, 20, 24, 104, 108]
    for k in range(5): a(f"ds_read_b128 v[{hr[k]}:{hr[k]+3}], v6 offset:{HTAB+16*k}")
    a("s_waitcnt vmcnt(0) lgkmcnt(0)")
    for n in range(18): mkA(112+4*(n&1), f"v{hr[n>>2]+(n&3)}"); mfma(120, 112+4*(n&1), 32+4*n, n == 0)
    a("v_lshrrev_b32 v6, 1, v3", "v_lshlrev_b32 v6, 9, v6", "v_and_b32 v7, 1, v3", "v_lshl_add_u32 v6, v7, 4, v6", "v_lshl_add_u32 v6, v2, 5, v6", *(["s_lshl3_add_u32 s13, s8, s9", "s_lshl_b32 s13, s13, 10"] if QX else ["s_lshl_b32 s13, s3, 10"]))
    tagp(range(120, 124), True); a(f"buffer_store_dwordx4 v[120:123], v6, {WS}, s13 offen sc1"); stamp(15)
    a("v_lshrrev_b32 v6, 5, v1", "v_lshlrev_b32 v6, 12, v6", "v_and_b32 v7, 31, v1", "v_lshl_add_u32 v6, v7, 4, v6", "s_lshl_b32 s13, s5, 13", "s_lshl_b32 s14, s6, 9", "s_add_u32 s13, s13, s14")
    poll([f"buffer_load_dwordx4 v[{32+4*t}:{35+4*t}], v6, {WS}, s13 offen offset:{1024*t} sc1" for t in range(4)], range(32, 48), "v8", xm=XM&8)
    for k in range(4): a(f"v_add_f32 v{32+k}, v{32+k}, v{36+k}", f"v_add_f32 v{40+k}, v{40+k}, v{44+k}")
    for k in range(4): a(f"v_add_f32 v{32+k}, v{32+k}, v{40+k}")
    xrow("v_add_f32", [f"v{32+k}" for k in range(4)], [f"v{36+k}" for k in range(4)], which=(32,))
    a("v_cvt_pk_bf16_f32 v32, v32, v33", "v_cvt_pk_bf16_f32 v33, v34, v35", "v_lshlrev_b32 v7, 3, v7", f"ds_write_b64 v7, v[32:33] offset:{QTAB}")
    set_flag(F_Q); stamp(2)
    a("s_branch Lbulk")
    a("Lw3:")
    srd(48, P["x"], 2304)
    a("v_lshrrev_b32 v6, 5, v1", "v_and_b32 v7, 31, v1", "v_mul_u32_u24 v8, 1152, v6", "v_mul_u32_u24 v9, 36, v7", "v_add_u32 v9, v8, v9",
      "buffer_load_dwordx4 v[32:35], v9, s[48:51], 0 offen", "buffer_load_dwordx4 v[36:39], v9, s[48:51], 0 offen offset:16", "buffer_load_dword v40, v9, s[48:51], 0 offen offset:32")
    a("s_mov_b32 s11, s9" if QX else "s_and_b32 s11, s3, 7", "s_mul_i32 s11, s11, 72", "v_lshl_add_u32 v10, v7, 2, s11", "v_lshl_add_u32 v11, v10, 1, v8", "v_cmp_gt_u32 s[12:13], 18, v7", f"v_mov_b32 v9, {OOB}",
      "v_cndmask_b32 v11, v9, v11, s[12:13]", "buffer_load_dwordx2 v[104:105], v11, s[48:51], 0 offen")
    a("s_barrier")
    a("v_mul_u32_u24 v8, 3456, v6", "v_add_lshl_u32 v10, v10, v8, 2", "v_cndmask_b32 v10, v9, v10, s[12:13]")
    a("v_mul_u32_u24 v8, 320, v6", "v_lshl_add_u32 v8, v7, 2, v8", f"v_add_u32 v8, {HTAB}, v8", f"v_mov_b32 v9, {DUMP}", "v_cndmask_b32 v111, v9, v8, s[12:13]")
    a("s_waitcnt vmcnt(1)")
    for k in range(9): a(f"v_lshlrev_b32 v{44+2*k}, 16, v{32+k}", f"v_and_b32 v{45+2*k}, 0xffff0000, v{32+k}")
    a("v_add_f32 v16, v44, v45")
    for k in range(2, 18): a(f"v_add_f32 v16, v16, v{44+k}")
    rowred("v_add_f32", ["v16"]); xrow("v_add_f32", ["v16"], ["v17"], which=(16,))
    a("v_mul_f32 v16, 0x3ae38e39, v16", "v_mov_b32 v17, 0")
    for k in range(18): a(f"v_sub_f32 v18, v{44+k}, v16", "v_fmac_f32 v17, v18, v18")
    rowred("v_add_f32", ["v17"]); xrow("v_add_f32", ["v17"], ["v18"], which=(16,))
    def lnstats(m, v):
        rne(m, m); rne(v, v); a(f"v_add_f32 {v}, 0x3727c5ac, {v}"); rne(v, v); a(f"v_sqrt_f32 {v}, {v}"); rne(v, v); a(f"v_rcp_f32 {v}, {v}")
    a("v_mul_f32 v17, 0x3ae38e39, v17"); lnstats("v16", "v17")
    a("s_waitcnt vmcnt(0)", "v_lshlrev_b32 v20, 16, v104", "v_and_b32 v21, 0xffff0000, v104", "v_lshlrev_b32 v22, 16, v105", "v_and_b32 v23, 0xffff0000, v105")
    for k in range(4): a(f"v_sub_f32 v{20+k}, v{20+k}, v16"); rne(f"v{20+k}", f"v{20+k}"); a(f"v_mul_f32 v{20+k}, v{20+k}, v17"); rne(f"v{20+k}", f"v{20+k}")
    a("s_waitcnt lgkmcnt(0)", "s_add_u32 s97, s97, 1", "s_and_b32 s99, s97, s96", "v_mov_b32 v0, s99")
    spin_lds(F_M)
    poll(sum([[f"s_mov_b32 s15, {MODP+k*27648}", f"buffer_load_dwordx4 v[{32+8*k}:{35+8*k}], v10, {WS}, s15 offen sc1", f"buffer_load_dwordx4 v[{36+8*k}:{39+8*k}], v10, {WS}, s15 offen offset:2304 sc1"] for k in range(9)], []), range(32, 104), "v9", valid="s[12:13]", sleep=PSLEEP)
    stamp(14)
    for k in range(1, 9):
        for e in range(0, 8, 2): a(f"v_pk_add_f32 v[{32+e}:{33+e}], v[{32+e}:{33+e}], v[{32+8*k+e}:{33+8*k+e}]")
    for k in range(4):
        rne(f"v{32+k}", f"v{32+k}"); rne(f"v{36+k}", f"v{36+k}"); a(f"v_add_f32 v{36+k}, 1.0, v{36+k}"); rne(f"v{36+k}", f"v{36+k}")
        a(f"v_mul_f32 v{20+k}, v{20+k}, v{36+k}"); rne(f"v{20+k}", f"v{20+k}"); a(f"v_add_f32 v{20+k}, v{20+k}, v{32+k}", f"v_cvt_pk_bf16_f32 v{20+k}, v{20+k}, v{20+k}", f"ds_write_b32 v111, v{20+k} offset:{80*k}")
    set_flag(F_H)
    a("Lbulk:")
    if BULKWAIT == 1: spin_lds(F_M)
    if BULKWAIT == 2: spin_lds(F_H)
    if BULKWAIT == 3: spin_lds(F_Q)
    if PF:
        a("s_cmp_eq_u32 s69, 1", "s_cbranch_scc1 Lpf1")
        srd(52, P["wg"], 576*9216); srd(56, P["wu"], 576*9216)
        a("s_sub_u32 s11, s8, 18", "s_lshl_b32 s11, s11, 3", "s_add_u32 s11, s11, s4", "s_lshl_b32 s11, s11, 3", "v_lshrrev_b32 v6, 3, v1", "v_add_u32 v6, s11, v6",
          "s_mul_i32 s12, s9, 1152", "v_and_b32 v7, 7, v1", "v_lshl_add_u32 v7, v7, 4, s12")
        for n in range(PFN//2):
            a("v_mul_u32_u24 v8, 7282, v6", "v_lshrrev_b32 v8, 16, v8", "v_mul_u32_u24 v9, 9, v8", "v_sub_u32 v9, v6, v9", "v_mul_u32_u24 v8, 9216, v8", "v_lshl_add_u32 v8, v9, 7, v8", "v_add_u32 v8, v8, v7",
              f"buffer_load_dwordx4 v[32:35], v8, s[52:55], 0 offen{NTP}", f"s_waitcnt vmcnt({PFD})", f"buffer_load_dwordx4 v[36:39], v8, s[56:59], 0 offen{NTP}", f"s_waitcnt vmcnt({PFD})", "v_add_u32 v6, 896, v6")
        a("Lpf1:")
    srd(48, P["wo"], 4096*1152)
    a("s_lshl_b32 s11, s5, 7", "s_and_b32 s12, s7, 1", "s_lshl_b32 s12, s12, 6", "s_add_u32 s11, s11, s12", "v_lshrrev_b32 v6, 3, v2", "v_lshl_add_u32 v6, v3, 4, v6", "v_add_u32 v6, s11, v6",
      "v_mul_u32_u24 v6, 1152, v6", "v_and_b32 v7, 7, v1", "v_lshl_add_u32 v6, v7, 4, v6", "s_lshl_b32 s15, s4, 7")
    for n in range(8): a(f"buffer_load_dwordx4 v[{32+4*n}:{35+4*n}], v6, s[48:51], s15 offen{NTO}", "s_add_u32 s15, s15, 2304", f"s_waitcnt vmcnt({HDEPTH})")
    a("s_cmp_lg_u32 s4, 0", "s_cbranch_scc1 Lb1", "s_movk_i32 s15, 1024")
    for n in range(8): a(f"buffer_load_dwordx4 v[{64+4*n}:{67+4*n}], v6, s[48:51], s15 offen{NTO}", "s_add_u32 s15, s15, 2304", f"s_waitcnt vmcnt({HDEPTH})")
    a("Lb1:", "s_cmp_lg_u32 s69, 1", "s_cbranch_scc1 Lb3")
    def guload():
        a("s_cmp_lt_u32 s4, 4", "s_cselect_b32 s52, s28, s30", "s_cselect_b32 s53, s29, s31", "s_and_b32 s53, s53, 0xffff", f"s_mov_b32 s54, {576*9216}", "s_mov_b32 s55, 0x20000")
        a("v_lshrrev_b32 v6, 2, v1", "v_mul_u32_u24 v6, 9216, v6", "v_and_b32 v7, 3, v1", "v_lshl_add_u32 v6, v7, 4, v6", "s_lshl_b32 s11, s10, 6", "v_add_u32 v6, s11, v6",
          "s_and_b32 s11, s4, 3", f"s_mul_i32 s15, s11, {9*16*9216}", "s_mul_i32 s12, s4, 9216", f"s_add_u32 s12, s12, {GU}")
        if 'sh' in SKIP: a("v_add_u32 v6, 128, v6")
        for n in range(0 if 'gu' in SKIP else 9):
            a("s_mov_b32 m0, s12", "s_add_u32 s12, s12, 1024")
            for g in range(GSPL):
                if GSPL > 1:
                    m = ((1 << (64//GSPL)) - 1) << (g*64//GSPL)
                    a(f"s_mov_b32 exec_lo, {m & 0xffffffff}", f"s_mov_b32 exec_hi, {m >> 32}")
                a(f"buffer_load_dwordx4 v6, s[52:55], s15 offen{NTG} lds", f"s_waitcnt vmcnt({GD})")
            a(f"s_add_u32 s15, s15, {16*9216}")
        if GSPL > 1: a("s_mov_b64 exec, -1")
    if not GULAST and not GUS: guload()
    a("s_cmp_lt_u32 s4, 3", "s_cbranch_scc1 Lb2")
    srd(56, P["wd"], 4608*1152)
    a("s_lshl_b32 s11, s10, 5", "v_add_u32 v6, s11, v3", "v_mul_u32_u24 v6, 1152, v6", "s_sub_u32 s12, s4, 3", "s_lshl_b32 s12, s12, 8", "v_lshl_add_u32 v7, v2, 4, s12",
      "v_cmp_gt_u32 vcc, 1152, v7", "v_add_u32 v6, v6, v7", f"v_mov_b32 v8, {OOB}", "v_cndmask_b32 v6, v8, v6, vcc", "s_mov_b32 s15, 0")
    for n in range(0 if 'wd' in SKIP else 8): a(f"buffer_load_dwordx4 v[{72+4*n}:{75+4*n}], v6, s[56:59], s15 offen{NTW}", "s_add_u32 s15, s15, 4608", f"s_waitcnt vmcnt({HDEPTH})")
    a("v_lshrrev_b32 v6, 1, v3", "v_mul_u32_u24 v6, 36, v6", "v_lshrrev_b32 v7, 5, v7", "v_add_u32 v6, v6, v7", "v_mul_u32_u24 v6, 9216, v6", "v_and_b32 v7, 1, v2", "v_lshl_add_u32 v6, v7, 5, v6",
      "v_and_b32 v7, 1, v3", "v_lshl_add_u32 v6, v7, 4, v6", "s_lshl_b32 s11, s10, 6", f"s_add_u32 s11, s11, {T3}", "v_add_u32 v6, s11, v6", "v_cndmask_b32 v110, v8, v6, vcc")
    a("Lb2:")
    if GULAST == 1 and not GUS: guload()
    a("v_cmp_gt_u32 vcc, 36, v1", "s_mul_i32 s11, s4, 576", "v_lshl_add_u32 v6, v1, 4, s11", f"v_mov_b32 v8, {OOB}", "v_cndmask_b32 v111, v8, v6, vcc", f"s_mov_b32 s12, {CB}", f"s_mov_b32 s13, {SB}", "s_mov_b64 s[14:15], vcc")
    spin_lds(F_Q)
    poll([f"buffer_load_dwordx4 v[24:27], v111, {WS}, s12 offen sc1", f"buffer_load_dwordx4 v[28:31], v111, {WS}, s13 offen sc1"], range(24, 32), "v8", sleep=8, valid="s[14:15]")
    a("Lb3:")
    a("s_cmp_lg_u32 s4, 1", "s_cbranch_scc1 Lb4")
    spin_lds(F_Q)
    a("v_cmp_gt_u32 vcc, 32, v1", "v_lshlrev_b32 v6, 3, v1", f"v_mov_b32 v8, {OOB}", "v_cndmask_b32 v6, v8, v6, vcc", "s_and_b32 s11, s3, 0xfc", "s_lshl_b32 s11, s11, 6", f"s_add_u32 s12, s11, {ML}", "s_mov_b64 s[14:15], vcc")
    poll([f"buffer_load_dwordx2 v[16:17], v6, {WS}, s12 offen sc1"], [16, 17], "v8", sleep=16, valid="s[14:15]")
    a("v_mov_b32 v18, v16"); rowred("v_max_f32", ["v18"]); xrow("v_max_f32", ["v18"], ["v19"], which=(16,))
    a("v_sub_f32 v16, v16, v18", "v_mul_f32 v16, 0x3fb8aa3b, v16", "v_exp_f32 v16, v16", "v_mul_f32 v17, v16, v17")
    rowred("v_add_f32", ["v17"]); xrow("v_add_f32", ["v17"], ["v19"], which=(16,))
    a("v_rcp_f32 v17, v17", "v_lshlrev_b32 v6, 2, v1", f"v_add_u32 v7, {WTAB}, v6", f"v_add_u32 v6, {DUMP}, v6", "v_cmp_gt_u32 vcc, 32, v1", "v_cndmask_b32 v6, v6, v7, vcc", "v_mul_f32 v16, v16, v17", "ds_write_b32 v6, v16")
    set_flag(F_W)
    a("Lb4:")
    a("v_lshrrev_b32 v6, 1, v2", "v_lshlrev_b32 v6, 13, v6", "v_and_b32 v7, 1, v2", "v_lshl_add_u32 v6, v7, 5, v6", "v_lshl_add_u32 v6, v3, 4, v6",
      "v_and_b32 v7, 40, v1", "v_cmp_eq_u32 vcc, 0, v7", f"v_mov_b32 v8, {OOB}", "v_cndmask_b32 v106, v8, v6, vcc",
      "s_mul_i32 s11, s6, 36", "s_lshl_b32 s11, s11, 13", "s_lshl_b32 s12, s5, 2", "s_add_u32 s12, s12, s7", "s_lshl_b32 s12, s12, 6", "s_add_u32 s11, s11, s12", f"s_add_u32 s11, s11, {T1}",
      "s_lshl_b32 s12, s4, 15", "s_add_u32 s12, s12, s11", f"s_add_u32 s13, s11, {8<<15}", "v_lshlrev_b32 v6, 2, v1")
    a("s_waitcnt vmcnt(0) lgkmcnt(0)"); stamp(1); a("s_barrier")
    stamp(5)
    for k in range(8): a(f"ds_read2st64_b32 v[{112+2*k}:{113+2*k}], v6 offset0:{OPART//256+2*k} offset1:{OPART//256+2*k+1}")
    for k in range(0, 8, 2): a(f"s_waitcnt lgkmcnt({6-k})", f"v_pk_add_f32 v[{112+2*k}:{113+2*k}], v[{112+2*k}:{113+2*k}], v[{114+2*k}:{115+2*k}]")
    a("v_pk_add_f32 v[112:113], v[112:113], v[116:117]", "v_pk_add_f32 v[120:121], v[120:121], v[124:125]", "v_pk_add_f32 v[112:113], v[112:113], v[120:121]", "v_add_f32 v16, v112, v113", "v_cvt_pk_bf16_f32 v16, v16, v16")
    def womerge(D, T, so):
        for k in range(4): a(f"v_permlane32_swap_b32 v{D+k}, v{T+k}")
        for k in range(4): a(f"v_add_f32_dpp v{D+k}, v{T+k}, v{D+k} row_ror:8 row_mask:0xf bank_mask:0xf")
        tagp(range(D, D+4))
        a(f"buffer_store_dwordx4 v[{D}:{D+3}], v106, {WS}, {so} offen sc1")
    a("s_cmp_eq_u32 s4, 0", "s_cbranch_scc1 Lwo0")
    for n in range(8): bc2(f"v{20+(n&1)}", "v16", 2*n, "v16", 2*n+1); mkA(112+4*(n&1), f"v{20+(n&1)}"); mfma(120, 112+4*(n&1), 32+4*n, n == 0)
    womerge(120, 8, "s12")
    a("s_branch Lwod", "Lwo0:")
    for n in range(8): bc2(f"v{20+(n&1)}", "v16", 2*n, "v16", 2*n+1); mkA(112+4*(n&1), f"v{20+(n&1)}"); mfma(120, 112+4*(n&1), 32+4*n, n == 0); mfma(124, 112+4*(n&1), 64+4*n, n == 0)
    womerge(120, 8, "s12"); womerge(124, 16, "s13")
    a("Lwod:")
    stamp(6)
    a("s_cmp_eq_u32 s69, 1", "s_cbranch_scc1 Lffn", "s_cmp_eq_u32 s69, 2", "s_cbranch_scc1 Lred", "s_branch Lfin")
    a("Lred:")
    srd(48, P["out"], 2304)
    a("v_lshlrev_b32 v6, 4, v1", "s_lshl_b32 s12, s68, 13", "s_lshl_b32 s11, s4, 10", "s_add_u32 s12, s12, s11", f"s_add_u32 s12, s12, {T1}",
      "s_mul_i32 s13, s68, 9216", "s_add_u32 s13, s13, s11", f"s_add_u32 s13, s13, {T3}", "s_add_u32 s14, s13, 8192", "s_cmp_eq_u32 s4, 0", f"s_cselect_b32 s14, s14, {OOB}",
      "v_and_b32 v7, 12, v1", "v_cmp_eq_u32 vcc, 0, v7", "v_and_b32 v7, 3, v1", "v_lshlrev_b32 v7, 4, v7", "v_lshl_add_u32 v7, v3, 6, v7", "s_lshl_b32 s11, s4, 8", f"s_add_u32 s11, s11, {RPART}",
      "v_add_u32 v7, s11, v7", f"v_add_u32 v8, {DUMP}, v6", "v_cndmask_b32 v7, v8, v7, vcc", "v_lshlrev_b32 v9, 2, v2", "v_lshl_add_u32 v9, v3, 9, v9", f"v_add_u32 v9, {RPART}, v9")
    def final_sum():
        for k in range(4): a(f"ds_read2_b32 v[{40+2*k}:{41+2*k}], v9 offset0:{32*k} offset1:{32*k+16}")
        a("s_waitcnt lgkmcnt(2)", "v_pk_add_f32 v[40:41], v[40:41], v[42:43]", "s_waitcnt lgkmcnt(0)", "v_pk_add_f32 v[44:45], v[44:45], v[46:47]", "v_pk_add_f32 v[40:41], v[40:41], v[44:45]", "v_add_f32 v40, v40, v41")
        xrow("v_add_f32", ["v40"], ["v41"])
        if not FAST: rne("v40", "v40")
    if PN[0] > 1: pollp([f"buffer_load_dwordx4 v[48:51], v6, {WS}, s12 offen sc1"], range(48, 52), "v8", PN[0], 32)
    else: poll([f"buffer_load_dwordx4 v[32:35], v6, {WS}, s12 offen sc1"], range(32, 36), "v8", sleep=TSL, xm=XM&1)
    rowred("v_add_f32", [f"v{32+k}" for k in range(4)], steps=(8, 4))
    a("ds_write_b128 v7, v[32:35]", "s_waitcnt lgkmcnt(0)", "s_barrier")
    stamp(7)
    a("s_cmp_lg_u32 s4, 1", "s_cbranch_scc1 Lred2")
    final_sum()
    if FAST: a("v_fmac_f32 v107, v40, v108")
    else: a("v_mul_f32 v40, v40, v108"); rne("v40", "v40"); a("v_add_f32 v107, v107, v40")
    rne("v107", "v107")
    a("s_lshl_b32 s11, s68, 6", f"s_add_u32 s11, s11, {T2}", "v_or_b32 v40, v107, v0")
    for k in range(R2//4): a(f"buffer_store_dword v40, v111, {WS}, s11 offen sc1", f"s_add_u32 s11, s11, {4*4608}")
    a("Lred2:")
    a("s_cmp_eq_u32 s4, 0", "s_cbranch_scc1 Lred3")
    if PN[2] > 1: pollp([f"buffer_load_dwordx4 v[52:55], v6, {WS}, s13 offen sc1"], range(52, 56), "v8", PN[2], 32)
    else: poll([f"buffer_load_dwordx4 v[32:35], v6, {WS}, s13 offen sc1"], range(32, 36), "v8", xm=XM&4, sleep=T3SL)
    a("s_branch Lred4", "Lred3:")
    if PN[2] > 1: pollp([f"buffer_load_dwordx4 v[52:55], v6, {WS}, s13 offen sc1", f"buffer_load_dwordx4 v[56:59], v6, {WS}, s14 offen sc1"], range(52, 60), "v8", PN[2], 32)
    else: poll([f"buffer_load_dwordx4 v[32:35], v6, {WS}, s13 offen sc1", f"buffer_load_dwordx4 v[36:39], v6, {WS}, s14 offen sc1"], range(32, 40), "v8", xm=XM&4, sleep=T3SL)
    a("v_pk_add_f32 v[32:33], v[32:33], v[36:37]", "v_pk_add_f32 v[34:35], v[34:35], v[38:39]", "Lred4:")
    rowred("v_add_f32", [f"v{32+k}" for k in range(4)], steps=(8, 4))
    a("ds_write_b128 v7, v[32:35]", "s_waitcnt lgkmcnt(0)", "s_barrier")
    a("s_cmp_lg_u32 s4, 1", "s_cbranch_scc1 Lfin")
    final_sum()
    if FAST: a("v_fma_f32 v40, v40, v109, v107")
    else: a("v_mul_f32 v40, v40, v109"); rne("v40", "v40"); a("v_add_f32 v40, v107, v40")
    a("v_cvt_pk_bf16_f32 v40, v40, v40", "buffer_store_short v40, v110, s[48:51], 0 offen")
    a("s_cmp_lg_u32 s68, 0", "s_cbranch_scc1 Lfin", "v_mov_b32 v41, s97", f"s_mov_b32 s11, {EP}", "s_mov_b64 exec, 1", f"buffer_store_dword v41, v5, {WS}, s11 offen sc1", "s_mov_b64 exec, -1")
    a("s_branch Lfin")
    a("Lffn:")
    a("v_lshrrev_b32 v6, 2, v2", "v_lshl_add_u32 v6, v3, 3, v6", "v_lshlrev_b32 v6, 6, v6", "v_and_b32 v7, 3, v1", "v_lshl_add_u32 v6, v7, 3, v6",
      "s_bfe_u32 s11, s4, 0x10001", "s_mul_i32 s11, s11, 36864", "s_and_b32 s12, s4, 1", "s_lshl_b32 s12, s12, 5", "s_add_u32 s11, s11, s12", "s_lshr_b32 s12, s4, 2", f"s_mul_i32 s13, s12, {9*2048}",
      "s_add_u32 s11, s11, s13", f"s_add_u32 s11, s11, {GU}", "v_add_u32 v6, s11, v6")
    for n in range(9): a(f"ds_read_b64_tr_b16 v[{32+4*n}:{33+4*n}], v6 offset:{2048*n}", f"ds_read_b64_tr_b16 v[{34+4*n}:{35+4*n}], v6 offset:{2048*n+256}")
    a("v_and_b32 v7, 1, v1", "v_mul_u32_u24 v7, 1152, v7", "v_lshl_add_u32 v7, v3, 4, v7", "s_mul_i32 s13, s12, 576", f"s_add_u32 s13, s13, {H2T}", "v_add_u32 v104, s13, v7")
    a("s_mul_i32 s13, s4, 288", f"s_add_u32 s13, s13, {H2T}", "v_lshl_add_u32 v7, v1, 3, s13", "v_lshlrev_b32 v8, 3, v1", f"v_add_u32 v8, {DUMP}, v8", "v_cmp_gt_u32 s[14:15], 36, v1", "v_cndmask_b32 v105, v8, v7, s[14:15]")
    a("s_lshl_b32 s13, s4, 7", f"s_add_u32 s13, s13, {GTAB}", "v_lshlrev_b32 v7, 6, v2", "v_lshl_add_u32 v7, v3, 4, v7", "v_add_u32 v7, s13, v7", "v_lshlrev_b32 v8, 4, v1", f"v_add_u32 v8, {DUMP}, v8",
      "v_cmp_gt_u32 vcc, 2, v2", "v_cndmask_b32 v107, v8, v7, vcc")
    a("v_and_b32 v7, 7, v2", "v_lshl_add_u32 v7, v7, 2, v3", "v_lshrrev_b32 v8, 4, v7", "v_and_b32 v7, 15, v7", "v_lshlrev_b32 v7, 2, v7", "v_lshl_add_u32 v7, v8, 7, v7", "v_lshrrev_b32 v8, 3, v2",
      "v_lshl_add_u32 v7, v8, 6, v7", f"v_add_u32 v108, {GTAB}, v7")
    a("s_lshl_b32 s13, s4, 3", f"s_add_u32 s13, s13, {STAT}", "v_mov_b32 v109, s13", "s_lshl_b32 s13, s12, 5", f"s_add_u32 s13, s13, {STAT}", "v_mov_b32 v9, s13", *([f"s_and_b32 s12, s8, {R2//8-1}", f"s_mul_i32 s13, s9, {R2//8}", "s_add_u32 s12, s12, s13"] if RX else [f"s_and_b32 s12, s10, {R2-1}"]), "s_mul_i32 s12, s12, 4608", f"s_add_u32 s12, s12, {T2}")
    if SCOUT: pollx([f"buffer_load_dword v16, v111, {WS}, s12 offen sc1"], [16], "v8", valid="1", clean=False)
    if PN[1] > 1: pollp([f"buffer_load_dwordx4 v[120:123], v111, {WS}, s12 offen sc1"], range(120, 124), "v8", PN[1], 16, valid="s[14:15]")
    else: poll([f"buffer_load_dwordx4 v[16:19], v111, {WS}, s12 offen sc1"], range(16, 20), "v8", valid="s[14:15]", sleep=TSL, xm=XM&2)
    stamp(7)
    a("v_readfirstlane_b32 s11, v16")
    for k in range(4): a(f"v_subrev_f32 v{20+k}, s11, v{16+k}")
    a("v_add_f32 v10, v20, v21", "v_mul_f32 v11, v20, v20", "v_add_f32 v10, v10, v22", "v_fmac_f32 v11, v21, v21", "v_add_f32 v10, v10, v23", "v_fmac_f32 v11, v22, v22", "v_fmac_f32 v11, v23, v23",
      "v_cndmask_b32 v10, 0, v10, s[14:15]", "v_cndmask_b32 v11, 0, v11, s[14:15]")
    rowred("v_add_f32", ["v10", "v11"]); xrow("v_add_f32", ["v10", "v11"], ["v20", "v21"])
    a("v_mul_f32 v20, 0x3be38e39, v10", "v_fma_f32 v11, -v20, v10, v11", "v_add_f32 v10, s11, v20", "ds_write_b64 v109, v[10:11]", "s_waitcnt lgkmcnt(0)", "s_barrier",
      "ds_read_b128 v[112:115], v9", "ds_read_b128 v[116:119], v9 offset:16", "s_waitcnt lgkmcnt(0)",
      "v_add_f32 v10, v112, v114", "v_add_f32 v11, v116, v118", "v_add_f32 v20, v113, v115", "v_add_f32 v21, v117, v119", "v_add_f32 v10, v10, v11", "v_add_f32 v11, v20, v21", "v_mul_f32 v10, 0x3e800000, v10",
      "v_sub_f32 v112, v112, v10", "v_sub_f32 v114, v114, v10", "v_sub_f32 v116, v116, v10", "v_sub_f32 v118, v118, v10",
      "v_mul_f32 v20, v112, v112", "v_fmac_f32 v20, v114, v114", "v_fmac_f32 v20, v116, v116", "v_fmac_f32 v20, v118, v118", "v_mul_f32 v11, 0x3ae38e39, v11", "v_fmac_f32 v11, 0x3e800000, v20")
    def rne2(x, y): a(f"v_cvt_pk_bf16_f32 v{y}, v{x}, v{y}", f"v_lshlrev_b32 v{x}, 16, v{y}", f"v_and_b32 v{y}, 0xffff0000, v{y}")
    if FAST:
        a("v_add_f32 v11, 0x3727c5ac, v11", "v_rsq_f32 v11, v11")
        for k in range(4): a(f"v_sub_f32 v{16+k}, v{16+k}, v10")
        for k in range(4): a(f"v_mul_f32 v{24+k}, v{24+k}, v11")
        for k in range(4): a(f"v_fma_f32 v{16+k}, v{16+k}, v{24+k}, v{28+k}")
    else:
        lnstats("v10", "v11")
        for k in range(4): a(f"v_sub_f32 v{16+k}, v{16+k}, v10")
        rne2(16, 17); rne2(18, 19)
        for k in range(4): a(f"v_mul_f32 v{16+k}, v{16+k}, v11")
        rne2(16, 17); rne2(18, 19)
        for k in range(4): a(f"v_mul_f32 v{16+k}, v{16+k}, v{24+k}")
        rne2(16, 17); rne2(18, 19)
        for k in range(4): a(f"v_add_f32 v{16+k}, v{16+k}, v{28+k}")
    a("v_cvt_pk_bf16_f32 v16, v16, v17", "v_cvt_pk_bf16_f32 v17, v18, v19", "ds_write_b64 v105, v[16:17]", "s_waitcnt lgkmcnt(0)", "s_barrier")
    if PN[1] > 1: a("s_waitcnt vmcnt(0)")
    hb = [8, 16, 20, 24, 28, 68, 112, 116, 124]
    for n in range(9): a(f"ds_read_b128 v[{hb[n]}:{hb[n]+3}], v104 offset:{64*n}")
    for n in range(9): a(f"s_waitcnt lgkmcnt({8-n})"); mfma(120, 32+4*n, hb[n], n == 0)
    a("ds_write_b128 v107, v[120:123]", "s_waitcnt lgkmcnt(0)", "s_barrier")
    a("s_cmp_lt_u32 s4, 3", "s_cbranch_scc1 Lfin")
    a("ds_read2st64_b32 v[16:17], v108 offset0:0 offset1:1", "ds_read2st64_b32 v[18:19], v108 offset0:2 offset1:3", "s_waitcnt lgkmcnt(0)", "v_pk_add_f32 v[16:17], v[16:17], v[18:19]")
    if not FAST: rne2(16, 17)
    a("v_mul_f32 v18, v16, v16", "v_mov_b32 v19, 0xc0135761", "v_fmac_f32 v19, 0xbdd2d3e8, v18", "v_mul_f32 v18, v16, v19", "v_exp_f32 v18, v18", "v_add_f32 v18, 1.0, v18", "v_rcp_f32 v18, v18", "v_mul_f32 v16, v16, v18")
    if not FAST: rne("v16", "v16")
    a("v_mul_f32 v16, v16, v17", "v_cvt_pk_bf16_f32 v16, v16, v16")
    for n in range(8): bc2(f"v{20+(n&1)}", "v16", n, "v16", 8+n); mkA(112+4*(n&1), f"v{20+(n&1)}"); mfma(120, 112+4*(n&1), 72+4*n, n == 0)
    tagp(range(120, 124)); a(f"buffer_store_dwordx4 v[120:123], v110, {WS}, 0 offen sc1")
    a("Lfin:")
    if TS:
        stamp(10)
        a("s_cmp_eq_u32 s4, 1", "s_cbranch_scc1 Lts1", "s_cmp_eq_u32 s4, 2", "s_cbranch_scc1 Lts2", "s_cmp_eq_u32 s4, 3", "s_cbranch_scc1 Lts3", "s_endpgm")
        a("Lts1:"); a("s_waitcnt lgkmcnt(0)", "s_mov_b64 s[94:95], s[92:93]"); flush_stamps([9, 11, 13]); a("s_endpgm")
        a("Lts2:"); flush_stamps([2, 12, 15]); a("s_endpgm")
        a("Lts3:"); flush_stamps([0, 1, 5, 6, 7, 10, 14])
    a("Lend:")
    hdr = open("adaLN_cond__mha_block_cached__geglu_ffn__decode.s.ref").read().split("; Override launch")[0]
    return (hdr + f"; @launch grid=(256,1,1) block=(1024,1,1) lds={LDSN}\n.amdgcn_target \"amdgcn-amd-amdhsa--gfx950\"\n.text\n.globl {KN}\n.p2align 8\n.type {KN},@function\n{KN}:\n"
        + a.text() + f"""    s_endpgm
.section .rodata,"a"
.p2align 6
.amdhsa_kernel {KN}
  .amdhsa_next_free_vgpr 128
  .amdhsa_next_free_sgpr 102
  .amdhsa_accum_offset 128
  .amdhsa_group_segment_fixed_size 0
  .amdhsa_kernarg_size 112
  .amdhsa_user_sgpr_count 2
  .amdhsa_user_sgpr_kernarg_segment_ptr 1
  .amdhsa_system_sgpr_workgroup_id_x 1
.end_amdhsa_kernel
""")
if __name__ == "__main__":
    out = sys.argv[1]; kw = {}
    for x in sys.argv[2:]:
        k, v = x.split("="); kw[k] = eval(v)
    open(out, "w").write(gen(**kw))
```

```python
import sys
from asmlib import Asm
KN = "adaLN_cond__mha_block_cached__geglu_ffn__decode_kernel"
QP=0; T1=0xC0000; T3=0x150000; ML=0x1F2000; CB=0x1F6000; SB=0x1F7200; EP=0x1F9000; MODP=0x200000; T2=0x240000; PEX=0x300000; WSN=0x400000
OOB=0x40000000
OPART=0; RPART=4096; HTAB=6400; QTAB=7040; WTAB=7296; STAT=7424; FL=7488; H2T=7552; GTAB=9856; DUMP=10880; GU=12288; LDSN=86016
F_Q=FL; F_H=FL+4; F_M=FL+8; F_W=FL+12
def TSR(k): return {13: 100, 14: 90, 12: 74, 15: 78}.get(k, 72+2*k)
def br4(r): return int(f"{r:04b}"[::-1], 2)
def gen(RING=20, DEPTH=2, HDEPTH=1, CATCH=2, TS=False, NT=" nt", NTW=" nt", PPOS=8, PDEPTH=2, PSLEEP=2, WQD=1, BULKWAIT=0, R2=8, MWAIT=1, SKIP='', TSL=0, NTG=' nt', GD=1, GSPL=1, PF=0, PFD=1, NTP='', GULAST=0, PFN=12, GUS=0, GP0=36, GST=3, DSW=64, DEPTH2=4, LV=None, LP0=32, FMAP=0, XM=0, SCOUT=0, IFIRST=0, PRIO=0, VAL=0, PL1=7, PL2=10, PN=(1,1,1), PD=10, RX=0, T3SL=0, QX=0, KRING=20, NTO=' nt', RK=None, RKD=4, GH=0, SB_=0, HOIST=0, FAST=0, PT=0, BW2=0, BWP=32):
    a = Asm()
    def srd(r, p, n): a(f"s_mov_b32 s{r}, s{p}", f"s_and_b32 s{r+1}, s{p+1}, 0xffff", f"s_mov_b32 s{r+2}, {n}", f"s_mov_b32 s{r+3}, 0x20000")
    P = dict(x=16, K=18, V=20, wq=22, wo=24, wg=28, wu=30, wd=32, c=34, wm=36, out=38, dbg=40, ws=42)
    WS = "s[44:47]"
    def stamp(k):
        if TS: a(f"s_memrealtime s[{TSR(k)}:{TSR(k)+1}]")
    def flush_stamps(ks):
        if not TS: return
        a("s_waitcnt lgkmcnt(0)", "s_lshl_b32 s11, s2, 7", "s_add_u32 s11, s11, 0x8000000", "v_mov_b32 v4, s11", "s_mov_b64 exec, 1")
        for k in ks: a(f"v_mov_b32 v6, s{TSR(k)}", f"v_mov_b32 v7, s{TSR(k)+1}", f"global_store_dwordx2 v4, v[6:7], s[42:43] offset:{8*k}", "s_waitcnt vmcnt(0)")
        a("s_mov_b64 exec, -1")
    def spin_lds(flag, t="v4", eq=None):
        l = a.label("Lsp"); d = a.label("Lspd")
        a(f"{l}:", f"ds_read_b32 {t}, v5 offset:{flag}", "s_waitcnt lgkmcnt(0)", f"v_readfirstlane_b32 s11, {t}", "s_cmp_lg_u32 s11, 0" if eq is None else f"s_cmp_eq_u32 s11, {eq}", f"s_cbranch_scc1 {d}",
          "s_sleep 1", "s_sub_u32 s70, s70, 1", "s_cmp_gt_i32 s70, 0", f"s_cbranch_scc1 {l}", f"{d}:")
    def set_flag(flag, t="v4"):
        a("s_waitcnt lgkmcnt(0)", f"v_mov_b32 {t}, 1", f"ds_write_b32 v5, {t} offset:{flag}")
    def tagp(rs, rnd=False):
        for r in rs:
            if rnd: a(f"v_add_u32 v{r}, 0x200, v{r}")
        for r in rs: a(f"v_bfi_b32 v{r}, s96, v0, v{r}")
    def pollx(loads, rs, t, valid=None, clean=True, sleep=0):
        l = a.label("Lpx"); d = a.label("Lpxd")
        if valid: a(f"s_mov_b64 exec, {valid}")
        a(f"{l}:"); a(*loads); a("s_waitcnt vmcnt(0)")
        rs = list(rs); a(f"v_xor_b32 {t}, v{rs[0]}, v0")
        for r in rs[1:]: a(f"v_bitop3_b32 {t}, {t}, v{r}, v0 bitop3:0xf6")
        a(f"v_and_b32 {t}, s96, {t}", f"v_cmp_ne_u32 vcc, 0, {t}", "s_and_b64 exec, vcc, vcc", f"s_cbranch_scc0 {d}")
        if sleep: a(f"s_sleep {sleep}")
        a("s_sub_u32 s70, s70, 1", "s_cmp_gt_i32 s70, 0", f"s_cbranch_scc1 {l}", f"{d}:", "s_mov_b64 exec, -1")
        if clean:
            for r in rs: a(f"v_and_b32 v{r}, s98, v{r}")
    def pollp(loads, rs, t, n, dst, valid=None):
        l = a.label("Lpp"); d = a.label("Lppd"); nl = sum(x.startswith("buffer") for x in loads)
        if valid: a(f"s_mov_b64 exec, {valid}")
        for k in range(n-1): a(*loads); a(f"s_sleep {PD*2//n}")
        a(f"{l}:"); a(*loads); a(f"s_waitcnt vmcnt({nl*(n-1)})")
        rs = list(rs); a(f"v_xor_b32 {t}, v{rs[0]}, v0")
        for r in rs[1:]: a(f"v_bitop3_b32 {t}, {t}, v{r}, v0 bitop3:0xf6")
        a(f"v_and_b32 {t}, s96, {t}", f"v_cmp_ne_u32 vcc, 0, {t}", "s_and_b64 exec, vcc, vcc", f"s_cbranch_scc0 {d}")
        a("s_sub_u32 s70, s70, 1", "s_cmp_gt_i32 s70, 0", f"s_cbranch_scc1 {l}", f"{d}:", "s_mov_b64 exec, -1")
        for k, r in enumerate(rs): a(f"v_and_b32 v{dst+k}, s98, v{r}")
    def poll(loads, rs, t, sleep=0, first=True, valid=None, clean=True, xm=0):
        if xm: return pollx(loads, rs, t, valid, clean, sleep)
        l = a.label("Lpo"); d = a.label("Lpod"); c = a.label("Lpoc")
        if not first: a(f"s_branch {c}")
        a(f"{l}:"); a(*loads); a("s_waitcnt vmcnt(0)"); a(f"{c}:")
        rs = list(rs); a(f"v_xor_b32 {t}, v{rs[0]}, v0")
        for r in rs[1:]: a(f"v_bitop3_b32 {t}, {t}, v{r}, v0 bitop3:0xf6")
        a(f"v_and_b32 {t}, s96, {t}", f"v_cmp_ne_u32 vcc, 0, {t}")
        if valid: a(f"s_and_b64 vcc, vcc, {valid}", f"s_cbranch_scc0 {d}")
        else: a(f"s_cbranch_vccz {d}")
        if sleep: a(f"s_sleep {sleep}")
        a("s_sub_u32 s70, s70, 1", "s_cmp_gt_i32 s70, 0", f"s_cbranch_scc1 {l}", f"{d}:")
        if clean:
            for r in rs: a(f"v_and_b32 v{r}, s98, v{r}")
    def rne(d, s): a(f"v_cvt_pk_bf16_f32 {d}, {s}, {s}", f"v_and_b32 {d}, 0xffff0000, {d}")
    def rowred(op, rs, steps=(8,4,2,1)):
        for st in steps:
            for r in rs: a(f"{op}_dpp {r}, {r}, {r} row_ror:{st} row_mask:0xf bank_mask:0xf")
    def xrow(op, rs, ts, which=(16,32)):
        for wd in which:
            for r, t in zip(rs, ts): a(f"v_mov_b32 {t}, {r}")
            for r, t in zip(rs, ts): a(f"v_permlane{wd}_swap_b32 {r}, {t}")
            for r, t in zip(rs, ts): a(f"{op} {r}, {r}, {t}")
    def masks():
        a("v_and_b32 v4, 7, v1", "v_and_b32 v6, 1, v1", "v_lshlrev_b32 v6, 4, v6", "v_mov_b32 v7, 0xffff", "v_lshlrev_b32 v6, v6, v7", "v_lshrrev_b32 v4, 1, v4")
        for r in range(4): a(f"v_cmp_eq_u32 vcc, {r}, v4", f"v_cndmask_b32 v{12+r}, 0, v6, vcc")
    def mkA(A, pp):
        for r in range(4): a(f"v_and_b32 v{A+r}, {pp}, v{12+r}")
    def bc2(pp, lo, nlo, hi, nhi):
        a(f"v_mov_b32_dpp {pp}, {lo} row_newbcast:{nlo} row_mask:0xf bank_mask:0x3", f"v_mov_b32_dpp {pp}, {hi} row_newbcast:{nhi} row_mask:0xf bank_mask:0xc")
    def mfma(D, A, B, first): a(f"v_mfma_f32_16x16x32_bf16 v[{D}:{D+3}], v[{A}:{A+3}], v[{B}:{B+3}], " + ("0" if first else f"v[{D}:{D+3}]"))
    a("s_cmp_ge_u32 s2, 256", "s_cbranch_scc1 Lend")
    stamp(0)
    a("s_load_dwordx16 s[16:31], s[0:1], 0", "s_load_dwordx8 s[32:39], s[0:1], 64", "s_load_dwordx4 s[40:43], s[0:1], 96")
    a("v_lshrrev_b32 v2, 6, v0", "v_and_b32 v1, 63, v0", "v_mov_b32 v5, 0", "v_readfirstlane_b32 s4, v2")
    a("s_and_b32 s9, s2, 7", "s_lshr_b32 s8, s2, 3", "s_lshl_b32 s3, s9, 5", "s_or_b32 s3, s3, s8")
    a("s_lshr_b32 s5, s3, 3", "s_bfe_u32 s6, s3, 0x10002", "s_and_b32 s7, s3, 3", "s_mov_b32 s70, 0x100000")
    a("v_and_b32 v2, 15, v1", "v_lshrrev_b32 v3, 4, v1")
    if FMAP:
        pk = lambda q: sum(v << (4*i) for i, v in enumerate(q))
        ce, co, c5 = pk([1,3,5,7,0,2,4,6,8]), pk([0,2,4,8,6,1,3,5,7]), pk([0,2,6,8,4,1,3,5,7])
        a("s_bitcmp1_b32 s9, 0", f"s_cselect_b32 s12, {co & 0xffffffff}, {ce & 0xffffffff}".replace(f", {ce & 0xffffffff}", ", s70"), f"s_cselect_b32 s13, {co >> 32}, {ce >> 32}", "s_cbranch_scc1 Lfm", f"s_mov_b32 s12, {ce & 0xffffffff}", "Lfm:",
          "s_cmp_eq_u32 s9, 5", f"s_cselect_b32 s12, {c5 & 0xffffffff}, s12", "s_and_b32 s10, s8, 1", "s_mul_i32 s10, s10, 9", "s_lshr_b32 s11, s8, 1", "s_add_u32 s10, s10, s11",
          "s_lshr_b32 s11, s10, 1", "s_lshl_b32 s11, s11, 2", "s_lshr_b64 s[12:13], s[12:13], s11", "s_and_b32 s12, s12, 15", "s_mul_i32 s11, s9, 9", "s_add_u32 s12, s12, s11", "s_and_b32 s10, s10, 1", "s_lshl1_add_u32 s10, s12, s10")
    else: a("s_mul_i32 s10, s9, 18", "s_add_u32 s10, s10, s8")
    masks()
    a("s_waitcnt lgkmcnt(0)", f"s_add_u32 s12, s42, {EP}", "s_addc_u32 s13, s43, 0", "s_load_dword s97, s[12:13], 0", "s_movk_i32 s96, 0x3ff", "s_mov_b32 s98, 0xfffffc00")
    srd(44, P["ws"], WSN)
    a("s_cmp_lt_u32 s4, 8", "s_cbranch_scc1 Lhelper")
    a("s_sub_u32 s4, s4, 8")
    if PRIO: a(f"s_setprio {PRIO}")
    srd(48, P["K"], 0x4000000); srd(52, P["V"], 0x4000000)
    a("s_lshl_b32 s11, s6, 5", "s_add_u32 s11, s11, s5", "s_lshl_b32 s11, s11, 20", "s_lshl_b32 s12, s4, 15", "s_add_u32 s11, s11, s12",
      "s_lshl_b32 s12, s7, 18", "s_add_u32 s12, s12, s11", "s_xor_b32 s13, s7, 1", "s_lshl_b32 s13, s13, 18", "s_add_u32 s13, s13, s11")
    a("v_lshl_add_u32 v6, v1, 4, s12")
    a("v_bfe_u32 v4, v1, 3, 1", "v_lshl_add_u32 v4, v4, 2, v3", "v_lshlrev_b32 v4, 8, v4", "v_and_b32 v7, 7, v1", "v_lshl_add_u32 v4, v7, 4, v4",
      "s_and_b32 s14, s7, 1", "s_lshl_b32 s14, s14, 7", "v_add_u32 v4, s14, v4", "v_add_u32 v7, s12, v4", "v_add_u32 v30, s13, v4")
    if VAL: a("s_min_u32 s14, s12, s13", "s_max_u32 s13, s12, s13", "v_add_u32 v7, s14, v4", "v_add_u32 v30, s13, v4")
    a("s_mov_b32 s64, 0xcccccccc", "s_mov_b32 s65, 0xcccccccc", "s_mov_b32 s66, 0xaaaaaaaa", "s_mov_b32 s67, 0xaaaaaaaa")
    if not SB_: a("s_barrier")
    ops = []
    slots = {}; freed = set()
    def freeslot(i):
        busy = {v for k, v in slots.items() if k not in freed}
        c = [x for x in range(KRING if i < 32 else RING) if x not in busy]
        return (c[-1] if i < 32 else c[0]) if c else None
    def slot(i): return 32 + 4*slots[i]
    def issue(i):
        slots[i] = freeslot(i); r = slot(i)
        if i < 32: a(f"s_movk_i32 s15, {i*1024}", f"buffer_load_dwordx4 v[{r}:{r+3}], v6, s[48:51], s15 offen{NT}")
        else:
            n = (i-32) % 16; v = "v7" if i < 48 else "v30"
            a(f"s_movk_i32 s15, {n*2048}", f"buffer_load_dwordx4 v[{r}:{r+3}], {v}, s[52:55], s15 offen{NT}")
        ops.append(i)
    done = [0]
    def waitn(n):
        if len(ops) - n > done[0]: done[0] = len(ops) - n; a(f"s_waitcnt vmcnt({n})")
    def wait_for(tag): waitn(len(ops) - 1 - ops.index(tag))
    def procK(i):
        wait_for(i+1); r0 = slot(i); r1 = slot(i+1)
        for k in range(4):
            a(f"v_dot2_f32_bf16 v20, v{r0+k}, v{8+k}, " + ("0" if k == 0 else "v20"), f"v_dot2_f32_bf16 v21, v{r1+k}, v{8+k}, " + ("0" if k == 0 else "v21"))
        freed.update((i, i+1)); j = i % 16; T = 22 + (j >> 1 & 1)
        a(f"v_add_f32_dpp v{T}, v20, v20 row_ror:8 row_mask:0xf bank_mask:0x3", f"v_add_f32_dpp v{T}, v21, v21 row_ror:8 row_mask:0xf bank_mask:0xc")
        if j & 2:
            U = 24 + (j >> 2 & 1)
            a(f"v_add_f32_dpp v{U}, v22, v22 row_half_mirror row_mask:0xf bank_mask:0x5", f"v_add_f32_dpp v{U}, v23, v23 row_half_mirror row_mask:0xf bank_mask:0xa")
            if j & 4:
                W = 26 + (j >> 3 & 1)
                a("v_cndmask_b32 v28, v24, v25, s[64:65]", "v_cndmask_b32 v29, v25, v24, s[64:65]", f"v_add_f32_dpp v{W}, v29, v28 quad_perm:[2,3,0,1] row_mask:0xf bank_mask:0xf")
                if j & 8:
                    a("v_cndmask_b32 v28, v26, v27, s[66:67]", "v_cndmask_b32 v29, v27, v26, s[66:67]", f"v_add_f32_dpp v{16+i//16}, v29, v28 quad_perm:[1,0,3,2] row_mask:0xf bank_mask:0xf")
    def softmax():
        a("v_cvt_pk_bf16_f32 v20, v16, v17", "s_mov_b32 s11, 0x3db504f3", "v_lshlrev_b32 v16, 16, v20", "v_and_b32 v17, 0xffff0000, v20",
          "v_mul_f32 v16, s11, v16", "v_mul_f32 v17, s11, v17", "v_cvt_pk_bf16_f32 v20, v16, v17", "v_lshlrev_b32 v16, 16, v20", "v_and_b32 v17, 0xffff0000, v20",
          "v_max_f32 v22, v16, v17")
        rowred("v_max_f32", ["v22"]); xrow("v_max_f32", ["v22"], ["v21"])
        a("s_mov_b32 s11, 0x3fb8aa3b", "v_sub_f32 v16, v16, v22", "v_sub_f32 v17, v17, v22", "v_mul_f32 v16, s11, v16", "v_mul_f32 v17, s11, v17",
          "v_exp_f32 v16, v16", "v_exp_f32 v17, v17", "v_add_f32 v23, v16, v17", "v_cvt_pk_bf16_f32 v16, v16, v16", "v_cvt_pk_bf16_f32 v17, v17, v17",
          "s_mov_b32 s14, 0xffff", "v_bfi_b32 v20, s14, v0, v16", "v_bfi_b32 v21, s14, v0, v17")
        a("s_lshl_b32 s11, s3, 3", "s_add_u32 s11, s11, s4", "s_lshl_b32 s12, s11, 9", f"s_add_u32 s12, s12, {PEX}", "v_lshlrev_b32 v31, 3, v1",
          f"buffer_store_dwordx2 v[20:21], v31, {WS}, s12 offen sc1"); ops.append("pst")
        a("s_xor_b32 s13, s12, 0x1000")
        rowred("v_add_f32", ["v23"]); xrow("v_add_f32", ["v23"], ["v25"]); tagp([22, 23])
        a("v_cmp_eq_u32 vcc, 0, v1", f"v_mov_b32 v24, {OOB}", "v_cndmask_b32 v24, v24, v5, vcc", "s_lshl_b32 s11, s11, 3", f"s_add_u32 s11, s11, {ML}",
          f"buffer_store_dwordx2 v[22:23], v24, {WS}, s11 offen sc1"); ops.append("mlst")
        if RK:
            a("v_and_b32 v24, 7, v1", "v_lshlrev_b32 v24, 5, v24", "v_bfe_u32 v25, v1, 3, 1", "v_lshl_add_u32 v25, v25, 4, s8", "v_and_b32 v25, 31, v25", "v_add_u32 v24, v24, v25",
              "v_lshl_add_u32 v24, v24, 3, s4", "v_lshlrev_b32 v24, 3, v24", "v_cmp_gt_u32 vcc, 16, v1", f"v_mov_b32 v25, {OOB}", "v_cndmask_b32 v24, v25, v24, vcc", f"s_mov_b32 s11, {ML}",
              f"buffer_load_dword v29, v24, {WS}, s11 offen sc1"); ops.append("rk")
    def procV(i):
        n = (i-32) % 16; par = i >= 48; D = 124 if par else 120; A = 112 + 4*(i & 1); u = n >> 3; n1 = n & 7
        src = f"v{(18 if par else 16)+u}"
        if i == (32 if VAL else 48):
            wait_for("pld")
            poll([f"buffer_load_dwordx2 v[26:27], v31, {WS}, s13 offen sc1"], [26, 27], "v28", first=False, clean=False)
            a("s_mov_b32 s14, 0x03020302", "v_perm_b32 v18, v26, v26, s14", "v_perm_b32 v19, v27, v27, s14")
            if VAL:
                l = a.label("Lsw"); a("s_bitcmp0_b32 s7, 0", f"s_cbranch_scc1 {l}", "v_swap_b32 v16, v18", "v_swap_b32 v17, v19", f"{l}:", "s_nop 1")
        bc2(f"v{20+(i&1)}", src, br4(2*n1), src, br4(2*n1+1)); mkA(A, f"v{20+(i&1)}")
        wait_for(i); mfma(D, A, slot(i), n == 0); freed.add(i)
    issued = 0
    for i in range(KRING):
        issue(i); issued += 1
        if issued == SB_: a("s_barrier")
        waitn(PDEPTH)
    a("s_waitcnt lgkmcnt(0)", "s_add_u32 s97, s97, 1", "s_and_b32 s99, s97, s96", "v_mov_b32 v0, s99")
    stamp(8)
    spin_lds(F_Q)
    a(f"v_lshlrev_b32 v4, 4, v2", f"ds_read_b128 v[8:11], v4 offset:{QTAB}", "s_waitcnt lgkmcnt(0)")
    proc = 0
    if LV:
        a("s_and_b32 s63, s7, 1", f"s_mul_i32 s63, s63, {LV[1]}", f"s_add_u32 s63, s63, {LV[0]}", "s_and_b32 s11, s10, 14", "s_cmp_eq_u32 s11, 6",
          f"s_cselect_b32 s11, {LV[2]+LV[3]}, {LV[3]}", "s_cmp_lt_u32 s8, 18", "s_cselect_b32 s11, s11, 0", "s_add_u32 s63, s63, s11")
    rkon = [False]
    def dep(i): return (DEPTH if i < DSW else DEPTH2) + (1 if LV and i >= LP0 else 0) + (2 if rkon[0] else 0)
    def endprep():
        spin_lds(F_W)
        a(f"s_and_b32 s11, s7, {2 if VAL else 3}", "s_lshl_b32 s11, s11, 3", "s_add_u32 s11, s11, s4", "s_lshl_b32 s11, s11, 2", "v_mov_b32 v4, s11", "v_xor_b32 v29, 32, v4",
          f"ds_read_b32 v26, v4 offset:{WTAB}", f"ds_read_b32 v27, v29 offset:{WTAB}")
        a("v_lshrrev_b32 v22, 3, v2", "v_lshrrev_b32 v23, 1, v3", "v_cmp_eq_u32 vcc, v22, v23", "v_and_b32 v23, 7, v1", "v_lshlrev_b32 v23, 5, v23", "v_and_b32 v24, 1, v3",
          "v_lshl_add_u32 v23, v24, 4, v23", "v_lshl_add_u32 v23, v22, 8, v23", "s_lshl_b32 s11, s4, 9", f"s_add_u32 s11, s11, {OPART}", "v_add_u32 v23, s11, v23",
          "v_lshlrev_b32 v24, 4, v1", f"v_add_u32 v24, {DUMP}, v24", "v_cndmask_b32 v23, v24, v23, vcc", "s_waitcnt lgkmcnt(0)")
    assert not (GUS and GH) or GP0 + (17*GST)//2 <= 63, "last gate/up DMA must precede the final V load so its wait covers it"
    ism = [0]
    def procsome(lag):
        nonlocal proc
        cnt = 0
        while proc < 64 and cnt < CATCH and (proc < issued - lag - (1 if proc < 32 else 0) or issued == 64):
            if VAL and proc == 32 and issued < min(ism[0] + PL2, 32 + RING): break
            if proc < 32:
                procK(proc); proc += 2; cnt += 2
                if (BW2 == 4 or BULKWAIT == 4) and proc == BWP: a("v_mov_b32 v4, 2", f"ds_write_b32 v5, v4 offset:{F_M}")
                if proc == 32: softmax(); stamp(3); ism[0] = issued
            else:
                if proc == HOIST: endprep()
                procV(proc); proc += 1; cnt += 1
    while proc < 64:
        if not IFIRST or issued == 64 or freeslot(issued) is None: procsome(dep(issued))
        if issued < 64 and freeslot(issued) is not None:
            issue(issued); issued += 1
            if GUS and issued == 33:
                a("s_cmp_lt_u32 s4, 4", "s_cselect_b32 s56, s28, s30", "s_cselect_b32 s57, s29, s31", "s_and_b32 s57, s57, 0xffff", "s_cmp_lt_u32 s8, 18", f"s_cselect_b32 s58, {576*9216}, 0", "s_mov_b32 s59, 0x20000",
                  "s_lshl_b32 s60, s10, 6", "s_and_b32 s61, s4, 3", f"s_mul_i32 s62, s61, {16*9216}", "s_add_u32 s60, s60, s62",
                  "v_lshrrev_b32 v6, 2, v1", "v_mul_u32_u24 v6, 9216, v6", "v_and_b32 v4, 3, v1", "v_lshl_add_u32 v6, v4, 4, v6", "v_add_u32 v6, s60, v6",
                  "s_lshr_b32 s62, s4, 2", "s_mul_i32 s62, s62, 36864", "s_lshl_b32 s61, s61, 10", "s_add_u32 s61, s61, s62", f"s_add_u32 s61, s61, {GU}", "s_mov_b32 s62, 0")
            if GUS and GH:
                for n in [n for n in range(18) if GP0 + (n*GST)//2 == issued]:
                    a("s_mov_b32 m0, s61", f"s_mov_b32 exec_{'lo' if n & 1 else 'hi'}, 0", f"buffer_load_dwordx4 v6, s[56:59], s62 offen{NTG} lds", "s_mov_b64 exec, -1"); ops.append(f"gu{n}")
                    if n & 1: a("s_add_u32 s61, s61, 4096", f"s_add_u32 s62, s62, {64*9216}")
            elif GUS and issued >= GP0 and (issued - GP0) % GST == 0 and (issued - GP0)//GST < 9:
                a("s_mov_b32 m0, s61", "s_add_u32 s61, s61, 4096", f"buffer_load_dwordx4 v6, s[56:59], s62 offen{NTG} lds", f"s_add_u32 s62, s62, {64*9216}"); ops.append(f"gu{issued}")
            if IFIRST: procsome(dep(issued) + 1)
            waitn(dep(issued))
            if rkon[0]:
                l = a.label("Lrk"); th = br4(issued & 15)
                a(f"s_cmp_gt_i32 s63, {th+16}", f"s_cbranch_scc1 {l}", f"s_waitcnt vmcnt({dep(issued)-1})", f"s_cmp_gt_i32 s63, {th}", f"s_cbranch_scc1 {l}", f"s_waitcnt vmcnt({dep(issued)-2})", f"{l}:")
            if RK and not rkon[0] and "rk" in ops and issued >= ism[0] + RKD:
                wait_for("rk"); rkon[0] = True
                a("v_xor_b32 v29, v29, v0", "v_and_b32 v29, s96, v29", "v_cmp_eq_u32 vcc, 0, v29", "s_and_b32 s63, vcc_lo, 0xffff", "s_bcnt1_i32_b32 s63, s63", f"s_mul_i32 s63, s63, {RK[0]}", f"s_add_i32 s63, s63, {RK[1]}")
            if LV and issued >= LP0:
                l = a.label("Llv"); a(f"s_cmp_gt_u32 s63, {br4(issued & 15) >> 1}", f"s_cbranch_scc1 {l}", f"s_waitcnt vmcnt({dep(issued)-1})", f"{l}:")
        if "mlst" in ops and "pld" not in ops and (issued >= min(ism[0] + PL1, 31 + RING) if VAL else proc >= 32 + PPOS):
            a(f"buffer_load_dwordx2 v[26:27], v31, {WS}, s13 offen sc1"); ops.append("pld")
    if not HOIST: endprep()
    for r in range(4): a(f"v_mul_f32 v{120+r}, v26, v{120+r}")
    for r in range(4): a(f"v_fmac_f32 v{120+r}, v27, v{124+r}")
    a("ds_write_b128 v23, v[120:123]", "s_waitcnt lgkmcnt(0)")
    stamp(4)
    a("s_barrier")
    if TS:
        a("s_cmp_lg_u32 s4, 0", "s_cbranch_scc1 Lend"); flush_stamps([3, 4, 8])
    a("s_endpgm")
    a("Lhelper:")
    for r in range(104, 112): a(f"v_mov_b32 v{r}, {OOB}")
    a("s_mul_i32 s68, s9, 9", "s_add_u32 s68, s68, s8", "s_sub_u32 s68, s68, 18")
    a("s_mov_b32 s69, 0", "s_cmp_lt_u32 s8, 27", "s_cselect_b32 s69, 2, 0", "s_cmp_lt_u32 s8, 18", "s_cselect_b32 s69, 1, s69")
    a("s_cmp_ge_u32 s68, 36", "s_cselect_b32 s71, 1, 0")
    a("s_cmp_eq_u32 s4, 1", "s_cbranch_scc1 Lw1", "s_cmp_eq_u32 s4, 2", "s_cbranch_scc1 Lw2", "s_cmp_eq_u32 s4, 3", "s_cbranch_scc1 Lw3")
    if PT:
        a("s_cmp_lg_u32 s4, 4", "s_cbranch_scc1 Lpt", "s_mov_b64 exec, 15", "v_lshlrev_b32 v10, 21, v1", f"v_min_u32 v11, {4096*1152-4}, v10", f"v_min_u32 v10, {576*9216-4}, v10",
          "s_lshl_b32 s11, s6, 5", "s_add_u32 s11, s11, s5", "s_lshl_b32 s11, s11, 20", "v_lshl_add_u32 v16, v1, 18, s11", "v_lshlrev_b32 v17, 9, v1")
        if PT & 1: a("global_load_dword v18, v17, s[38:39]")
        if PT & 2: a("global_load_dword v19, v16, s[20:21] nt")
        if PT & 4: a("global_load_dword v20, v11, s[24:25]", "global_load_dword v21, v10, s[28:29]", "global_load_dword v22, v10, s[30:31]", "global_load_dword v23, v10, s[32:33]")
        a("s_mov_b64 exec, -1", "Lpt:")
    a("v_mov_b32 v6, 0", "v_mov_b32 v7, 0", "v_mov_b32 v8, 0", "v_mov_b32 v9, 0", f"ds_write_b128 v5, v[6:9] offset:{FL}", "s_waitcnt lgkmcnt(0)", "s_add_u32 s97, s97, 1", "s_and_b32 s99, s97, s96", "v_mov_b32 v0, s99", "s_barrier", "s_branch Lbulk")
    a("Lw1:")
    srd(48, P["wm"], 576*6912); srd(52, P["c"], 2304); srd(60, P["x"], 2304)
    a("s_mul_i32 s11, s3, 7282", "s_lshr_b32 s11, s11, 16", "s_mul_i32 s12, s11, 9", "s_sub_u32 s12, s3, s12")
    a("s_cmp_lt_u32 s3, 243", "s_cbranch_scc1 Lw1a", "s_waitcnt lgkmcnt(0)", "s_add_u32 s97, s97, 1", "s_and_b32 s99, s97, s96", "v_mov_b32 v0, s99", "s_barrier", "s_branch Lw1clr", "Lw1a:")
    a("s_lshl_b32 s13, s12, 6", "v_lshl_add_u32 v6, v2, 2, v3", "v_add_u32 v6, s13, v6", "v_lshlrev_b32 v6, 1, v6",
      "buffer_load_ushort v16, v6, s[52:55], 0 offen", "buffer_load_ushort v17, v6, s[52:55], 0 offen offset:1152")
    a("v_add_u32 v6, s13, v3", "v_mul_u32_u24 v6, 6912, v6", "s_lshl_b32 s14, s11, 8", "v_lshl_add_u32 v6, v2, 4, v6", "v_add_u32 v6, s14, v6")
    for n in range(16): a(f"s_mov_b32 s15, {n*4*6912}", f"buffer_load_dwordx4 v[{32+4*n}:{35+4*n}], v6, s[48:51], s15 offen{NTW}")
    a("s_barrier", "s_waitcnt lgkmcnt(0)", "s_add_u32 s97, s97, 1", "s_and_b32 s99, s97, s96", "v_mov_b32 v0, s99")
    a("s_waitcnt vmcnt(16)")
    for r in (16, 17):
        a(f"v_lshlrev_b32 v{r}, 16, v{r}", f"v_mul_f32 v18, 0xbfb8aa3b, v{r}", "v_exp_f32 v18, v18", "v_add_f32 v18, 1.0, v18", "v_rcp_f32 v18, v18", f"v_mul_f32 v{r}, v{r}, v18", f"v_cvt_pk_bf16_f32 v{r}, v{r}, v{r}")
    for n in range(16):
        bc2(f"v{20+(n&1)}", "v16", n, "v17", n); mkA(112+4*(n&1), f"v{20+(n&1)}"); a(f"s_waitcnt vmcnt({15-n})"); mfma(120, 112+4*(n&1), 32+4*n, n == 0)
    a("v_lshrrev_b32 v6, 1, v3", "v_mul_u32_u24 v6, 13824, v6", "v_and_b32 v7, 1, v3", "v_lshl_add_u32 v6, v7, 4, v6", "v_lshl_add_u32 v6, v2, 5, v6",
      "s_mul_i32 s13, s12, 27648", "s_lshl_b32 s14, s11, 9", "s_add_u32 s13, s13, s14", f"s_add_u32 s13, s13, {MODP}")
    tagp(range(120, 124), True)
    a(f"buffer_store_dwordx4 v[120:123], v6, {WS}, s13 offen sc1"); stamp(13)
    if MWAIT: a("s_waitcnt vmcnt(0)")
    a("Lw1clr:"); set_flag(F_M); stamp(9)
    a("s_cmp_lg_u32 s69, 2", "s_cbranch_scc1 Lbulk")
    spin_lds(F_H)
    a("s_mul_i32 s12, s71, 36", "s_sub_u32 s12, s68, s12", "s_lshl_b32 s12, s12, 4")
    a("v_mul_u32_u24 v6, 576, v3", "v_add3_u32 v6, v6, v2, s12", "v_lshlrev_b32 v6, 2, v6", "s_mul_i32 s13, s71, 13824", f"s_add_u32 s13, s13, {MODP+1152*4}")
    a("s_mul_i32 s14, s71, 576", "s_add_u32 s14, s14, s12", "v_add_u32 v7, s14, v2", "v_lshlrev_b32 v8, 1, v7", "buffer_load_ushort v107, v8, s[60:63], 0 offen")
    poll(sum([[f"s_add_u32 s14, s13, {27648*k}", f"buffer_load_dword v{32+k}, v6, {WS}, s14 offen sc1"] for k in range(9)], []), range(32, 41), "v9", sleep=8)
    for k in range(1, 9): a(f"v_add_f32 v32, v32, v{32+k}")
    rne("v32", "v32"); a("v_add_f32 v33, 1.0, v32"); rne("v33", "v33")
    a("v_cmp_eq_u32 vcc, 2, v3", "v_cndmask_b32 v32, v32, v33, vcc", f"v_mov_b32 v9, {OOB}", f"v_mov_b32 v10, {CB}", "v_cndmask_b32 v9, v9, v10, vcc",
      "v_cmp_eq_u32 vcc, 1, v3", f"v_mov_b32 v10, {SB}", "v_cndmask_b32 v9, v9, v10, vcc", "v_lshl_add_u32 v9, v7, 2, v9", "v_or_b32 v33, v32, v0", f"buffer_store_dword v33, v9, {WS}, 0 offen sc1",
      "v_lshlrev_b32 v10, 2, v2", "v_add_u32 v11, 192, v10", "ds_bpermute_b32 v108, v10, v32", "ds_bpermute_b32 v109, v11, v32", "v_lshlrev_b32 v107, 16, v107",
      "v_cmp_gt_u32 vcc, 16, v1", f"v_mov_b32 v9, {OOB}", "v_cndmask_b32 v110, v9, v8, vcc", "v_mul_u32_u24 v111, 4608, v3", "v_add_u32 v111, v111, v10", "s_waitcnt lgkmcnt(0)", "s_branch Lbulk")
    a("Lw2:")
    srd(48, P["wq"], 576*8192)
    a("s_mov_b32 s11, s9" if QX else "s_and_b32 s11, s3, 7", "s_mul_i32 s11, s11, 72", "v_add_u32 v6, s11, v3", "v_lshlrev_b32 v6, 13, v6", f"s_lshl_b32 s12, {'s8' if QX else 's5'}, 8", "v_lshl_add_u32 v6, v2, 4, v6", "v_add_u32 v6, s12, v6")
    for n in range(18):
        if WQD < 18 and n == 0: a("s_barrier")
        a(f"s_mov_b32 s15, {n*32768}", f"buffer_load_dwordx4 v[{32+4*n}:{35+4*n}], v6, s[48:51], s15 offen{NTW}")
        if WQD < 18: a(f"s_waitcnt vmcnt({WQD})")
    if WQD >= 18: a("s_barrier")
    a("v_lshrrev_b32 v6, 3, v2", "v_lshl_add_u32 v6, v6, 2, v3", "v_mul_u32_u24 v6, 80, v6")
    a("s_waitcnt lgkmcnt(0)", "s_add_u32 s97, s97, 1", "s_and_b32 s99, s97, s96", "v_mov_b32 v0, s99")
    if TS: a("s_waitcnt vmcnt(0)"); stamp(12)
    spin_lds(F_H)
    hr = [16, 20, 24, 104, 108]
    for k in range(5): a(f"ds_read_b128 v[{hr[k]}:{hr[k]+3}], v6 offset:{HTAB+16*k}")
    a("s_waitcnt vmcnt(0) lgkmcnt(0)")
    for n in range(18): mkA(112+4*(n&1), f"v{hr[n>>2]+(n&3)}"); mfma(120, 112+4*(n&1), 32+4*n, n == 0)
    a("v_lshrrev_b32 v6, 1, v3", "v_lshlrev_b32 v6, 9, v6", "v_and_b32 v7, 1, v3", "v_lshl_add_u32 v6, v7, 4, v6", "v_lshl_add_u32 v6, v2, 5, v6", *(["s_lshl3_add_u32 s13, s8, s9", "s_lshl_b32 s13, s13, 10"] if QX else ["s_lshl_b32 s13, s3, 10"]))
    tagp(range(120, 124), True); a(f"buffer_store_dwordx4 v[120:123], v6, {WS}, s13 offen sc1"); stamp(15)
    a("v_lshrrev_b32 v6, 5, v1", "v_lshlrev_b32 v6, 12, v6", "v_and_b32 v7, 31, v1", "v_lshl_add_u32 v6, v7, 4, v6", "s_lshl_b32 s13, s5, 13", "s_lshl_b32 s14, s6, 9", "s_add_u32 s13, s13, s14")
    poll([f"buffer_load_dwordx4 v[{32+4*t}:{35+4*t}], v6, {WS}, s13 offen offset:{1024*t} sc1" for t in range(4)], range(32, 48), "v8", xm=XM&8)
    for k in range(4): a(f"v_add_f32 v{32+k}, v{32+k}, v{36+k}", f"v_add_f32 v{40+k}, v{40+k}, v{44+k}")
    for k in range(4): a(f"v_add_f32 v{32+k}, v{32+k}, v{40+k}")
    xrow("v_add_f32", [f"v{32+k}" for k in range(4)], [f"v{36+k}" for k in range(4)], which=(32,))
    a("v_cvt_pk_bf16_f32 v32, v32, v33", "v_cvt_pk_bf16_f32 v33, v34, v35", "v_lshlrev_b32 v7, 3, v7", f"ds_write_b64 v7, v[32:33] offset:{QTAB}")
    set_flag(F_Q); stamp(2)
    a("s_branch Lbulk")
    a("Lw3:")
    srd(48, P["x"], 2304)
    a("v_lshrrev_b32 v6, 5, v1", "v_and_b32 v7, 31, v1", "v_mul_u32_u24 v8, 1152, v6", "v_mul_u32_u24 v9, 36, v7", "v_add_u32 v9, v8, v9",
      "buffer_load_dwordx4 v[32:35], v9, s[48:51], 0 offen", "buffer_load_dwordx4 v[36:39], v9, s[48:51], 0 offen offset:16", "buffer_load_dword v40, v9, s[48:51], 0 offen offset:32")
    a("s_mov_b32 s11, s9" if QX else "s_and_b32 s11, s3, 7", "s_mul_i32 s11, s11, 72", "v_lshl_add_u32 v10, v7, 2, s11", "v_lshl_add_u32 v11, v10, 1, v8", "v_cmp_gt_u32 s[12:13], 18, v7", f"v_mov_b32 v9, {OOB}",
      "v_cndmask_b32 v11, v9, v11, s[12:13]", "buffer_load_dwordx2 v[104:105], v11, s[48:51], 0 offen")
    a("s_barrier")
    a("v_mul_u32_u24 v8, 3456, v6", "v_add_lshl_u32 v10, v10, v8, 2", "v_cndmask_b32 v10, v9, v10, s[12:13]")
    a("v_mul_u32_u24 v8, 320, v6", "v_lshl_add_u32 v8, v7, 2, v8", f"v_add_u32 v8, {HTAB}, v8", f"v_mov_b32 v9, {DUMP}", "v_cndmask_b32 v111, v9, v8, s[12:13]")
    a("s_waitcnt vmcnt(1)")
    for k in range(9): a(f"v_lshlrev_b32 v{44+2*k}, 16, v{32+k}", f"v_and_b32 v{45+2*k}, 0xffff0000, v{32+k}")
    a("v_add_f32 v16, v44, v45")
    for k in range(2, 18): a(f"v_add_f32 v16, v16, v{44+k}")
    rowred("v_add_f32", ["v16"]); xrow("v_add_f32", ["v16"], ["v17"], which=(16,))
    a("v_mul_f32 v16, 0x3ae38e39, v16", "v_mov_b32 v17, 0")
    for k in range(18): a(f"v_sub_f32 v18, v{44+k}, v16", "v_fmac_f32 v17, v18, v18")
    rowred("v_add_f32", ["v17"]); xrow("v_add_f32", ["v17"], ["v18"], which=(16,))
    def lnstats(m, v):
        rne(m, m); rne(v, v); a(f"v_add_f32 {v}, 0x3727c5ac, {v}"); rne(v, v); a(f"v_sqrt_f32 {v}, {v}"); rne(v, v); a(f"v_rcp_f32 {v}, {v}")
    a("v_mul_f32 v17, 0x3ae38e39, v17"); lnstats("v16", "v17")
    a("s_waitcnt vmcnt(0)", "v_lshlrev_b32 v20, 16, v104", "v_and_b32 v21, 0xffff0000, v104", "v_lshlrev_b32 v22, 16, v105", "v_and_b32 v23, 0xffff0000, v105")
    for k in range(4): a(f"v_sub_f32 v{20+k}, v{20+k}, v16"); rne(f"v{20+k}", f"v{20+k}"); a(f"v_mul_f32 v{20+k}, v{20+k}, v17"); rne(f"v{20+k}", f"v{20+k}")
    a("s_waitcnt lgkmcnt(0)", "s_add_u32 s97, s97, 1", "s_and_b32 s99, s97, s96", "v_mov_b32 v0, s99")
    spin_lds(F_M)
    poll(sum([[f"s_mov_b32 s15, {MODP+k*27648}", f"buffer_load_dwordx4 v[{32+8*k}:{35+8*k}], v10, {WS}, s15 offen sc1", f"buffer_load_dwordx4 v[{36+8*k}:{39+8*k}], v10, {WS}, s15 offen offset:2304 sc1"] for k in range(9)], []), range(32, 104), "v9", valid="s[12:13]", sleep=PSLEEP)
    stamp(14)
    for k in range(1, 9):
        for e in range(0, 8, 2): a(f"v_pk_add_f32 v[{32+e}:{33+e}], v[{32+e}:{33+e}], v[{32+8*k+e}:{33+8*k+e}]")
    for k in range(4):
        rne(f"v{32+k}", f"v{32+k}"); rne(f"v{36+k}", f"v{36+k}"); a(f"v_add_f32 v{36+k}, 1.0, v{36+k}"); rne(f"v{36+k}", f"v{36+k}")
        a(f"v_mul_f32 v{20+k}, v{20+k}, v{36+k}"); rne(f"v{20+k}", f"v{20+k}"); a(f"v_add_f32 v{20+k}, v{20+k}, v{32+k}", f"v_cvt_pk_bf16_f32 v{20+k}, v{20+k}, v{20+k}", f"ds_write_b32 v111, v{20+k} offset:{80*k}")
    set_flag(F_H)
    a("Lbulk:")
    if BULKWAIT == 1: spin_lds(F_M)
    if BULKWAIT == 2: spin_lds(F_H)
    if BULKWAIT == 3: spin_lds(F_Q)
    if BULKWAIT == 4: spin_lds(F_M, eq=2)
    if PF:
        a("s_cmp_eq_u32 s69, 1", "s_cbranch_scc1 Lpf1")
        srd(52, P["wg"], 576*9216); srd(56, P["wu"], 576*9216)
        a("s_sub_u32 s11, s8, 18", "s_lshl_b32 s11, s11, 3", "s_add_u32 s11, s11, s4", "s_lshl_b32 s11, s11, 3", "v_lshrrev_b32 v6, 3, v1", "v_add_u32 v6, s11, v6",
          "s_mul_i32 s12, s9, 1152", "v_and_b32 v7, 7, v1", "v_lshl_add_u32 v7, v7, 4, s12")
        for n in range(PFN//2):
            a("v_mul_u32_u24 v8, 7282, v6", "v_lshrrev_b32 v8, 16, v8", "v_mul_u32_u24 v9, 9, v8", "v_sub_u32 v9, v6, v9", "v_mul_u32_u24 v8, 9216, v8", "v_lshl_add_u32 v8, v9, 7, v8", "v_add_u32 v8, v8, v7",
              f"buffer_load_dwordx4 v[32:35], v8, s[52:55], 0 offen{NTP}", f"s_waitcnt vmcnt({PFD})", f"buffer_load_dwordx4 v[36:39], v8, s[56:59], 0 offen{NTP}", f"s_waitcnt vmcnt({PFD})", "v_add_u32 v6, 896, v6")
        a("Lpf1:")
    if BW2 == 3: spin_lds(F_Q)
    if BW2 == 4: spin_lds(F_M, eq=2)
    srd(48, P["wo"], 4096*1152)
    a("s_lshl_b32 s11, s5, 7", "s_and_b32 s12, s7, 1", "s_lshl_b32 s12, s12, 6", "s_add_u32 s11, s11, s12", "v_lshrrev_b32 v6, 3, v2", "v_lshl_add_u32 v6, v3, 4, v6", "v_add_u32 v6, s11, v6",
      "v_mul_u32_u24 v6, 1152, v6", "v_and_b32 v7, 7, v1", "v_lshl_add_u32 v6, v7, 4, v6", "s_lshl_b32 s15, s4, 7")
    for n in range(8): a(f"buffer_load_dwordx4 v[{32+4*n}:{35+4*n}], v6, s[48:51], s15 offen{NTO}", "s_add_u32 s15, s15, 2304", f"s_waitcnt vmcnt({HDEPTH})")
    a("s_cmp_lg_u32 s4, 0", "s_cbranch_scc1 Lb1", "s_movk_i32 s15, 1024")
    for n in range(8): a(f"buffer_load_dwordx4 v[{64+4*n}:{67+4*n}], v6, s[48:51], s15 offen{NTO}", "s_add_u32 s15, s15, 2304", f"s_waitcnt vmcnt({HDEPTH})")
    a("Lb1:", "s_cmp_lg_u32 s69, 1", "s_cbranch_scc1 Lb3")
    def guload():
        a("s_cmp_lt_u32 s4, 4", "s_cselect_b32 s52, s28, s30", "s_cselect_b32 s53, s29, s31", "s_and_b32 s53, s53, 0xffff", f"s_mov_b32 s54, {576*9216}", "s_mov_b32 s55, 0x20000")
        a("v_lshrrev_b32 v6, 2, v1", "v_mul_u32_u24 v6, 9216, v6", "v_and_b32 v7, 3, v1", "v_lshl_add_u32 v6, v7, 4, v6", "s_lshl_b32 s11, s10, 6", "v_add_u32 v6, s11, v6",
          "s_and_b32 s11, s4, 3", f"s_mul_i32 s15, s11, {9*16*9216}", "s_mul_i32 s12, s4, 9216", f"s_add_u32 s12, s12, {GU}")
        if 'sh' in SKIP: a("v_add_u32 v6, 128, v6")
        for n in range(0 if 'gu' in SKIP else 9):
            a("s_mov_b32 m0, s12", "s_add_u32 s12, s12, 1024")
            for g in range(GSPL):
                if GSPL > 1:
                    m = ((1 << (64//GSPL)) - 1) << (g*64//GSPL)
                    a(f"s_mov_b32 exec_lo, {m & 0xffffffff}", f"s_mov_b32 exec_hi, {m >> 32}")
                a(f"buffer_load_dwordx4 v6, s[52:55], s15 offen{NTG} lds", f"s_waitcnt vmcnt({GD})")
            a(f"s_add_u32 s15, s15, {16*9216}")
        if GSPL > 1: a("s_mov_b64 exec, -1")
    if not GULAST and not GUS: guload()
    a("s_cmp_lt_u32 s4, 3", "s_cbranch_scc1 Lb2")
    srd(56, P["wd"], 4608*1152)
    a("s_lshl_b32 s11, s10, 5", "v_add_u32 v6, s11, v3", "v_mul_u32_u24 v6, 1152, v6", "s_sub_u32 s12, s4, 3", "s_lshl_b32 s12, s12, 8", "v_lshl_add_u32 v7, v2, 4, s12",
      "v_cmp_gt_u32 vcc, 1152, v7", "v_add_u32 v6, v6, v7", f"v_mov_b32 v8, {OOB}", "v_cndmask_b32 v6, v8, v6, vcc", "s_mov_b32 s15, 0")
    for n in range(0 if 'wd' in SKIP else 8): a(f"buffer_load_dwordx4 v[{72+4*n}:{75+4*n}], v6, s[56:59], s15 offen{NTW}", "s_add_u32 s15, s15, 4608", f"s_waitcnt vmcnt({HDEPTH})")
    a("v_lshrrev_b32 v6, 1, v3", "v_mul_u32_u24 v6, 36, v6", "v_lshrrev_b32 v7, 5, v7", "v_add_u32 v6, v6, v7", "v_mul_u32_u24 v6, 9216, v6", "v_and_b32 v7, 1, v2", "v_lshl_add_u32 v6, v7, 5, v6",
      "v_and_b32 v7, 1, v3", "v_lshl_add_u32 v6, v7, 4, v6", "s_lshl_b32 s11, s10, 6", f"s_add_u32 s11, s11, {T3}", "v_add_u32 v6, s11, v6", "v_cndmask_b32 v110, v8, v6, vcc")
    a("Lb2:")
    if GULAST == 1 and not GUS: guload()
    a("v_cmp_gt_u32 vcc, 36, v1", "s_mul_i32 s11, s4, 576", "v_lshl_add_u32 v6, v1, 4, s11", f"v_mov_b32 v8, {OOB}", "v_cndmask_b32 v111, v8, v6, vcc", f"s_mov_b32 s12, {CB}", f"s_mov_b32 s13, {SB}", "s_mov_b64 s[14:15], vcc")
    spin_lds(F_Q)
    poll([f"buffer_load_dwordx4 v[24:27], v111, {WS}, s12 offen sc1", f"buffer_load_dwordx4 v[28:31], v111, {WS}, s13 offen sc1"], range(24, 32), "v8", sleep=8, valid="s[14:15]")
    a("Lb3:")
    a("s_cmp_lg_u32 s4, 1", "s_cbranch_scc1 Lb4")
    spin_lds(F_Q)
    a("v_cmp_gt_u32 vcc, 32, v1", "v_lshlrev_b32 v6, 3, v1", f"v_mov_b32 v8, {OOB}", "v_cndmask_b32 v6, v8, v6, vcc", "s_and_b32 s11, s3, 0xfc", "s_lshl_b32 s11, s11, 6", f"s_add_u32 s12, s11, {ML}", "s_mov_b64 s[14:15], vcc")
    poll([f"buffer_load_dwordx2 v[16:17], v6, {WS}, s12 offen sc1"], [16, 17], "v8", sleep=16, valid="s[14:15]")
    a("v_mov_b32 v18, v16"); rowred("v_max_f32", ["v18"]); xrow("v_max_f32", ["v18"], ["v19"], which=(16,))
    a("v_sub_f32 v16, v16, v18", "v_mul_f32 v16, 0x3fb8aa3b, v16", "v_exp_f32 v16, v16", "v_mul_f32 v17, v16, v17")
    rowred("v_add_f32", ["v17"]); xrow("v_add_f32", ["v17"], ["v19"], which=(16,))
    a("v_rcp_f32 v17, v17", "v_lshlrev_b32 v6, 2, v1", f"v_add_u32 v7, {WTAB}, v6", f"v_add_u32 v6, {DUMP}, v6", "v_cmp_gt_u32 vcc, 32, v1", "v_cndmask_b32 v6, v6, v7, vcc", "v_mul_f32 v16, v16, v17", "ds_write_b32 v6, v16")
    set_flag(F_W)
    a("Lb4:")
    a("v_lshrrev_b32 v6, 1, v2", "v_lshlrev_b32 v6, 13, v6", "v_and_b32 v7, 1, v2", "v_lshl_add_u32 v6, v7, 5, v6", "v_lshl_add_u32 v6, v3, 4, v6",
      "v_and_b32 v7, 40, v1", "v_cmp_eq_u32 vcc, 0, v7", f"v_mov_b32 v8, {OOB}", "v_cndmask_b32 v106, v8, v6, vcc",
      "s_mul_i32 s11, s6, 36", "s_lshl_b32 s11, s11, 13", "s_lshl_b32 s12, s5, 2", "s_add_u32 s12, s12, s7", "s_lshl_b32 s12, s12, 6", "s_add_u32 s11, s11, s12", f"s_add_u32 s11, s11, {T1}",
      "s_lshl_b32 s12, s4, 15", "s_add_u32 s12, s12, s11", f"s_add_u32 s13, s11, {8<<15}", "v_lshlrev_b32 v6, 2, v1")
    a("s_waitcnt vmcnt(0) lgkmcnt(0)"); stamp(1); a("s_barrier")
    stamp(5)
    for k in range(8): a(f"ds_read2st64_b32 v[{112+2*k}:{113+2*k}], v6 offset0:{OPART//256+2*k} offset1:{OPART//256+2*k+1}")
    for k in range(0, 8, 2): a(f"s_waitcnt lgkmcnt({6-k})", f"v_pk_add_f32 v[{112+2*k}:{113+2*k}], v[{112+2*k}:{113+2*k}], v[{114+2*k}:{115+2*k}]")
    a("v_pk_add_f32 v[112:113], v[112:113], v[116:117]", "v_pk_add_f32 v[120:121], v[120:121], v[124:125]", "v_pk_add_f32 v[112:113], v[112:113], v[120:121]", "v_add_f32 v16, v112, v113", "v_cvt_pk_bf16_f32 v16, v16, v16")
    def womerge(D, T, so):
        for k in range(4): a(f"v_permlane32_swap_b32 v{D+k}, v{T+k}")
        for k in range(4): a(f"v_add_f32_dpp v{D+k}, v{T+k}, v{D+k} row_ror:8 row_mask:0xf bank_mask:0xf")
        tagp(range(D, D+4))
        a(f"buffer_store_dwordx4 v[{D}:{D+3}], v106, {WS}, {so} offen sc1")
    a("s_cmp_eq_u32 s4, 0", "s_cbranch_scc1 Lwo0")
    for n in range(8): bc2(f"v{20+(n&1)}", "v16", 2*n, "v16", 2*n+1); mkA(112+4*(n&1), f"v{20+(n&1)}"); mfma(120, 112+4*(n&1), 32+4*n, n == 0)
    womerge(120, 8, "s12")
    a("s_branch Lwod", "Lwo0:")
    for n in range(8): bc2(f"v{20+(n&1)}", "v16", 2*n, "v16", 2*n+1); mkA(112+4*(n&1), f"v{20+(n&1)}"); mfma(120, 112+4*(n&1), 32+4*n, n == 0); mfma(124, 112+4*(n&1), 64+4*n, n == 0)
    womerge(120, 8, "s12"); womerge(124, 16, "s13")
    a("Lwod:")
    stamp(6)
    a("s_cmp_eq_u32 s69, 1", "s_cbranch_scc1 Lffn", "s_cmp_eq_u32 s69, 2", "s_cbranch_scc1 Lred", "s_branch Lfin")
    a("Lred:")
    srd(48, P["out"], 2304)
    a("v_lshlrev_b32 v6, 4, v1", "s_lshl_b32 s12, s68, 13", "s_lshl_b32 s11, s4, 10", "s_add_u32 s12, s12, s11", f"s_add_u32 s12, s12, {T1}",
      "s_mul_i32 s13, s68, 9216", "s_add_u32 s13, s13, s11", f"s_add_u32 s13, s13, {T3}", "s_add_u32 s14, s13, 8192", "s_cmp_eq_u32 s4, 0", f"s_cselect_b32 s14, s14, {OOB}",
      "v_and_b32 v7, 12, v1", "v_cmp_eq_u32 vcc, 0, v7", "v_and_b32 v7, 3, v1", "v_lshlrev_b32 v7, 4, v7", "v_lshl_add_u32 v7, v3, 6, v7", "s_lshl_b32 s11, s4, 8", f"s_add_u32 s11, s11, {RPART}",
      "v_add_u32 v7, s11, v7", f"v_add_u32 v8, {DUMP}, v6", "v_cndmask_b32 v7, v8, v7, vcc", "v_lshlrev_b32 v9, 2, v2", "v_lshl_add_u32 v9, v3, 9, v9", f"v_add_u32 v9, {RPART}, v9")
    def final_sum():
        for k in range(4): a(f"ds_read2_b32 v[{40+2*k}:{41+2*k}], v9 offset0:{32*k} offset1:{32*k+16}")
        a("s_waitcnt lgkmcnt(2)", "v_pk_add_f32 v[40:41], v[40:41], v[42:43]", "s_waitcnt lgkmcnt(0)", "v_pk_add_f32 v[44:45], v[44:45], v[46:47]", "v_pk_add_f32 v[40:41], v[40:41], v[44:45]", "v_add_f32 v40, v40, v41")
        xrow("v_add_f32", ["v40"], ["v41"])
        if not FAST: rne("v40", "v40")
    if PN[0] > 1: pollp([f"buffer_load_dwordx4 v[48:51], v6, {WS}, s12 offen sc1"], range(48, 52), "v8", PN[0], 32)
    else: poll([f"buffer_load_dwordx4 v[32:35], v6, {WS}, s12 offen sc1"], range(32, 36), "v8", sleep=TSL, xm=XM&1)
    rowred("v_add_f32", [f"v{32+k}" for k in range(4)], steps=(8, 4))
    a("ds_write_b128 v7, v[32:35]", "s_waitcnt lgkmcnt(0)", "s_barrier")
    stamp(7)
    a("s_cmp_lg_u32 s4, 1", "s_cbranch_scc1 Lred2")
    final_sum()
    if FAST: a("v_fmac_f32 v107, v40, v108")
    else: a("v_mul_f32 v40, v40, v108"); rne("v40", "v40"); a("v_add_f32 v107, v107, v40")
    rne("v107", "v107")
    a("s_lshl_b32 s11, s68, 6", f"s_add_u32 s11, s11, {T2}", "v_or_b32 v40, v107, v0")
    for k in range(R2//4): a(f"buffer_store_dword v40, v111, {WS}, s11 offen sc1", f"s_add_u32 s11, s11, {4*4608}")
    a("Lred2:")
    a("s_cmp_eq_u32 s4, 0", "s_cbranch_scc1 Lred3")
    if PN[2] > 1: pollp([f"buffer_load_dwordx4 v[52:55], v6, {WS}, s13 offen sc1"], range(52, 56), "v8", PN[2], 32)
    else: poll([f"buffer_load_dwordx4 v[32:35], v6, {WS}, s13 offen sc1"], range(32, 36), "v8", xm=XM&4, sleep=T3SL)
    a("s_branch Lred4", "Lred3:")
    if PN[2] > 1: pollp([f"buffer_load_dwordx4 v[52:55], v6, {WS}, s13 offen sc1", f"buffer_load_dwordx4 v[56:59], v6, {WS}, s14 offen sc1"], range(52, 60), "v8", PN[2], 32)
    else: poll([f"buffer_load_dwordx4 v[32:35], v6, {WS}, s13 offen sc1", f"buffer_load_dwordx4 v[36:39], v6, {WS}, s14 offen sc1"], range(32, 40), "v8", xm=XM&4, sleep=T3SL)
    a("v_pk_add_f32 v[32:33], v[32:33], v[36:37]", "v_pk_add_f32 v[34:35], v[34:35], v[38:39]", "Lred4:")
    rowred("v_add_f32", [f"v{32+k}" for k in range(4)], steps=(8, 4))
    a("ds_write_b128 v7, v[32:35]", "s_waitcnt lgkmcnt(0)", "s_barrier")
    a("s_cmp_lg_u32 s4, 1", "s_cbranch_scc1 Lfin")
    final_sum()
    if FAST: a("v_fma_f32 v40, v40, v109, v107")
    else: a("v_mul_f32 v40, v40, v109"); rne("v40", "v40"); a("v_add_f32 v40, v107, v40")
    a("v_cvt_pk_bf16_f32 v40, v40, v40", "buffer_store_short v40, v110, s[48:51], 0 offen")
    a("s_cmp_lg_u32 s68, 0", "s_cbranch_scc1 Lfin", "v_mov_b32 v41, s97", f"s_mov_b32 s11, {EP}", "s_mov_b64 exec, 1", f"buffer_store_dword v41, v5, {WS}, s11 offen sc1", "s_mov_b64 exec, -1")
    a("s_branch Lfin")
    a("Lffn:")
    a("v_lshrrev_b32 v6, 2, v2", "v_lshl_add_u32 v6, v3, 3, v6", "v_lshlrev_b32 v6, 6, v6", "v_and_b32 v7, 3, v1", "v_lshl_add_u32 v6, v7, 3, v6",
      "s_bfe_u32 s11, s4, 0x10001", "s_mul_i32 s11, s11, 36864", "s_and_b32 s12, s4, 1", "s_lshl_b32 s12, s12, 5", "s_add_u32 s11, s11, s12", "s_lshr_b32 s12, s4, 2", f"s_mul_i32 s13, s12, {9*2048}",
      "s_add_u32 s11, s11, s13", f"s_add_u32 s11, s11, {GU}", "v_add_u32 v6, s11, v6")
    for n in range(9): a(f"ds_read_b64_tr_b16 v[{32+4*n}:{33+4*n}], v6 offset:{2048*n}", f"ds_read_b64_tr_b16 v[{34+4*n}:{35+4*n}], v6 offset:{2048*n+256}")
    a("v_and_b32 v7, 1, v1", "v_mul_u32_u24 v7, 1152, v7", "v_lshl_add_u32 v7, v3, 4, v7", "s_mul_i32 s13, s12, 576", f"s_add_u32 s13, s13, {H2T}", "v_add_u32 v104, s13, v7")
    a("s_mul_i32 s13, s4, 288", f"s_add_u32 s13, s13, {H2T}", "v_lshl_add_u32 v7, v1, 3, s13", "v_lshlrev_b32 v8, 3, v1", f"v_add_u32 v8, {DUMP}, v8", "v_cmp_gt_u32 s[14:15], 36, v1", "v_cndmask_b32 v105, v8, v7, s[14:15]")
    a("s_lshl_b32 s13, s4, 7", f"s_add_u32 s13, s13, {GTAB}", "v_lshlrev_b32 v7, 6, v2", "v_lshl_add_u32 v7, v3, 4, v7", "v_add_u32 v7, s13, v7", "v_lshlrev_b32 v8, 4, v1", f"v_add_u32 v8, {DUMP}, v8",
      "v_cmp_gt_u32 vcc, 2, v2", "v_cndmask_b32 v107, v8, v7, vcc")
    a("v_and_b32 v7, 7, v2", "v_lshl_add_u32 v7, v7, 2, v3", "v_lshrrev_b32 v8, 4, v7", "v_and_b32 v7, 15, v7", "v_lshlrev_b32 v7, 2, v7", "v_lshl_add_u32 v7, v8, 7, v7", "v_lshrrev_b32 v8, 3, v2",
      "v_lshl_add_u32 v7, v8, 6, v7", f"v_add_u32 v108, {GTAB}, v7")
    a("s_lshl_b32 s13, s4, 3", f"s_add_u32 s13, s13, {STAT}", "v_mov_b32 v109, s13", "s_lshl_b32 s13, s12, 5", f"s_add_u32 s13, s13, {STAT}", "v_mov_b32 v9, s13", *([f"s_and_b32 s12, s8, {R2//8-1}", f"s_mul_i32 s13, s9, {R2//8}", "s_add_u32 s12, s12, s13"] if RX else [f"s_and_b32 s12, s10, {R2-1}"]), "s_mul_i32 s12, s12, 4608", f"s_add_u32 s12, s12, {T2}")
    if SCOUT: pollx([f"buffer_load_dword v16, v111, {WS}, s12 offen sc1"], [16], "v8", valid="1", clean=False)
    if PN[1] > 1: pollp([f"buffer_load_dwordx4 v[120:123], v111, {WS}, s12 offen sc1"], range(120, 124), "v8", PN[1], 16, valid="s[14:15]")
    else: poll([f"buffer_load_dwordx4 v[16:19], v111, {WS}, s12 offen sc1"], range(16, 20), "v8", valid="s[14:15]", sleep=TSL, xm=XM&2)
    stamp(7)
    a("v_readfirstlane_b32 s11, v16")
    for k in range(4): a(f"v_subrev_f32 v{20+k}, s11, v{16+k}")
    a("v_add_f32 v10, v20, v21", "v_mul_f32 v11, v20, v20", "v_add_f32 v10, v10, v22", "v_fmac_f32 v11, v21, v21", "v_add_f32 v10, v10, v23", "v_fmac_f32 v11, v22, v22", "v_fmac_f32 v11, v23, v23",
      "v_cndmask_b32 v10, 0, v10, s[14:15]", "v_cndmask_b32 v11, 0, v11, s[14:15]")
    rowred("v_add_f32", ["v10", "v11"]); xrow("v_add_f32", ["v10", "v11"], ["v20", "v21"])
    a("v_mul_f32 v20, 0x3be38e39, v10", "v_fma_f32 v11, -v20, v10, v11", "v_add_f32 v10, s11, v20", "ds_write_b64 v109, v[10:11]", "s_waitcnt lgkmcnt(0)", "s_barrier",
      "ds_read_b128 v[112:115], v9", "ds_read_b128 v[116:119], v9 offset:16", "s_waitcnt lgkmcnt(0)",
      "v_add_f32 v10, v112, v114", "v_add_f32 v11, v116, v118", "v_add_f32 v20, v113, v115", "v_add_f32 v21, v117, v119", "v_add_f32 v10, v10, v11", "v_add_f32 v11, v20, v21", "v_mul_f32 v10, 0x3e800000, v10",
      "v_sub_f32 v112, v112, v10", "v_sub_f32 v114, v114, v10", "v_sub_f32 v116, v116, v10", "v_sub_f32 v118, v118, v10",
      "v_mul_f32 v20, v112, v112", "v_fmac_f32 v20, v114, v114", "v_fmac_f32 v20, v116, v116", "v_fmac_f32 v20, v118, v118", "v_mul_f32 v11, 0x3ae38e39, v11", "v_fmac_f32 v11, 0x3e800000, v20")
    def rne2(x, y): a(f"v_cvt_pk_bf16_f32 v{y}, v{x}, v{y}", f"v_lshlrev_b32 v{x}, 16, v{y}", f"v_and_b32 v{y}, 0xffff0000, v{y}")
    if FAST:
        a("v_add_f32 v11, 0x3727c5ac, v11", "v_rsq_f32 v11, v11")
        for k in range(4): a(f"v_sub_f32 v{16+k}, v{16+k}, v10")
        for k in range(4): a(f"v_mul_f32 v{24+k}, v{24+k}, v11")
        for k in range(4): a(f"v_fma_f32 v{16+k}, v{16+k}, v{24+k}, v{28+k}")
    else:
        lnstats("v10", "v11")
        for k in range(4): a(f"v_sub_f32 v{16+k}, v{16+k}, v10")
        rne2(16, 17); rne2(18, 19)
        for k in range(4): a(f"v_mul_f32 v{16+k}, v{16+k}, v11")
        rne2(16, 17); rne2(18, 19)
        for k in range(4): a(f"v_mul_f32 v{16+k}, v{16+k}, v{24+k}")
        rne2(16, 17); rne2(18, 19)
        for k in range(4): a(f"v_add_f32 v{16+k}, v{16+k}, v{28+k}")
    a("v_cvt_pk_bf16_f32 v16, v16, v17", "v_cvt_pk_bf16_f32 v17, v18, v19", "ds_write_b64 v105, v[16:17]", "s_waitcnt lgkmcnt(0)", "s_barrier")
    if PN[1] > 1: a("s_waitcnt vmcnt(0)")
    hb = [8, 16, 20, 24, 28, 68, 112, 116, 124]
    for n in range(9): a(f"ds_read_b128 v[{hb[n]}:{hb[n]+3}], v104 offset:{64*n}")
    for n in range(9): a(f"s_waitcnt lgkmcnt({8-n})"); mfma(120, 32+4*n, hb[n], n == 0)
    a("ds_write_b128 v107, v[120:123]", "s_waitcnt lgkmcnt(0)", "s_barrier")
    a("s_cmp_lt_u32 s4, 3", "s_cbranch_scc1 Lfin")
    a("ds_read2st64_b32 v[16:17], v108 offset0:0 offset1:1", "ds_read2st64_b32 v[18:19], v108 offset0:2 offset1:3", "s_waitcnt lgkmcnt(0)", "v_pk_add_f32 v[16:17], v[16:17], v[18:19]")
    if not FAST: rne2(16, 17)
    a("v_mul_f32 v18, v16, v16", "v_mov_b32 v19, 0xc0135761", "v_fmac_f32 v19, 0xbdd2d3e8, v18", "v_mul_f32 v18, v16, v19", "v_exp_f32 v18, v18", "v_add_f32 v18, 1.0, v18", "v_rcp_f32 v18, v18", "v_mul_f32 v16, v16, v18")
    if not FAST: rne("v16", "v16")
    a("v_mul_f32 v16, v16, v17", "v_cvt_pk_bf16_f32 v16, v16, v16")
    for n in range(8): bc2(f"v{20+(n&1)}", "v16", n, "v16", 8+n); mkA(112+4*(n&1), f"v{20+(n&1)}"); mfma(120, 112+4*(n&1), 72+4*n, n == 0)
    tagp(range(120, 124)); a(f"buffer_store_dwordx4 v[120:123], v110, {WS}, 0 offen sc1")
    a("Lfin:")
    if TS:
        stamp(10)
        a("s_cmp_eq_u32 s4, 1", "s_cbranch_scc1 Lts1", "s_cmp_eq_u32 s4, 2", "s_cbranch_scc1 Lts2", "s_cmp_eq_u32 s4, 3", "s_cbranch_scc1 Lts3", "s_endpgm")
        a("Lts1:"); a("s_waitcnt lgkmcnt(0)", "s_mov_b64 s[94:95], s[92:93]"); flush_stamps([9, 11, 13]); a("s_endpgm")
        a("Lts2:"); flush_stamps([2, 12, 15]); a("s_endpgm")
        a("Lts3:"); flush_stamps([0, 1, 5, 6, 7, 10, 14])
    a("Lend:")
    hdr = open("adaLN_cond__mha_block_cached__geglu_ffn__decode.s.ref").read().split("; Override launch")[0]
    return (hdr + f"; @launch grid=(256,1,1) block=(1024,1,1) lds={LDSN}\n.amdgcn_target \"amdgcn-amd-amdhsa--gfx950\"\n.text\n.globl {KN}\n.p2align 8\n.type {KN},@function\n{KN}:\n"
        + a.text() + f"""    s_endpgm
.section .rodata,"a"
.p2align 6
.amdhsa_kernel {KN}
  .amdhsa_next_free_vgpr 128
  .amdhsa_next_free_sgpr 102
  .amdhsa_accum_offset 128
  .amdhsa_group_segment_fixed_size 0
  .amdhsa_kernarg_size 112
  .amdhsa_user_sgpr_count 2
  .amdhsa_user_sgpr_kernarg_segment_ptr 1
  .amdhsa_system_sgpr_workgroup_id_x 1
.end_amdhsa_kernel
""")
if __name__ == "__main__":
    out = sys.argv[1]; kw = {}
    for x in sys.argv[2:]:
        k, v = x.split("="); kw[k] = eval(v)
    open(out, "w").write(gen(**kw))
```
